```python
import torch

def _softmax(x, axis=-1):
    return torch.softmax(x, dim=axis)
def _gelu(x):
    return torch.nn.functional.gelu(x, approximate="tanh")
def _silu(x):
    return torch.nn.functional.silu(x)
def _sigmoid(x):
    return torch.sigmoid(x)
def _layernorm(x, axis=-1, eps=1e-5):
    m = x.mean(dim=axis, keepdim=True)
    v = x.var(dim=axis, keepdim=True, unbiased=False)
    return (x - m) / torch.sqrt(v + eps)
def _scatter_add(tgt, idx, src, axis=0):
    return tgt.clone().index_add_(axis, idx, src)
def _segment_sum(src, seg, n):
    out = torch.zeros((n,) + src.shape[1:], dtype=src.dtype)
    return out.index_add_(0, seg, src)
def _pad(x, pw):
    flat = tuple(v for pair in reversed(pw) for v in pair)
    return torch.nn.functional.pad(x, flat)

kernel_name = 'concat_heads__mha_block__linear_kernel_hedgehog__prompt'

def setup_inputs():

    _w = (lambda a: (lambda t: t.to(torch.bfloat16) if t.is_floating_point() else t)(torch.as_tensor(a)))
    def _A_setup():
        B, S, D, H = 1, 2048, 448, 16
        return {
            "x": _w((lambda *s: torch.randn(*s, dtype=torch.bfloat16) * 0.4)(B, S, D)),
            "wqkv": _w((lambda *s: torch.randn(*s, dtype=torch.bfloat16) * 0.4)(D, 3 * D)),
            "wo": _w((lambda *s: torch.randn(*s, dtype=torch.bfloat16) * 0.05)(D, D)),
        }
    _A_in = _A_setup()

    def _B_setup():
        B, S, D, H = 1, 2048, 448, 16
        Dh = D // H
        return {
            "x": _w((lambda *s: torch.randn(*s, dtype=torch.bfloat16) * 0.8)(B, S, D)),
            "wqkv": _w((lambda *s: torch.randn(*s, dtype=torch.bfloat16) * 1.6)(D, 3 * D)),
            "w_phi": _w((lambda *s: torch.randn(*s, dtype=torch.bfloat16) * 1.6)(H, Dh, Dh) * (Dh ** -0.5)),
            "wo": _w((lambda *s: torch.randn(*s, dtype=torch.bfloat16) * 0.1)(D, D)),
        }
    _B_in = _B_setup()

    return {
        "A_x": _A_in["x"],
        "A_wqkv": _A_in["wqkv"],
        "A_wo": _A_in["wo"],
        "B_x": _B_in["x"],
        "B_wqkv": _B_in["wqkv"],
        "B_w_phi": _B_in["w_phi"],
        "B_wo": _B_in["wo"],
    }

def reference(A_x, A_wqkv, A_wo, B_x, B_wqkv, B_w_phi, B_wo):
    def _A_ref(x, wqkv, wo):
        B, S, D = x.shape
        H = 16
        Dh = D // H
        qkv = (lambda x, *d: x.permute(*d))((x @ wqkv).reshape(B, S, 3, H, Dh), 2, 0, 3, 1, 4)
        q, k, v = qkv[0], qkv[1], qkv[2]
        scores = torch.einsum("bhqd,bhkd->bhqk", q, k) * (Dh ** -0.5)
        p = _softmax(scores, axis=-1)
        o = torch.einsum("bhqk,bhkd->bhqd", p, v)
        return (lambda x, *d: x.permute(*d))(o, 0, 2, 1, 3).reshape(B, S, D) @ wo

    def _B_ref(x, wqkv, w_phi, wo):
        B, S, D = x.shape
        H = 16; Dh = D // H
        qkv = (lambda x, *d: x.permute(*d))((x @ wqkv).reshape(B, S, 3, H, Dh), 2, 0, 3, 1, 4)
        q, k, v = qkv[0], qkv[1], qkv[2]
        pq = torch.einsum("bhsd,hdf->bhsf", q, w_phi)
        pk = torch.einsum("bhsd,hdf->bhsf", k, w_phi)
        phi_q = torch.concatenate([_softmax(pq, axis=-1), _softmax(-pq, axis=-1)], axis=-1)
        phi_k = torch.concatenate([_softmax(pk, axis=-1), _softmax(-pk, axis=-1)], axis=-1)
        kv = torch.einsum("bhsf,bhsd->bhfd", phi_k, v)
        z  = torch.einsum("bhsf->bhf", phi_k)
        num = torch.einsum("bhqf,bhfd->bhqd", phi_q, kv)
        den = torch.einsum("bhqf,bhf->bhq", phi_q, z)[..., None] + 1e-6
        o = num / den
        return (lambda x, *d: x.permute(*d))(o, 0, 2, 1, 3).reshape(B, S, D) @ wo

    a = _A_ref(A_x, A_wqkv, A_wo)
    b = _B_ref(B_x, B_wqkv, B_w_phi, B_wo)
    return torch.concatenate([a, b], axis=-1)
```

```python
import re

TRANS = ("v_exp_f32", "v_log_f32", "v_rcp_f32", "v_rsq_f32", "v_sqrt_f32", "v_sin_f32", "v_cos_f32", "v_rcp_iflag_f32")

def regs_of(tok):
    tok = tok.strip()
    tok = tok.lstrip("-")
    m = re.match(r"^abs\((.*)\)$", tok) or re.match(r"^\|(.*)\|$", tok)
    if m: tok = m.group(1)
    m = re.match(r"^([vsa])(\d+)$", tok)
    if m: return [(m.group(1), int(m.group(2)))]
    m = re.match(r"^([vsa])\[(\d+):(\d+)\]$", tok)
    if m: return [(m.group(1), i) for i in range(int(m.group(2)), int(m.group(3)) + 1)]
    if tok in ("vcc", "exec", "m0", "scc"): return [(tok, 0)]
    if tok in ("vcc_lo", "vcc_hi"): return [("vcc", 0)]
    if tok in ("exec_lo", "exec_hi"): return [("exec", 0)]
    return []

class Ins:
    def __init__(self, text):
        self.text = text
        t = text.split(";")[0].strip()
        self.label = None
        if t.endswith(":"):
            self.label = t[:-1]; self.op = None; return
        parts = t.split(None, 1)
        self.op = parts[0]
        rest = parts[1] if len(parts) > 1 else ""
        ops = [o.strip() for o in re.split(r",(?![^\[]*\])", rest)] if rest else []
        self.mods = ""
        if ops:
            last = ops[-1].split(None, 1)
            ops[-1] = last[0]
            if len(last) > 1: self.mods = last[1]
        self.ops = ops
        op = self.op
        self.dst, self.src = [], []
        self.srcC = []; self.srcAB = []
        self.cls = "other"
        R = [regs_of(o) for o in ops]
        flat = lambda L: [x for l in L for x in l]
        if op.startswith("v_mfma"):
            self.cls = "mfma"; self.dst = R[0]; self.srcAB = R[1] + R[2]; self.srcC = R[3]; self.src = self.srcAB + self.srcC
            self.passes = 8 if "32x32x16" in op else 4
        elif op.startswith("v_"):
            base = re.sub(r"_(e32|e64|sdwa|dpp)$", "", op)
            self.cls = "trans" if base in TRANS else "valu"
            if base.startswith("v_cmp"):
                self.dst = R[0]; self.src = flat(R[1:])
                if base.startswith("v_cmpx"): self.dst = self.dst + [("exec", 0)]
            elif base.startswith("v_permlane") and "swap" in base:
                self.dst = R[0] + R[1]; self.src = R[0] + R[1]; self.cls = "permlane"
            elif base in ("v_fmac_f32", "v_pk_fmac_f16", "v_dot2c_f32_bf16", "v_writelane_b32") or op.endswith("_sdwa"):
                self.dst = R[0]; self.src = flat(R)
            elif base in ("v_add_co_u32", "v_sub_co_u32", "v_addc_co_u32", "v_subb_co_u32"):
                self.dst = R[0] + R[1]; self.src = flat(R[2:])
            elif base == "v_cndmask_b32":
                self.dst = R[0]; self.src = flat(R[1:])
                if len(ops) == 3: self.src += [("vcc", 0)]
            else:
                self.dst = R[0]; self.src = flat(R[1:])
            if op.endswith("_dpp") or "row_" in self.mods or "quad_perm" in self.mods: self.dpp = True
            else: self.dpp = False
            self.base = base
        elif op.startswith("ds_"):
            self.cls = "ds"
            if op.startswith("ds_read") or op.startswith("ds_bpermute") or op.startswith("ds_swizzle"):
                self.dst = R[0]; self.src = flat(R[1:])
            else:
                self.src = flat(R)
        elif op.startswith("buffer_") or op.startswith("global_"):
            self.cls = "vmem"
            self.lds = " lds" in (" " + self.mods) or "_lds_" in op
            if op in ("buffer_wbl2", "buffer_inv"):
                pass
            elif "load" in op and not self.lds:
                self.dst = R[0]; self.src = flat(R[1:])
            elif "atomic" in op and "sc0" in self.mods:
                self.dst = R[0]; self.src = flat(R)
            else:
                self.src = flat(R)
                if self.lds: self.src += [("m0", 0)]
            self.store_data = []
            if "store" in op and ("x3" in op or "x4" in op):
                self.store_data = R[0] if op.startswith("buffer_") else R[1]
        elif op.startswith("s_"):
            self.cls = "salu"
            if op.startswith("s_load") or op.startswith("s_buffer_load") or op.startswith("s_memtime") or op.startswith("s_memrealtime"):
                self.cls = "smem"; self.dst = R[0]; self.src = flat(R[1:])
            elif op.startswith("s_cmp") or op.startswith("s_cbranch") or op in ("s_waitcnt", "s_barrier", "s_nop", "s_branch", "s_endpgm", "s_setprio", "s_sleep"):
                self.src = flat(R)
            else:
                self.dst = R[0]; self.src = flat(R[1:])
                if "saveexec" in op: self.dst = self.dst + [("exec", 0)]
    def states(self):
        if self.op is None: return 0
        if self.op == "s_nop": return int(self.ops[0], 0) + 1
        return 1
    def is_valu(self): return self.cls in ("valu", "trans", "permlane")

def need(p, c):
    best = (0, "")
    def upd(n, why):
        nonlocal best
        if n > best[0]: best = (n, why)
    pd, cs, cd = set(p.dst), set(c.src), set(c.dst)
    vg = lambda S: {x for x in S if x[0] in ("v", "a")}
    sg = lambda S: {x for x in S if x[0] in ("s", "vcc")}
    if p.is_valu():
        if c.cls == "mfma" and vg(pd) & cs: upd(2, "VALU->MFMA operand")
        if c.cls == "permlane" and vg(pd) & cs: upd(2, "VALU->permlane")
        if c.is_valu() and getattr(c, "dpp", False) and vg(pd) & cs: upd(2, "VALU->DPP")
        if c.is_valu() and c.base in ("v_readlane_b32", "v_readfirstlane_b32") and vg(pd) & cs: upd(1, "VALU->readlane")
        if p.cls == "trans" and c.is_valu() and c.cls != "trans" and vg(pd) & (cs | cd): upd(1, "trans->VALU")
        if p.cls == "trans" and c.cls in ("mfma",) and vg(pd) & cs: upd(2, "trans->MFMA")
        if sg(pd) & cs:
            if c.cls == "vmem": upd(5, "VALU sgpr->VMEM")
            if c.is_valu(): upd(2, "VALU sgpr->VALU const/mask")
            if c.is_valu() and c.base in ("v_readlane_b32", "v_writelane_b32"): upd(4, "VALU sgpr->lane select")
        if ("exec", 0) in pd:
            if c.cls == "mfma": upd(4, "VALU exec->MFMA")
            if c.cls == "permlane": upd(4, "cmpx->permlane")
            if c.is_valu() and getattr(c, "dpp", False): upd(5, "exec->DPP")
            if c.is_valu() and c.base in ("v_readlane_b32", "v_readfirstlane_b32", "v_writelane_b32"): upd(4, "exec->readlane")
        if p.op.endswith("_sdwa") and c.is_valu() and vg(pd) & (cs | cd): upd(1, "SDWA->VALU")
    if p.cls == "mfma":
        n = p.passes
        far = {4: 8, 8: 12}[n]
        if c.cls == "mfma":
            if pd & set(c.srcAB): upd(far, "MFMA D->MFMA A/B")
            if pd & set(c.srcC):
                if not (list(p.dst) == list(c.srcC) and c.passes == p.passes): upd({4: 6, 8: 10}[n], "MFMA D->overlapped C")
            elif pd & cd: upd(far, "MFMA WAW (conservative)")
        elif c.is_valu():
            if pd & (cs | cd): upd(far, "MFMA D->VALU")
            if set(p.srcC) & cd: upd({4: 3, 8: 7}[n], "MFMA C WAR VALU write")
        elif c.cls in ("vmem", "ds"):
            if pd & (cs | cd): upd(far, "MFMA D->mem")
            if set(p.srcC) & cd: upd({4: 3, 8: 7}[n], "MFMA C WAR load (conservative)")
    if p.cls == "salu" and ("m0", 0) in pd and c.cls == "vmem" and getattr(c, "lds", False): upd(1, "M0->LDS DMA")
    if p.cls == "vmem" and getattr(p, "store_data", None):
        if set(p.store_data) & cd: upd(2 if c.is_valu() else 1, "store data WAR")
    return best

class Prog:
    def __init__(self):
        self.L = []
    def __call__(self, text):
        for line in text.strip("\n").split("\n"):
            line = line.strip()
            if line: self.L.append(line)
    def label(self, name): self.L.append(name + ":")
    def text(self):
        out = []
        for l in self.L:
            if l.startswith(".") or l.endswith(":"): out.append(l)
            else: out.append("    " + l)
        return "\n".join(out) + "\n"
    def check(self, verbose=True, W=24):
        ins = [Ins(l) for l in self.L if not l.startswith(".") and not l.startswith(";")]
        labels = {x.label: i for i, x in enumerate(ins) if x.label}
        problems = []
        def scan(seq, tag):
            for j, c in enumerate(seq):
                if c.op is None: continue
                dist = 0
                for i in range(j - 1, max(-1, j - W - 1), -1):
                    p = seq[i]
                    if p.op is None: continue
                    n, why = need(p, c)
                    if n > dist:
                        problems.append(f"{tag}: need {n} have {dist} [{why}]: '{p.text}' -> '{c.text}'")
                    dist += p.states()
                    if dist >= 21: break
        seg = []
        for x in ins:
            seg.append(x)
            if x.op in ("s_branch", "s_endpgm"):
                scan(seg, "lin"); seg = []
        scan(seg, "lin")
        for i, x in enumerate(ins):
            if x.op and (x.op.startswith("s_cbranch") or x.op == "s_branch"):
                tgt = labels.get(x.ops[0])
                if tgt is None: problems.append("unknown label " + x.ops[0]); continue
                a = []
                for k in range(i, max(-1, i - W), -1):
                    if k != i and ins[k].op in ("s_branch", "s_endpgm"): break
                    a.insert(0, ins[k])
                b = []
                for k in range(tgt, min(len(ins), tgt + W)):
                    b.append(ins[k])
                    if ins[k].op in ("s_branch", "s_endpgm"): break
                na = len(a)
                seq = a + b
                for j in range(na, len(seq)):
                    c = seq[j]
                    if c.op is None: continue
                    dist = sum(y.states() for y in seq[na:j])
                    for k in range(na - 1, -1, -1):
                        p = seq[k]
                        if p.op is None: continue
                        n, why = need(p, c)
                        if n > dist:
                            problems.append(f"br {x.ops[0]}: need {n} have {dist} [{why}]: '{p.text}' -> '{c.text}'")
                        dist += p.states()
        problems = list(dict.fromkeys(problems))
        if verbose:
            for p in problems: print("HAZARD", p)
        return problems
    def max_regs(self):
        mv = ms = -1
        for l in self.L:
            if l.startswith(".") or l.startswith(";") or l.endswith(":"): continue
            x = Ins(l)
            for k, i in x.dst + x.src:
                if k == "v": mv = max(mv, i)
                if k == "s": ms = max(ms, i)
        return mv + 1, ms + 1

def vr(b, n=1):
    return f"v{b}" if n == 1 else f"v[{b}:{b+n-1}]"
def sr(b, n=1):
    return f"s{b}" if n == 1 else f"s[{b}:{b+n-1}]"
```

```python
import sys, math, struct
sys.path.insert(0, "gen")
from asmlib import Prog, vr, sr

NAME = "concat_heads__mha_block__linear_kernel_hedgehog__prompt"
MB = 1 << 20
Q_OFF, KV_OFF, PQ_OFF, KP_OFF, O_OFF, WS_USED = 0, 2 * MB, 6 * MB, 10 * MB, 12 * MB, 16 * MB
X_BYTES, W_BYTES, WO_BYTES, WPHI_BYTES, OUT_BYTES = 2048 * 896, 448 * 2688, 448 * 896, 16 * 1568, 2048 * 1792
LOG2E = 1.4426950408889634
def f32(x): return "0x%08x" % struct.unpack("<I", struct.pack("<f", x))[0]
MFMA = "v_mfma_f32_32x32x16_bf16"

def srd(p, d, base, nbytes):
    p(f"s_mov_b32 s{d}, s{base}\ns_mov_b32 s{d+1}, s{base+1}\ns_mov_b32 s{d+2}, {hex(nbytes)}\ns_mov_b32 s{d+3}, 0x20000")

def load_args(p):
    p("s_load_dwordx16 s[16:31], s[0:1], 0\ns_load_dwordx4 s[32:35], s[0:1], 64")

def xhalf(p, op, x, t):
    p(f"v_mov_b32 v{t}, v{x}\ns_nop 1\nv_permlane32_swap_b32 v{x}, v{t}\ns_nop 0\n{op} v{x}, v{x}, v{t}")

def softmax_pm(p, P, OP, OM, T, sUP):
    mx, mn, t0, sp, sm, rp, rm, rp2, rm2 = T + 16, T + 17, T + 18, T + 19, T + 20, T + 21, T + 22, T + 23, T + 18
    E = T
    p(f"v_max3_f32 v{mx}, v{P}, v{P+1}, v{P+2}\nv_min3_f32 v{mn}, v{P}, v{P+1}, v{P+2}")
    for j in range(3, 15, 2):
        p(f"v_max3_f32 v{mx}, v{mx}, v{P+j}, v{P+j+1}\nv_min3_f32 v{mn}, v{mn}, v{P+j}, v{P+j+1}")
    p(f"v_max_f32 v{mx}, v{mx}, v{P+15}\nv_min_f32 v{mn}, v{mn}, v{P+15}")
    p(f"v_mov_b32 v{t0}, v{mx}\nv_mov_b32 v{sp}, v{mn}\ns_nop 0")
    p(f"v_permlane32_swap_b32 v{mx}, v{t0}\nv_permlane32_swap_b32 v{mn}, v{sp}\ns_nop 0")
    p(f"v_max_f32 v{mx}, v{mx}, v{t0}\nv_min_f32 v{mn}, v{mn}, v{sp}")
    for j in range(16):
        p(f"v_sub_f32 v{E+j}, v{mn}, v{P+j}\nv_sub_f32 v{P+j}, v{P+j}, v{mx}")
    for j in range(16):
        p(f"v_exp_f32 v{E+j}, v{E+j}\nv_exp_f32 v{P+j}, v{P+j}")
    for (B, s) in ((E, sm), (P, sp)):
        p(f"v_add_f32 v{s}, v{B+12}, v{B+13}\nv_add_f32 v{t0}, v{B+14}, v{B+15}\nv_add_f32 v{s}, v{s}, v{t0}")
        p(f"v_cndmask_b32 v{s}, v{s}, 0, {sr(sUP,2)}")
        for j in range(0, 12, 2):
            p(f"v_add_f32 v{t0}, v{B+j}, v{B+j+1}\nv_add_f32 v{s}, v{s}, v{t0}")
    p(f"v_mov_b32 v{rp}, v{sp}\nv_mov_b32 v{rm}, v{sm}\ns_nop 0")
    p(f"v_permlane32_swap_b32 v{sp}, v{rp}\nv_permlane32_swap_b32 v{sm}, v{rm}\ns_nop 0")
    p(f"v_add_f32 v{sp}, v{sp}, v{rp}\nv_add_f32 v{sm}, v{sm}, v{rm}")
    p(f"v_rcp_f32 v{rp}, v{sp}\nv_rcp_f32 v{rm}, v{sm}\ns_nop 0")
    p(f"v_cndmask_b32 v{rp2}, v{rp}, 0, {sr(sUP,2)}\nv_cndmask_b32 v{rm2}, v{rm}, 0, {sr(sUP,2)}")
    for j in range(16):
        p(f"v_mul_f32 v{P+j}, v{P+j}, v{rp if j < 12 else rp2}\nv_mul_f32 v{E+j}, v{E+j}, v{rm if j < 12 else rm2}")
    for j in range(8):
        p(f"v_cvt_pk_bf16_f32 v{OP+j}, v{P+2*j}, v{P+2*j+1}\nv_cvt_pk_bf16_f32 v{OM+j}, v{E+2*j}, v{E+2*j+1}")

def k1():
    p = Prog()
    SLOT = 40960
    sB, sRB, sPAIR, sWV = 3, 4, 5, 6
    X, W, WS, WP = 36, 40, 44, 48
    sXO, sWO, sDS, sRS, sCNT, sT, sT2, sH, sUP = 52, 53, 54, 55, 56, 57, 58, 59, 60
    sM0X, sM0W = 62, 63
    vL, vXD, vWD, vXA0, vWA0, vXA, vWA = 1, 2, 6, 12, 16, 17, 21
    vT = 22
    XF = [28, 36]
    WF = [44, 56]
    AQ, AK, AV = 68, 100, 132
    WPH = 164
    p("s_cmp_ge_u32 s2, 256\ns_cbranch_scc1 k1_end")
    load_args(p)
    p(f"""v_lshrrev_b32 v{vT}, 6, v0
v_and_b32 v{vL}, 63, v0
s_and_b32 s7, s2, 7
s_lshr_b32 s8, s2, 3
v_readfirstlane_b32 s{sWV}, v{vT}
s_lshr_b32 s{sB}, s7, 2
s_bfe_u32 s9, s7, 0x10001
s_lshl_b32 s9, s9, 3
s_lshr_b32 s{sRB}, s8, 2
s_add_u32 s{sRB}, s{sRB}, s9
s_and_b32 s9, s7, 1
s_lshl_b32 s9, s9, 2
s_and_b32 s{sPAIR}, s8, 3
s_add_u32 s{sPAIR}, s{sPAIR}, s9""")
    p(f"v_lshrrev_b32 v{vT}, 3, v{vL}\nv_and_b32 v{vT+1}, 7, v{vL}\nv_lshrrev_b32 v{vT+2}, 4, v{vL}")
    p(f"s_mul_i32 s7, s{sWV}, {32*896}\ns_movk_i32 s8, 896")
    for i in range(4):
        p(f"""v_add_u32 v{vT+3}, {4*i}, v{vT+2}
v_and_b32 v{vT+3}, 7, v{vT+3}
v_xor_b32 v{vT+3}, v{vT+3}, v{vT+1}
v_lshlrev_b32 v{vT+3}, 4, v{vT+3}
v_mad_u32_u24 v{vT+3}, v{vT}, s8, v{vT+3}
v_add_u32 v{vT+3}, s7, v{vT+3}
v_add_u32 v{vXD+i}, {8*i*896 - i*1024}, v{vT+3}""")
    p(f"s_mul_i32 s7, s{sWV}, 48\ns_movk_i32 s8, 171\ns_movk_i32 s9, 2688\ns_movk_i32 s10, 896")
    for i in range(6):
        p(f"""v_add3_u32 v{vT+3}, v{vT}, s7, {8*i}
v_mul_u32_u24 v{vT+4}, s8, v{vT+3}
v_lshrrev_b32 v{vT+4}, 9, v{vT+4}
v_mul_u32_u24 v{vT+5}, 3, v{vT+4}
v_sub_u32 v{vT+3}, v{vT+3}, v{vT+5}
v_mul_u32_u24 v{vT+3}, s10, v{vT+3}
v_mad_u32_u24 v{vT+3}, v{vT+4}, s9, v{vT+3}
v_lshlrev_b32 v{vT+4}, 1, v{vT+4}
v_and_b32 v{vT+4}, 4, v{vT+4}
v_xor_b32 v{vT+4}, v{vT+4}, v{vT+1}
v_lshl_add_u32 v{vT+3}, v{vT+4}, 4, v{vT+3}
v_subrev_u32 v{vWD+i}, {(i%4)*1024}, v{vT+3}""")
    p("s_waitcnt lgkmcnt(0)")
    p(f"s_cmp_eq_u32 s{sB}, 0\ns_cselect_b64 s[8:9], s[16:17], s[22:23]\ns_cselect_b64 s[10:11], s[18:19], s[24:25]")
    srd(p, X, 8, X_BYTES); srd(p, W, 10, W_BYTES); srd(p, WS, 34, WS_USED); srd(p, WP, 26, WPHI_BYTES)
    p(f"""s_mul_i32 s{sXO}, s{sRB}, {128*896}
s_mul_i32 s{sWO}, s{sPAIR}, 112
s_lshl_b32 s{sM0X}, s{sWV}, 12
s_mul_i32 s{sM0W}, s{sWV}, 6144
s_add_u32 s{sM0W}, s{sM0W}, 16384
s_mov_b32 s{sDS}, 0""")
    def dma():
        p(f"s_add_u32 m0, s{sDS}, s{sM0X}\ns_add_u32 s{sT}, s{sDS}, s{sM0W}")
        for i in range(4):
            p(f"buffer_load_dwordx4 v{vXD+i}, s[{X}:{X+3}], s{sXO} offen offset:{i*1024} lds")
        p(f"s_mov_b32 m0, s{sT}\ns_add_u32 s{sT}, s{sT}, 4096")
        for i in range(4):
            p(f"buffer_load_dwordx4 v{vWD+i}, s[{W}:{W+3}], s{sWO} offen offset:{i*1024} lds")
        p(f"s_mov_b32 m0, s{sT}\ns_add_u32 s{sXO}, s{sXO}, 128")
        for i in range(4, 6):
            p(f"buffer_load_dwordx4 v{vWD+i}, s[{W}:{W+3}], s{sWO} offen offset:{(i%4)*1024} lds")
        p(f"s_add_u32 s{sWO}, s{sWO}, {64*2688}\ns_add_u32 s{sDS}, s{sDS}, {SLOT}\ns_cmp_ge_u32 s{sDS}, {4*SLOT}\ns_cselect_b32 s{sDS}, 0, s{sDS}")
    for s in range(4): dma()
    p(f"""s_and_b32 s7, s{sWV}, 1
s_lshr_b32 s8, s{sWV}, 1
s_lshl_b32 s{sH}, s{sPAIR}, 1
s_add_u32 s{sH}, s{sH}, s8
s_lshl_b32 s7, s7, 13
s_mul_i32 s8, s8, 56
v_and_b32 v{vT}, 31, v{vL}
v_lshrrev_b32 v{vT+1}, 5, v{vL}
v_bfe_u32 v{vT+2}, v{vL}, 1, 3
v_xor_b32 v{vT+2}, v{vT+2}, v{vT+1}
v_lshlrev_b32 v{vT+2}, 4, v{vT+2}
v_lshl_add_u32 v{vT+3}, v{vT}, 7, s7""")
    for kk in range(4):
        p(f"v_xor_b32 v{vT+4}, {32*kk}, v{vT+2}\nv_add_u32 v{vXA0+kk}, v{vT+3}, v{vT+4}")
    p(f"""v_bfe_u32 v{vT+2}, v{vL}, 2, 2
v_lshl_add_u32 v{vT+3}, v{vT+1}, 3, v{vT+2}
s_movk_i32 s9, 384
v_mul_u32_u24 v{vT+3}, s9, v{vT+3}
v_bfe_u32 v{vT+4}, v{vL}, 4, 1
v_lshlrev_b32 v{vT+4}, 5, v{vT+4}
v_and_b32 v{vT+5}, 3, v{vL}
v_lshl_add_u32 v{vT+4}, v{vT+5}, 3, v{vT+4}
v_add_u32 v{vT+4}, s8, v{vT+4}
v_lshlrev_b32 v{vT+2}, 5, v{vT+2}
v_and_b32 v{vT+2}, 64, v{vT+2}
v_xor_b32 v{vT+4}, v{vT+4}, v{vT+2}
v_add_u32 v{vT+3}, v{vT+3}, v{vT+4}
v_add_u32 v{vWA0}, 16384, v{vT+3}
s_mov_b32 s{sUP}, 0
s_mov_b32 s{sUP+1}, -1""")
    p(f"s_cmp_eq_u32 s{sB}, 0\ns_cbranch_scc1 k1_nophi")
    p(f"""v_add_u32 v{vT+2}, -4, v{vT}
v_cmp_gt_u32 vcc, 28, v{vT}
s_movk_i32 s9, 224
s_mul_i32 s7, s{sH}, 1568
v_cndmask_b32 v{vT+2}, v{vT+2}, v{vT}, vcc
v_lshlrev_b32 v{vT+2}, 1, v{vT+2}
v_mad_u32_u24 v{vT+2}, v{vT+1}, s9, v{vT+2}
v_lshlrev_b32 v{vT+3}, 20, v{vT+1}
v_add_u32 v{vT+3}, v{vT+3}, v{vT+2}""")
    for t in range(2):
        for jj in range(8):
            d = 16 * t + 8 * (jj >> 2) + (jj & 3)
            va = vT + 3 if (t == 1 and jj >= 4) else vT + 2
            p(f"buffer_load_ushort v{WPH+8*t+jj}, v{va}, s[{WP}:{WP+3}], s7 offen offset:{d*56}")
    p("s_waitcnt vmcnt(46)\ns_branch k1_go")
    p.label("k1_nophi")
    p("s_waitcnt vmcnt(30)")
    p.label("k1_go")
    for r in range(AQ, AQ + 96): p(f"v_mov_b32 v{r}, 0")
    p(f"s_mov_b32 s{sRS}, 0\ns_mov_b32 s{sCNT}, 0")
    for kk in range(4): p(f"v_mov_b32 v{vXA+kk}, v{vXA0+kk}")
    p(f"v_mov_b32 v{vWA}, v{vWA0}")
    p("s_barrier")
    def reads(kk, st):
        for a in range(2):
            p(f"ds_read_b128 {vr(XF[st]+4*a,4)}, v{vXA+kk} offset:{4096*a}")
        for seg in range(3):
            for x in range(2):
                p(f"ds_read_b64_tr_b16 {vr(WF[st]+4*seg+2*x,2)}, v{vWA} offset:{(16*kk+4*x)*384+seg*128}")
    def mfmas(st):
        for a in range(2):
            xf = vr(XF[st] + 4 * a, 4)
            p(f"{MFMA} {vr(AQ+16*a,16)}, {vr(WF[st],4)}, {xf}, {vr(AQ+16*a,16)}")
            p(f"{MFMA} {vr(AK+16*a,16)}, {vr(WF[st]+4,4)}, {xf}, {vr(AK+16*a,16)}")
            p(f"{MFMA} {vr(AV+16*a,16)}, {xf}, {vr(WF[st]+8,4)}, {vr(AV+16*a,16)}")
    reads(0, 0)
    p(".p2align 4")
    p.label("k1_loop")
    for kk in range(3):
        reads(kk + 1, (kk + 1) & 1)
        p("s_waitcnt lgkmcnt(8)")
        mfmas(kk & 1)
    p(f"""s_add_u32 s{sRS}, s{sRS}, {SLOT}
s_cmp_ge_u32 s{sRS}, {4*SLOT}
s_cselect_b32 s{sRS}, 0, s{sRS}
s_add_u32 s{sCNT}, s{sCNT}, 1
s_cmp_ge_u32 s{sCNT}, 4
s_cselect_b32 s{sXO}, 0x7fff0000, s{sXO}
s_cselect_b32 s{sWO}, 0x7fff0000, s{sWO}""")
    for kk in range(4): p(f"v_add_u32 v{vXA+kk}, s{sRS}, v{vXA0+kk}")
    p(f"v_add_u32 v{vWA}, s{sRS}, v{vWA0}")
    p("s_waitcnt vmcnt(20) lgkmcnt(0)\ns_barrier")
    reads(0, 0)
    mfmas(1)
    dma()
    p(f"s_cmp_lt_u32 s{sCNT}, 7\ns_cbranch_scc1 k1_loop")
    p(f"""s_and_b32 s7, s{sWV}, 1
s_lshl_b32 s8, s{sRB}, 2
s_lshl_b32 s7, s7, 1
s_add_u32 s8, s8, s7
s_lshl_b32 s9, s{sH}, 6
s_add_u32 s8, s8, s9
v_lshlrev_b32 v{vT}, 4, v{vL}
v_and_b32 v{vT+1}, 31, v{vL}
v_mov_b32 v{vT+2}, 0x3f803f80
v_cmp_eq_u32 vcc, 28, v{vT+1}
s_mov_b32 s12, 0xf0000000
s_mov_b32 s13, 0xf0000000
v_cndmask_b32 v{vT+2}, 0, v{vT+2}, vcc
s_waitcnt lgkmcnt(0)
s_cmp_eq_u32 s{sB}, 0
s_cbranch_scc0 k1_epiB""")
    PKQ, PKK, PKV = 28, 44, 172
    def pack(dst, acc, scale):
        for j in range(8):
            if scale is not None:
                p(f"v_mul_f32 v{acc+2*j}, s{scale}, v{acc+2*j}\nv_mul_f32 v{acc+2*j+1}, s{scale}, v{acc+2*j+1}")
            p(f"v_cvt_pk_bf16_f32 v{dst+j}, v{acc+2*j}, v{acc+2*j+1}")
    def fixV():
        p("s_mov_b64 exec, s[12:13]")
        for j in range(16): p(f"v_mov_b32 v{PKV+j}, v{vT+2}")
        p("s_mov_b64 exec, -1")
    p(f"s_mov_b32 s14, {f32(LOG2E / math.sqrt(28.0))}\ns_lshl_b32 s10, s8, 11\ns_lshl_b32 s11, s8, 12\ns_add_u32 s11, s11, {KV_OFF}")
    for a in range(2): pack(PKQ + 8 * a, AQ + 16 * a, 14)
    for a in range(2): pack(PKK + 8 * a, AK + 16 * a, None)
    for a in range(2): pack(PKV + 8 * a, AV + 16 * a, None)
    fixV()
    p(f"s_mov_b64 exec, {sr(sUP,2)}")
    for a in range(2):
        p(f"v_mov_b32 v{PKQ+8*a+6}, 0\nv_mov_b32 v{PKQ+8*a+7}, 0\nv_mov_b32 v{PKK+8*a+6}, 0x3f80\nv_mov_b32 v{PKK+8*a+7}, 0")
    p("s_mov_b64 exec, -1")
    for a in range(2):
        for t in range(2):
            p(f"buffer_store_dwordx4 {vr(PKQ+8*a+4*t,4)}, v{vT}, s[{WS}:{WS+3}], s10 offen offset:{a*2048+t*1024}")
    for a in range(2):
        for t in range(2):
            p(f"buffer_store_dwordx4 {vr(PKK+8*a+4*t,4)}, v{vT}, s[{WS}:{WS+3}], s11 offen offset:{t*1024}")
            p(f"buffer_store_dwordx4 {vr(PKV+8*a+4*t,4)}, v{vT}, s[{WS}:{WS+3}], s11 offen offset:{2048+t*1024}")
        if a == 0: p("s_add_u32 s11, s11, 4096")
    p("s_endpgm")
    p.label("k1_epiB")
    p(f"s_mov_b32 s14, {f32(LOG2E)}\ns_lshl_b32 s11, s8, 12\ns_add_u32 s11, s11, {PQ_OFF}")
    for j in range(8): p(f"v_lshl_or_b32 v{WPH+j}, v{WPH+2*j+1}, 16, v{WPH+2*j}")
    for a in range(2): pack(PKK + 8 * a, AK + 16 * a, 14)
    for a in range(2): pack(PKQ + 8 * a, AQ + 16 * a, 14)
    for a in range(2):
        p(f"{MFMA} {vr(AK+16*a,16)}, {vr(WPH,4)}, {vr(PKK+8*a,4)}, 0")
        p(f"{MFMA} {vr(AK+16*a,16)}, {vr(WPH+4,4)}, {vr(PKK+8*a+4,4)}, {vr(AK+16*a,16)}")
    for a in range(2): pack(PKV + 8 * a, AV + 16 * a, None)
    for a in range(2):
        p(f"{MFMA} {vr(AQ+16*a,16)}, {vr(WPH,4)}, {vr(PKQ+8*a,4)}, 0")
        p(f"{MFMA} {vr(AQ+16*a,16)}, {vr(WPH+4,4)}, {vr(PKQ+8*a+4,4)}, {vr(AQ+16*a,16)}")
    fixV()
    p("s_waitcnt vmcnt(0)\ns_barrier")
    TMP = 188
    OPM = 212
    KVA = AV
    PF = 28
    vWR, vRD = vT + 3, vT + 4
    p(f"""s_mul_i32 s7, s{sWV}, 8704
s_movk_i32 s9, 136
v_lshrrev_b32 v{vT+5}, 5, v{vL}
v_mul_u32_u24 v{vWR}, s9, v{vT+1}
v_add_u32 v{vWR}, s7, v{vWR}
v_lshl_add_u32 v{vWR}, v{vT+5}, 3, v{vWR}
v_bfe_u32 v{vRD}, v{vL}, 2, 2
v_lshl_add_u32 v{vRD}, v{vT+5}, 2, v{vRD}
v_mul_u32_u24 v{vRD}, s9, v{vRD}
v_add_u32 v{vRD}, s7, v{vRD}
v_bfe_u32 v{vT+5}, v{vL}, 4, 1
v_lshl_add_u32 v{vRD}, v{vT+5}, 5, v{vRD}
v_and_b32 v{vT+5}, 3, v{vL}
v_lshl_add_u32 v{vRD}, v{vT+5}, 3, v{vRD}""")
    for a in range(2):
        softmax_pm(p, AK + 16 * a, OPM, OPM + 8, TMP, sUP)
        for sg in range(2):
            for g in range(4):
                p(f"ds_write_b64 v{vWR}, {vr(OPM+8*sg+2*g,2)} offset:{a*4352+sg*64+g*16}")
    p("s_waitcnt lgkmcnt(0)")
    PFb = [28, 44]
    for a in range(2):
        for sg in range(2):
            for u in range(2):
                for x in range(2):
                    p(f"ds_read_b64_tr_b16 {vr(PFb[a]+8*sg+4*u+2*x,2)}, v{vRD} offset:{a*4352+(16*u+8*x)*136+sg*64}")
    softmax_pm(p, AQ, OPM, OPM + 8, TMP, sUP)
    for f in range(4):
        p(f"buffer_store_dwordx4 {vr(OPM+4*f,4)}, v{vT}, s[{WS}:{WS+3}], s11 offen offset:{f*1024}")
    p("s_add_u32 s11, s11, 4096\ns_waitcnt lgkmcnt(0)")
    for a in range(2):
        for u in range(2):
            for sg in range(2):
                c = "0" if (a == 0 and u == 0) else vr(KVA + 16 * sg, 16)
                p(f"{MFMA} {vr(KVA+16*sg,16)}, {vr(PFb[a]+8*sg+4*u,4)}, {vr(PKV+8*a+4*u,4)}, {c}")
    OPM2 = 228
    softmax_pm(p, AQ + 16, OPM2, OPM2 + 8, TMP, sUP)
    for f in range(4):
        p(f"buffer_store_dwordx4 {vr(OPM2+4*f,4)}, v{vT}, s[{WS}:{WS+3}], s11 offen offset:{f*1024}")
    p(f"""s_lshl_b32 s7, s{sWV}, 12
s_add_u32 s7, s7, 40960
s_xor_b32 s9, s7, 4096
v_add_u32 v{vWR}, s7, v{vT}
v_add_u32 v{vRD}, s9, v{vT}
s_and_b32 s7, s{sWV}, 1
s_lshl_b32 s9, s{sH}, 4
s_add_u32 s9, s9, s{sRB}
s_lshl_b32 s9, s9, 1
s_add_u32 s9, s9, s7
s_lshl_b32 s9, s9, 12
s_add_u32 s9, s9, {KP_OFF}
s_cmp_eq_u32 s7, 0
s_cbranch_scc1 k1_x0""")
    for sel, lab in ((1, None), (0, "k1_x0")):
        if lab: p.label(lab)
        keep, send = KVA + 16 * sel, KVA + 16 * (1 - sel)
        for q in range(4): p(f"ds_write_b128 v{vWR}, {vr(send+4*q,4)} offset:{q*1024}")
        p("s_waitcnt lgkmcnt(0)\ns_barrier")
        for q in range(4): p(f"ds_read_b128 {vr(TMP+4*q,4)}, v{vRD} offset:{q*1024}")
        for q in range(4):
            p(f"s_waitcnt lgkmcnt({3-q})")
            for i in range(4): p(f"v_add_f32 v{keep+4*q+i}, v{keep+4*q+i}, v{TMP+4*q+i}")
            p(f"buffer_store_dwordx4 {vr(keep+4*q,4)}, v{vT}, s[{WS}:{WS+3}], s9 offen offset:{q*1024}")
        p("s_endpgm")
    p.label("k1_end")
    p("s_endpgm")
    return p

def k2():
    p = Prog()
    SLOT = 32768; NS = 4
    sH, sQB, sWV, sTILE, sHALF = 3, 4, 5, 6, 7
    WS = 36
    sKO, sDS, sRS, sCNT, sT, sUP, sM0 = 40, 41, 42, 43, 44, 46, 48
    vL16, vRB, vCUR, vNXT, vTHR, vNM = 1, 2, 3, 4, 5, 6
    vT = 8
    S = [16, 32]; O = 48; K = 64; V0 = [72, 76]; V1 = 80; Q = 84; P = 92; PH = 100
    p("s_cmp_ge_u32 s2, 256\ns_cbranch_scc1 k2_end")
    p("s_load_dwordx2 s[34:35], s[0:1], 72")
    p(f"""v_lshrrev_b32 v{vT}, 6, v0
v_and_b32 v{vL16}, 63, v0
s_and_b32 s8, s2, 7
s_bfe_u32 s9, s2, 0x10003
v_readfirstlane_b32 s{sWV}, v{vT}
s_lshl_b32 s{sH}, s8, 1
s_add_u32 s{sH}, s{sH}, s9
s_lshr_b32 s{sQB}, s2, 4
v_lshlrev_b32 v{vL16}, 4, v{vL16}
s_and_b32 s8, s{sWV}, 3
s_lshr_b32 s{sHALF}, s{sWV}, 2
s_lshl_b32 s{sTILE}, s{sQB}, 2
s_add_u32 s{sTILE}, s{sTILE}, s8
s_lshl_b32 s9, s{sH}, 6
s_lshl_b32 s10, s{sHALF}, 5
s_add_u32 s10, s10, s8
s_add_u32 s10, s10, s9
s_lshl_b32 s{sKO}, s10, 12
s_add_u32 s{sKO}, s{sKO}, {KV_OFF}
s_lshl_b32 s{sM0}, s{sWV}, 12
s_mov_b32 s{sDS}, 0
s_add_u32 s9, s9, s{sTILE}
s_lshl_b32 s10, s9, 11
s_lshl_b32 s11, s9, 12
s_add_u32 s11, s11, {PQ_OFF}
s_lshl_b32 s12, s{sH}, 17
s_lshl_b32 s13, s{sWV}, 10
s_add_u32 s12, s12, s13
s_add_u32 s12, s12, {KP_OFF}
s_mov_b32 s{sUP}, 0
s_mov_b32 s{sUP+1}, -1
s_waitcnt lgkmcnt(0)""")
    srd(p, WS, 34, WS_USED)
    W4 = f"s[{WS}:{WS+3}]"
    def dma():
        p(f"s_add_u32 m0, s{sDS}, s{sM0}\ns_add_u32 s{sDS}, s{sDS}, {SLOT}")
        for f in range(4):
            p(f"buffer_load_dwordx4 v{vL16}, {W4}, s{sKO} offen offset:{f*1024} lds")
        p(f"s_add_u32 s{sKO}, s{sKO}, 16384\ns_and_b32 s{sDS}, s{sDS}, {NS*SLOT-1}")
    for r in range(16):
        p(f"buffer_load_dwordx4 {vr(16+4*r,4)}, v{vL16}, {W4}, s12 offen\ns_add_u32 s12, s12, 8192")
    for f in range(4):
        p(f"buffer_load_dwordx4 {vr(PH+4*f,4)}, v{vL16}, {W4}, s11 offen offset:{f*1024}")
    for t in range(2):
        p(f"buffer_load_dwordx4 {vr(Q+4*t,4)}, v{vL16}, {W4}, s10 offen offset:{t*1024}")
    for s in range(3): dma()
    SJ = 3 * SLOT
    p(f"""s_lshr_b32 s8, s{sWV}, 1
s_lshl_b32 s8, s8, 10
s_and_b32 s9, s{sWV}, 1
s_lshl_b32 s9, s9, 3
s_add_u32 s8, s8, s9
s_add_u32 s8, s8, {SJ}
v_add_u32 v{vT}, s8, v{vL16}
v_add_u32 v{vT+1}, {SJ}, v{vL16}
s_lshl_b32 s8, s{sHALF}, 14
v_add_u32 v{vRB}, s8, v{vL16}
v_mov_b32 v{vTHR}, 0x7f800000
v_mov_b32 v{vT+2}, {f32(2.0**60)}
v_cndmask_b32 v{vTHR}, v{vTHR}, v{vT+2}, {sr(sUP,2)}""")
    for r in range(1, 16):
        p(f"s_waitcnt vmcnt({18+15-r})")
        for i in range(4): p(f"v_add_f32 v{16+i}, v{16+i}, v{16+4*r+i}")
    p(f"v_cvt_pk_bf16_f32 v16, v16, v17\nv_cvt_pk_bf16_f32 v17, v18, v19\nds_write_b64 v{vT}, v[16:17]")
    p("s_waitcnt lgkmcnt(0)\ns_barrier")
    p(f"s_cmp_lg_u32 s{sHALF}, 0\ns_cbranch_scc1 k2_nosj")
    for f in range(4): p(f"ds_read_b128 {vr(16+4*f,4)}, v{vT+1} offset:{f*1024}")
    p(f"""s_lshl_b32 s8, s{sTILE}, 4
s_add_u32 s8, s8, s{sH}
s_lshl_b32 s8, s8, 11
s_add_u32 s8, s8, {O_OFF + 2*MB}
s_waitcnt vmcnt(14)""")
    for f in range(4):
        p(f"s_waitcnt lgkmcnt({3-f})")
        p(f"{MFMA} v[32:47], {vr(16+4*f,4)}, {vr(PH+4*f,4)}, {'0' if f == 0 else 'v[32:47]'}")
    p(f"s_nop 11\nv_mov_b32 v{vT+2}, v44\nv_mov_b32 v{vT+3}, v44\ns_nop 1\nv_permlane32_swap_b32 v{vT+2}, v{vT+3}\ns_nop 0")
    p(f"v_add_f32 v{vT+3}, {f32(1e-6)}, v{vT+3}\nv_rcp_f32 v{vT+3}, v{vT+3}\ns_nop 0")
    for j in range(16): p(f"v_mul_f32 v{32+j}, v{32+j}, v{vT+3}")
    for j in range(8): p(f"v_cvt_pk_bf16_f32 v{16+j}, v{32+2*j}, v{33+2*j}")
    p(f"v_cndmask_b32 v22, v22, 0, {sr(sUP,2)}\nv_cndmask_b32 v23, v23, 0, {sr(sUP,2)}")
    for t in range(2): p(f"buffer_store_dwordx4 {vr(16+4*t,4)}, v{vL16}, {W4}, s8 offen offset:{t*1024}")
    p("s_waitcnt vmcnt(10)\ns_branch k2_sjdone")
    p.label("k2_nosj")
    p("s_waitcnt vmcnt(8)")
    p.label("k2_sjdone")
    p("s_barrier")
    p(f"ds_read_b128 {vr(K,4)}, v{vRB}\nds_read_b128 {vr(K+4,4)}, v{vRB} offset:1024")
    p(f"ds_read_b128 {vr(V0[0],4)}, v{vRB} offset:2048")
    for j in range(16): p(f"v_mov_b32 v{O+j}, 0")
    for j in range(4): p(f"v_mov_b32 v{V1+j}, 0\nv_mov_b32 v{P+4+j}, 0")
    p(f"v_mov_b32 v{vCUR}, v{vRB}\nv_add_u32 v{vNXT}, {SLOT}, v{vRB}\ns_mov_b32 s{sRS}, {SLOT}\ns_mov_b32 s{sCNT}, 0")
    p("s_waitcnt lgkmcnt(1)")
    p(f"{MFMA} {vr(S[0],16)}, {vr(K,4)}, {vr(Q,4)}, 0\n{MFMA} {vr(S[0],16)}, {vr(K+4,4)}, {vr(Q+4,4)}, {vr(S[0],16)}")
    p(f"ds_read_b128 {vr(K,4)}, v{vRB} offset:4096\nds_read_b128 {vr(K+4,4)}, v{vRB} offset:5120\ns_nop 9")
    p(f"v_max3_f32 v{vT}, v{S[0]}, v{S[0]+1}, v{S[0]+2}")
    for j in range(3, 15, 2): p(f"v_max3_f32 v{vT}, v{vT}, v{S[0]+j}, v{S[0]+j+1}")
    p(f"v_max_f32 v{vT}, v{vT}, v{S[0]+15}")
    xhalf(p, "v_max_f32", vT, vT + 1)
    p(f"v_cvt_pk_bf16_f32 v{vT}, -v{vT}, 0\nv_lshlrev_b32 v{vNM}, 16, v{vT}\nv_cndmask_b32 v{Q+6}, v{Q+6}, v{vT}, {sr(sUP,2)}")
    for j in range(16): p(f"v_add_f32 v{S[0]+j}, v{S[0]+j}, v{vNM}")
    p(".p2align 4")
    p.label("k2_loop")
    for j in range(4):
        Sc, Sn = S[j & 1], S[(j + 1) & 1]
        e = lambda i: p(f"v_exp_f32 v{Sc+i}, v{Sc+i}")
        c = lambda i: p(f"v_cvt_pk_bf16_f32 v{P+i}, v{Sc+2*i}, v{Sc+2*i+1}")
        e(0); e(1)
        p("s_waitcnt lgkmcnt(0)")
        p(f"{MFMA} {vr(O,16)}, {vr(V1,4)}, {vr(P+4,4)}, {vr(O,16)}")
        p(f"ds_read_b128 {vr(V1,4)}, v{vCUR} offset:{j*4096+3072}")
        e(2); e(3); c(0); e(4); c(1); e(5)
        p(f"{MFMA} {vr(Sn,16)}, {vr(K,4)}, {vr(Q,4)}, 0")
        e(6); e(7); c(2); e(8); c(3); e(9)
        p(f"{MFMA} {vr(Sn,16)}, {vr(K+4,4)}, {vr(Q+4,4)}, {vr(Sn,16)}")
        if j == 2:
            p(f"s_add_u32 s{sCNT}, s{sCNT}, 1\ns_cmp_ge_u32 s{sCNT}, 6\ns_cselect_b32 s{sKO}, 0x7fff0000, s{sKO}")
            p("s_waitcnt vmcnt(4)\ns_barrier")
            dma()
        ka, ko = (vCUR, (j + 2) * 4096) if j < 2 else (vNXT, (j - 2) * 4096)
        va, vo = (vCUR, (j + 1) * 4096) if j < 3 else (vNXT, 0)
        p(f"ds_read_b128 {vr(K,4)}, v{ka} offset:{ko}\nds_read_b128 {vr(K+4,4)}, v{ka} offset:{ko+1024}")
        p(f"ds_read_b128 {vr(V0[(j+1)&1],4)}, v{va} offset:{vo+2048}")
        e(10); e(11); c(4); e(12); c(5); e(13)
        if j == 3: p(f"v_cmp_gt_f32 vcc, v{O+12}, v{vTHR}")
        p(f"{MFMA} {vr(O,16)}, {vr(V0[j&1],4)}, {vr(P,4)}, {vr(O,16)}")
        if j == 3:
            p(f"v_mov_b32 v{vCUR}, v{vNXT}\ns_add_u32 s{sRS}, s{sRS}, {SLOT}\ns_and_b32 s{sRS}, s{sRS}, {NS*SLOT-1}\nv_add_u32 v{vNXT}, s{sRS}, v{vRB}")
        e(14); e(15); c(6); c(7)
    p("s_cbranch_vccnz k2_rescale")
    p.label("k2_cont")
    p(f"s_cmp_lt_u32 s{sCNT}, 8\ns_cbranch_scc1 k2_loop")
    p("s_waitcnt lgkmcnt(0)")
    p(f"{MFMA} {vr(O,16)}, {vr(V1,4)}, {vr(P+4,4)}, {vr(O,16)}")
    p(f"""s_lshl_b32 s8, s{sWV}, 12
s_xor_b32 s9, s8, 16384
v_add_u32 v{vT}, s8, v{vL16}
v_add_u32 v{vT+1}, s9, v{vL16}
s_lshl_b32 s8, s{sTILE}, 4
s_add_u32 s8, s8, s{sH}
s_lshl_b32 s8, s8, 11
s_lshl_b32 s9, s{sHALF}, 10
s_add_u32 s8, s8, s9
s_add_u32 s8, s8, {O_OFF}
s_waitcnt vmcnt(0)
s_barrier""")
    p(f"v_maximum3_f32 v{vT+2}, abs(v{O}), abs(v{O+1}), abs(v{O+2})")
    for j in range(3, 15, 2): p(f"v_maximum3_f32 v{vT+2}, v{vT+2}, abs(v{O+j}), abs(v{O+j+1})")
    p(f"v_maximum3_f32 v{vT+2}, v{vT+2}, abs(v{O+15}), abs(v{O+15})")
    p(f"v_mov_b32 v{vT+4}, v{O+12}\nv_mov_b32 v{vT+5}, v{O+12}\nv_mul_f32 v{vT+2}, 0, v{vT+2}")
    p(f"v_mov_b32 v{vT+3}, v{vT+2}\nv_permlane32_swap_b32 v{vT+4}, v{vT+5}\ns_nop 0\nv_permlane32_swap_b32 v{vT+2}, v{vT+3}")
    p(f"v_add_f32 v{vT+4}, v{vT+5}, v{vT+2}\nv_add_f32 v{vT+4}, v{vT+4}, v{vT+3}\nv_mov_b32 v{vT+5}, v{vNM}")
    p(f"s_cmp_lg_u32 s{sHALF}, 0\ns_cbranch_scc1 k2_c1")
    for hf, lab in ((0, None), (1, "k2_c1")):
        if lab: p.label(lab)
        keep, send = O + 8 * hf, O + 8 * (1 - hf)
        p(f"ds_write_b128 v{vT}, {vr(send,4)}\nds_write_b128 v{vT}, {vr(send+4,4)} offset:1024\nds_write_b64 v{vT}, {vr(vT+4,2)} offset:2048")
        p("s_waitcnt lgkmcnt(0)\ns_barrier")
        p(f"ds_read_b64 {vr(vT+6,2)}, v{vT+1} offset:2048\nds_read_b128 v[16:19], v{vT+1}\nds_read_b128 v[20:23], v{vT+1} offset:1024")
        p("s_waitcnt lgkmcnt(2)")
        p(f"""v_min_f32 v{vT+2}, v{vT+5}, v{vT+7}
v_sub_f32 v{vT+5}, v{vT+2}, v{vT+5}
v_sub_f32 v{vT+7}, v{vT+2}, v{vT+7}
v_exp_f32 v{vT+5}, v{vT+5}
v_exp_f32 v{vT+7}, v{vT+7}
s_nop 0
v_mul_f32 v{vT+4}, v{vT+4}, v{vT+5}
v_fmac_f32 v{vT+4}, v{vT+6}, v{vT+7}
v_rcp_f32 v{vT+6}, v{vT+4}
v_mov_b32 v{vT+2}, {f32(2.0**-100)}
v_mov_b32 v{vT+3}, {f32(2.0**120)}
v_cmp_nlt_f32 vcc, v{vT+2}, v{vT+4}
v_cmp_nlt_f32 s[10:11], v{vT+4}, v{vT+3}
v_mul_f32 v{vT+5}, v{vT+5}, v{vT+6}
v_mul_f32 v{vT+7}, v{vT+7}, v{vT+6}
s_or_b64 vcc, vcc, s[10:11]
s_cbranch_vccnz k2_slow
s_waitcnt lgkmcnt(0)""")
        for j in range(8): p(f"v_mul_f32 v{16+j}, v{16+j}, v{vT+7}\nv_fmac_f32 v{16+j}, v{keep+j}, v{vT+5}")
        for j in range(4): p(f"v_cvt_pk_bf16_f32 v{16+j}, v{16+2*j}, v{17+2*j}")
        if hf == 1: p(f"v_cndmask_b32 v18, v18, 0, {sr(sUP,2)}\nv_cndmask_b32 v19, v19, 0, {sr(sUP,2)}")
        p(f"buffer_store_dwordx4 v[16:19], v{vL16}, {W4}, s8 offen\ns_endpgm")
    p.label("k2_rescale")
    p("s_waitcnt lgkmcnt(0)")
    p(f"{MFMA} {vr(O,16)}, {vr(V1,4)}, {vr(P+4,4)}, {vr(O,16)}\ns_nop 11")
    p(f"v_mov_b32 v{vT}, v{O+12}\nv_mov_b32 v{vT+1}, v{O+12}")
    for j in range(4): p(f"v_mov_b32 v{P+4+j}, 0")
    p(f"""v_permlane32_swap_b32 v{vT}, v{vT+1}
s_nop 0
v_frexp_exp_i32_f32 v{vT}, v{vT+1}
v_max_i32 v{vT}, 0, v{vT}
v_cvt_f32_i32 v{vT}, v{vT}
v_sub_f32 v{vT}, v{vNM}, v{vT}
v_cvt_pk_bf16_f32 v{vT}, v{vT}, 0
v_lshlrev_b32 v{vT+1}, 16, v{vT}
v_cndmask_b32 v{Q+6}, v{Q+6}, v{vT}, {sr(sUP,2)}
v_sub_f32 v{vT}, v{vT+1}, v{vNM}
v_mov_b32 v{vNM}, v{vT+1}
v_exp_f32 v{vT+1}, v{vT}""")
    for j in range(16): p(f"v_add_f32 v{S[0]+j}, v{S[0]+j}, v{vT}")
    for j in range(16): p(f"v_mul_f32 v{O+j}, v{O+j}, v{vT+1}")
    p("s_branch k2_cont")
    p.label("k2_slow")
    p(f"""s_waitcnt lgkmcnt(0)
s_lshl_b32 s{sKO}, s{sH}, 18
s_add_u32 s{sKO}, s{sKO}, {KV_OFF}
s_mov_b32 s{sCNT}, 0
v_cndmask_b32 v{Q+6}, v{Q+6}, 0, {sr(sUP,2)}
v_mov_b32 v{vNM}, 0xff7fffff""")
    for j in range(16): p(f"v_mov_b32 v{O+j}, 0")
    p.label("k2_sloop")
    for f in range(4): p(f"buffer_load_dwordx4 {vr(K+4*f,4)}, v{vL16}, {W4}, s{sKO} offen offset:{f*1024}")
    p(f"s_add_u32 s{sKO}, s{sKO}, 4096\ns_add_u32 s{sCNT}, s{sCNT}, 1\ns_waitcnt vmcnt(0)")
    p(f"{MFMA} {vr(S[0],16)}, {vr(K,4)}, {vr(Q,4)}, 0\n{MFMA} {vr(S[0],16)}, {vr(K+4,4)}, {vr(Q+4,4)}, {vr(S[0],16)}\ns_nop 11")
    p(f"v_max3_f32 v{vT}, v{S[0]}, v{S[0]+1}, v{vNM}")
    for j in range(2, 16, 2): p(f"v_max3_f32 v{vT}, v{vT}, v{S[0]+j}, v{S[0]+j+1}")
    xhalf(p, "v_max_f32", vT, vT + 1)
    p(f"v_sub_f32 v{vT+1}, v{vNM}, v{vT}\nv_mov_b32 v{vNM}, v{vT}\nv_exp_f32 v{vT+1}, v{vT+1}")
    for j in range(16): p(f"v_sub_f32 v{S[0]+j}, v{S[0]+j}, v{vT}")
    for j in range(16): p(f"v_exp_f32 v{S[0]+j}, v{S[0]+j}")
    for j in range(16): p(f"v_mul_f32 v{O+j}, v{O+j}, v{vT+1}")
    for j in range(8): p(f"v_cvt_pk_bf16_f32 v{P+j}, v{S[0]+2*j}, v{S[0]+2*j+1}")
    p("s_nop 1")
    p(f"{MFMA} {vr(O,16)}, {vr(K+8,4)}, {vr(P,4)}, {vr(O,16)}\n{MFMA} {vr(O,16)}, {vr(K+12,4)}, {vr(P+4,4)}, {vr(O,16)}")
    p(f"s_cmp_lt_u32 s{sCNT}, 64\ns_cbranch_scc1 k2_sloop")
    p(f"s_nop 11\nv_mov_b32 v{vT}, v{O+12}\nv_mov_b32 v{vT+1}, v{O+12}\ns_nop 1\nv_permlane32_swap_b32 v{vT}, v{vT+1}\ns_nop 0\nv_rcp_f32 v{vT+1}, v{vT+1}\ns_nop 0")
    for j in range(16): p(f"v_mul_f32 v{O+j}, v{O+j}, v{vT+1}")
    for j in range(8): p(f"v_cvt_pk_bf16_f32 v{16+j}, v{O+2*j}, v{O+2*j+1}")
    p(f"v_cndmask_b32 v22, v22, 0, {sr(sUP,2)}\nv_cndmask_b32 v23, v23, 0, {sr(sUP,2)}")
    p(f"s_cmp_lg_u32 s{sHALF}, 0\ns_cbranch_scc1 k2_s1")
    p(f"buffer_store_dwordx4 v[16:19], v{vL16}, {W4}, s8 offen\ns_endpgm")
    p.label("k2_s1")
    p(f"buffer_store_dwordx4 v[20:23], v{vL16}, {W4}, s8 offen")
    p.label("k2_end")
    p("s_endpgm")
    return p

def k3():
    p = Prog()
    sB, sRB, sCB, sWV = 3, 4, 5, 6
    WO, WS, OUT = 36, 40, 44
    vL, vT = 1, 2
    vWA, vST = 8, 9
    WF = [12, 28]
    AC = 44
    OF = 76
    p("s_cmp_ge_u32 s2, 224\ns_cbranch_scc1 k3_end")
    load_args(p)
    p(f"""v_lshrrev_b32 v{vT}, 6, v0
v_and_b32 v{vL}, 63, v0
s_and_b32 s7, s2, 7
s_lshr_b32 s8, s2, 3
v_readfirstlane_b32 s{sWV}, v{vT}
s_lshr_b32 s{sB}, s7, 2
s_mul_i32 s9, s8, 37
s_lshr_b32 s9, s9, 8
s_mul_i32 s10, s9, 7
s_sub_u32 s{sCB}, s8, s10
s_and_b32 s7, s7, 3
s_lshl_b32 s7, s7, 2
s_add_u32 s{sRB}, s7, s9
v_lshrrev_b32 v{vT}, 3, v{vL}
v_and_b32 v{vT+1}, 7, v{vL}
v_lshlrev_b32 v{vT+2}, 1, v{vT}
v_and_b32 v{vT+2}, 4, v{vT+2}
v_xor_b32 v{vT+1}, v{vT+1}, v{vT+2}
v_lshlrev_b32 v{vT+1}, 4, v{vT+1}
s_movk_i32 s9, 896
v_mad_u32_u24 v{vT}, v{vT}, s9, v{vT+1}
v_lshlrev_b32 v{vT+1}, 4, v{vL}
s_mul_i32 s10, s{sWV}, {15*8*896}
s_lshl_b32 s11, s{sCB}, 7
s_add_u32 s10, s10, s11
s_mul_i32 s11, s{sWV}, {15*1024}
s_lshl_b32 s12, s{sRB}, 2
s_add_u32 s12, s12, s{sWV}
s_lshl_b32 s13, s12, 15
s_lshl_b32 s14, s{sB}, 21
s_add_u32 s13, s13, s14
s_add_u32 s13, s13, {O_OFF}
s_waitcnt lgkmcnt(0)
s_cmp_eq_u32 s{sB}, 0
s_cselect_b64 s[8:9], s[20:21], s[28:29]""")
    srd(p, WO, 8, WO_BYTES); srd(p, WS, 34, WS_USED); srd(p, OUT, 30, OUT_BYTES)
    for i in range(15):
        p(f"s_mov_b32 m0, s11\ns_add_u32 s11, s11, 1024\nbuffer_load_dwordx4 v{vT}, s[{WO}:{WO+3}], s10 offen lds\ns_add_u32 s10, s10, {8*896}")
    for h in range(16):
        for t in range(2):
            p(f"buffer_load_dwordx4 {vr(OF+8*h+4*t,4)}, v{vT+1}, s[{WS}:{WS+3}], s13 offen offset:{(h&1)*2048+t*1024}")
        if h & 1: p("s_add_u32 s13, s13, 4096")
    p(f"""v_lshrrev_b32 v{vT+2}, 5, v{vL}
v_bfe_u32 v{vT+3}, v{vL}, 2, 2
v_lshl_add_u32 v{vT+4}, v{vT+2}, 2, v{vT+3}
v_lshlrev_b32 v{vT+4}, 7, v{vT+4}
v_bfe_u32 v{vT+5}, v{vL}, 4, 1
v_lshl_add_u32 v{vT+4}, v{vT+5}, 5, v{vT+4}
v_and_b32 v{vT+5}, 3, v{vL}
v_lshl_add_u32 v{vT+4}, v{vT+5}, 3, v{vT+4}
v_lshlrev_b32 v{vT+3}, 5, v{vT+3}
v_and_b32 v{vT+3}, 64, v{vT+3}
v_add_u32 v{vWA}, v{vT+4}, v{vT+3}
v_xor_b32 v{vWA+2}, 64, v{vWA}
v_and_b32 v{vT+3}, 31, v{vL}
s_lshl_b32 s12, s12, 5
v_add_u32 v{vT+3}, s12, v{vT+3}
s_movk_i32 s9, 1792
v_mul_u32_u24 v{vT+3}, s9, v{vT+3}
v_lshl_add_u32 v{vST}, v{vT+2}, 4, v{vT+3}
s_mul_i32 s12, s{sB}, 896
s_lshl_b32 s14, s{sCB}, 7
s_add_u32 s12, s12, s14
s_waitcnt vmcnt(32)
s_barrier""")
    def reads(h):
        st = WF[h & 1]
        for t in range(2):
            for ct in range(2):
                for x in range(2):
                    p(f"ds_read_b64_tr_b16 {vr(st+8*t+4*ct+2*x,2)}, v{vWA+2*ct} offset:{(28*h+16*t+8*x)*128}")
    reads(0)
    for h in range(16):
        if h < 15: reads(h + 1)
        p(f"s_waitcnt vmcnt({30-2*h}) lgkmcnt({8 if h < 15 else 0})")
        st = WF[h & 1]
        for t in range(2):
            for ct in range(2):
                c = "0" if (h == 0 and t == 0) else vr(AC + 16 * ct, 16)
                p(f"{MFMA} {vr(AC+16*ct,16)}, {vr(st+8*t+4*ct,4)}, {vr(OF+8*h+4*t,4)}, {c}")
    p("s_nop 10")
    for ct in range(2):
        for j in range(8): p(f"v_cvt_pk_bf16_f32 v{WF[0]+8*ct+j}, v{AC+16*ct+2*j}, v{AC+16*ct+2*j+1}")
    p("s_nop 0")
    for ct in range(2):
        for gp in range(2):
            b = WF[0] + 8 * ct + 4 * gp
            p(f"v_permlane32_swap_b32 v{b}, v{b+2}\nv_permlane32_swap_b32 v{b+1}, v{b+3}")
            p(f"buffer_store_dwordx4 {vr(b,4)}, v{vST}, s[{OUT}:{OUT+3}], s12 offen offset:{ct*64+gp*32}")
    p.label("k3_end")
    p("s_endpgm")
    return p

def desc(name, nv, ns):
    acc = (nv + 3) // 4 * 4
    return f""".amdhsa_kernel {name}
  .amdhsa_next_free_vgpr {nv}
  .amdhsa_next_free_sgpr {ns}
  .amdhsa_accum_offset {acc}
  .amdhsa_group_segment_fixed_size 0
  .amdhsa_kernarg_size 80
  .amdhsa_user_sgpr_count 2
  .amdhsa_user_sgpr_kernarg_segment_ptr 1
  .amdhsa_system_sgpr_workgroup_id_x 1
.end_amdhsa_kernel
"""

def main(out):
    ks = [("qkv_kernel", k1(), 256, 256, 163840), ("attn_kernel", k2(), 256, 512, 131072), ("oproj_kernel", k3(), 224, 256, 61440)]
    hdr = open(f"cdna_kernels/{NAME}.s.ref").read().split("\n")
    lines = [l for l in hdr if l.startswith(";") and "@launch" not in l and "Override launch" not in l and "grid=ceil" not in l]
    lines = [l for l in lines if l.startswith("; Kernarg") or l.startswith(";   offset")]
    s = "\n".join(lines) + "\n"
    for n, p, g, b, lds in ks: s += f"; @launch kernel={n} grid=({g},1,1) block=({b},1,1) lds={lds}\n"
    s += '.amdgcn_target "amdgcn-amd-amdhsa--gfx950"\n.text\n'
    bad = 0
    for n, p, g, b, lds in ks:
        bad += len(p.check())
        s += f".globl {n}\n.p2align 8\n.type {n},@function\n{n}:\n" + p.text()
    s += '.section .rodata,"a"\n'
    for n, p, g, b, lds in ks:
        nv, ns = p.max_regs()
        print(n, "vgpr", nv, "sgpr", ns, "instr", len(p.L))
        s += ".p2align 6\n" + desc(n, nv, max(ns, 16))
    open(out, "w").write(s)
    print("hazards:", bad)

if __name__ == "__main__":
    main(sys.argv[1] if len(sys.argv) > 1 else f"cdna_kernels/{NAME}.s")
```

```python
import sys, math, struct
sys.path.insert(0, "gen")
from asmlib import Prog, vr, sr

NAME = "concat_heads__mha_block__linear_kernel_hedgehog__prompt"
MB = 1 << 20
Q_OFF, KV_OFF, PQ_OFF, KP_OFF, O_OFF, WS_USED = 0, 2 * MB, 6 * MB, 10 * MB, 12 * MB, 16 * MB
X_BYTES, W_BYTES, WO_BYTES, WPHI_BYTES, OUT_BYTES = 2048 * 896, 448 * 2688, 448 * 896, 16 * 1568, 2048 * 1792
LOG2E = 1.4426950408889634
def f32(x): return "0x%08x" % struct.unpack("<I", struct.pack("<f", x))[0]
MFMA = "v_mfma_f32_32x32x16_bf16"

def srd(p, d, base, nbytes):
    p(f"s_mov_b32 s{d}, s{base}\ns_mov_b32 s{d+1}, s{base+1}\ns_mov_b32 s{d+2}, {hex(nbytes)}\ns_mov_b32 s{d+3}, 0x20000")

STAMP = "stamp" in sys.argv[2:]
def stamp(p, i):
    if STAMP: p(f"s_memtime s[{64+2*i}:{65+2*i}]")
def stamp_rt(p, i):
    if STAMP: p(f"s_memrealtime s[{64+2*i}:{65+2*i}]")
def stamp_out(p, kidx, sWV, n=12):
    if not STAMP: return
    p(f"s_waitcnt lgkmcnt(0)\ns_mov_b32 s92, s34\ns_mov_b32 s93, s35\ns_mov_b32 s94, 0x4000000\ns_mov_b32 s95, 0x20000")
    p(f"s_lshl_b32 s90, s2, 4\ns_add_u32 s90, s90, s{sWV}\ns_lshl_b32 s90, s90, 6\ns_add_u32 s90, s90, {32*MB + kidx*MB}\nv_mov_b32 v0, 0")
    for i in range(n):
        p(f"v_mov_b32 v1, s{64+2*i}\nbuffer_store_dword v1, v0, s[92:95], s90 offen offset:{4*i}")

def load_args(p):
    p("s_load_dwordx16 s[16:31], s[0:1], 0\ns_load_dwordx4 s[32:35], s[0:1], 64")

def xhalf(p, op, x, t):
    p(f"v_mov_b32 v{t}, v{x}\ns_nop 1\nv_permlane32_swap_b32 v{x}, v{t}\ns_nop 0\n{op} v{x}, v{x}, v{t}")


OPT = dict(st="", prio=1)
for _a in sys.argv[2:]:
    if "=" in _a:
        _k, _v = _a.split("=", 1); OPT[_k] = _v.replace("+", " ") if _k == "st" else int(_v)
ST = (" " + OPT["st"]) if OPT["st"] else ""

def pk(op, d, a, b, mods=""):
    return f"{op} {vr(d,2)}, {a}, {b} {mods}".rstrip()

def softmax_pm(p, P, OP, OM, T, sUP):
    E = T
    mx, mn, a0, a1, b0, b1, c0, c1, rp, rp2, rm, rm2 = [T + 16 + i for i in range(12)]
    p(f"v_max3_f32 v{mx}, v{P}, v{P+1}, v{P+2}\nv_min3_f32 v{mn}, v{P}, v{P+1}, v{P+2}")
    for j in range(3, 15, 2):
        p(f"v_max3_f32 v{mx}, v{mx}, v{P+j}, v{P+j+1}\nv_min3_f32 v{mn}, v{mn}, v{P+j}, v{P+j+1}")
    p(f"v_max_f32 v{mx}, v{mx}, v{P+15}\nv_min_f32 v{mn}, v{mn}, v{P+15}")
    p(f"v_mov_b32 v{a0}, v{mx}\nv_mov_b32 v{a1}, v{mn}\ns_nop 0")
    p(f"v_permlane32_swap_b32 v{mx}, v{a0}\nv_permlane32_swap_b32 v{mn}, v{a1}\ns_nop 0")
    p(f"v_max_f32 v{mx}, v{mx}, v{a0}\nv_min_f32 v{mn}, v{mn}, v{a1}")
    for j in range(0, 16, 2):
        p(pk("v_pk_add_f32", E + j, vr(mx, 2), vr(P + j, 2), "op_sel:[1,0] op_sel_hi:[1,1] neg_lo:[0,1] neg_hi:[0,1]"))
        p(pk("v_pk_add_f32", P + j, vr(P + j, 2), vr(mx, 2), "op_sel:[0,0] op_sel_hi:[1,0] neg_lo:[0,1] neg_hi:[0,1]"))
    for j in range(16):
        p(f"v_exp_f32 v{E+j}, v{E+j}\nv_exp_f32 v{P+j}, v{P+j}")
    for (B, s, t) in ((E, b0, c0), (P, a0, c0)):
        p(pk("v_pk_add_f32", s, vr(B, 2), vr(B + 2, 2)))
        p(pk("v_pk_add_f32", t, vr(B + 12, 2), vr(B + 14, 2)))
        for j in range(4, 12, 2): p(pk("v_pk_add_f32", s, vr(s, 2), vr(B + j, 2)))
        p(f"v_add_f32 v{t}, v{t}, v{t+1}\nv_add_f32 v{s}, v{s}, v{s+1}\nv_cndmask_b32 v{t}, v{t}, 0, {sr(sUP,2)}\nv_add_f32 v{s}, v{s}, v{t}")
    p(f"v_mov_b32 v{a1}, v{a0}\nv_mov_b32 v{b1}, v{b0}\ns_nop 0")
    p(f"v_permlane32_swap_b32 v{a0}, v{a1}\nv_permlane32_swap_b32 v{b0}, v{b1}\ns_nop 0")
    p(f"v_add_f32 v{a0}, v{a0}, v{a1}\nv_add_f32 v{b0}, v{b0}, v{b1}")
    p(f"v_rcp_f32 v{rp}, v{a0}\nv_rcp_f32 v{rm}, v{b0}\ns_nop 0")
    p(f"v_cndmask_b32 v{rp2}, v{rp}, 0, {sr(sUP,2)}\nv_cndmask_b32 v{rm2}, v{rm}, 0, {sr(sUP,2)}")
    for j in range(0, 16, 2):
        sel = "op_sel:[0,0] op_sel_hi:[1,0]" if j < 12 else "op_sel:[0,1] op_sel_hi:[1,1]"
        p(pk("v_pk_mul_f32", P + j, vr(P + j, 2), vr(rp, 2), sel))
        p(pk("v_pk_mul_f32", E + j, vr(E + j, 2), vr(rm, 2), sel))
    for j in range(8):
        p(f"v_cvt_pk_bf16_f32 v{OP+j}, v{P+2*j}, v{P+2*j+1}\nv_cvt_pk_bf16_f32 v{OM+j}, v{E+2*j}, v{E+2*j+1}")

def k1():
    p = Prog()
    SLOT = 40960
    sB, sRB, sPAIR, sWV = 3, 4, 5, 6
    X, W, WS, WP = 36, 40, 44, 48
    sXO, sWO, sRS, sCNT, sT, sH, sUP = 52, 53, 55, 56, 57, 59, 60
    sM0X, sM0W = 62, 63
    vL, vXD, vWD, vXA0, vWA0, vXA, vWA = 1, 2, 6, 12, 16, 17, 21
    vT = 22
    XF = [28, 36]; WF = [44, 56]
    AQ, AK, AV = 68, 100, 132
    WPH = 164
    p("s_cmp_ge_u32 s2, 256\ns_cbranch_scc1 k1_end")
    stamp(p, 0); stamp_rt(p, 10)
    load_args(p)
    p(f"""v_lshrrev_b32 v{vT}, 6, v0
v_and_b32 v{vL}, 63, v0
s_and_b32 s7, s2, 7
s_lshr_b32 s8, s2, 3
v_readfirstlane_b32 s{sWV}, v{vT}
s_lshr_b32 s{sB}, s7, 2
s_bfe_u32 s9, s7, 0x10001
s_lshl_b32 s9, s9, 3
s_lshr_b32 s{sRB}, s8, 2
s_add_u32 s{sRB}, s{sRB}, s9
s_and_b32 s9, s7, 1
s_lshl_b32 s9, s9, 2
s_and_b32 s{sPAIR}, s8, 3
s_add_u32 s{sPAIR}, s{sPAIR}, s9
s_cmp_lt_u32 s{sWV}, 4
s_cbranch_scc1 k1_compute""")
    p(f"s_sub_u32 s{sWV}, s{sWV}, 4")
    p(f"v_lshrrev_b32 v{vT}, 3, v{vL}\nv_and_b32 v{vT+1}, 7, v{vL}\nv_lshrrev_b32 v{vT+2}, 4, v{vL}")
    p(f"s_mul_i32 s7, s{sWV}, {32*896}\ns_movk_i32 s8, 896\nv_mul_u32_u24 v{vT+4}, s8, v{vT}\nv_add_u32 v{vT+4}, s7, v{vT+4}")
    for i in range(2):
        p(f"""v_xor_b32 v{vT+3}, {4*i}, v{vT+2}
v_xor_b32 v{vT+3}, v{vT+3}, v{vT+1}
v_lshl_add_u32 v{vT+3}, v{vT+3}, 4, v{vT+4}
v_add_u32 v{vXD+i}, {8*i*896 - i*1024}, v{vT+3}
v_add_u32 v{vXD+i+2}, {8*(i+2)*896 - (i+2)*1024}, v{vT+3}""")
    p(f"s_mul_i32 s7, s{sWV}, 48\ns_movk_i32 s8, 171\ns_movk_i32 s9, 2688\ns_movk_i32 s10, 896")
    for i in range(6):
        p(f"""v_add3_u32 v{vT+3}, v{vT}, s7, {8*i}
v_mul_u32_u24 v{vT+4}, s8, v{vT+3}
v_lshrrev_b32 v{vT+4}, 9, v{vT+4}
v_mul_u32_u24 v{vT+5}, 3, v{vT+4}
v_sub_u32 v{vT+3}, v{vT+3}, v{vT+5}
v_mul_u32_u24 v{vT+3}, s10, v{vT+3}
v_mad_u32_u24 v{vT+3}, v{vT+4}, s9, v{vT+3}
v_lshlrev_b32 v{vT+4}, 1, v{vT+4}
v_and_b32 v{vT+4}, 4, v{vT+4}
v_xor_b32 v{vT+4}, v{vT+4}, v{vT+1}
v_lshl_add_u32 v{vT+3}, v{vT+4}, 4, v{vT+3}
v_subrev_u32 v{vWD+i}, {(i%4)*1024}, v{vT+3}""")
    p(f"""s_mul_i32 s{sXO}, s{sRB}, {128*896}
s_mul_i32 s{sWO}, s{sPAIR}, 112
s_lshl_b32 s{sM0X}, s{sWV}, 12
s_mul_i32 s{sM0W}, s{sWV}, 6144
s_add_u32 s{sM0W}, s{sM0W}, 16384
s_cmp_eq_u32 s{sB}, 0
s_waitcnt lgkmcnt(0)
s_cselect_b64 s[8:9], s[16:17], s[22:23]
s_cselect_b64 s[10:11], s[18:19], s[24:25]""")
    srd(p, X, 8, X_BYTES); srd(p, W, 10, W_BYTES)
    def dma(st):
        base = (st % 4) * SLOT
        p(f"s_add_u32 m0, s{sM0X}, {base}\ns_add_u32 s{sT}, s{sM0W}, {base}")
        for i in range(4):
            p(f"buffer_load_dwordx4 v{vXD+i}, s[{X}:{X+3}], s{sXO} offen offset:{i*1024} lds")
        p(f"s_mov_b32 m0, s{sT}\ns_add_u32 s{sT}, s{sT}, 4096")
        for i in range(4):
            p(f"buffer_load_dwordx4 v{vWD+i}, s[{W}:{W+3}], s{sWO} offen offset:{i*1024} lds")
        p(f"s_mov_b32 m0, s{sT}\ns_add_u32 s{sXO}, s{sXO}, 128")
        for i in range(4, 6):
            p(f"buffer_load_dwordx4 v{vWD+i}, s[{W}:{W+3}], s{sWO} offen offset:{(i%4)*1024} lds")
        p(f"s_add_u32 s{sWO}, s{sWO}, {64*2688}")
    for s in range(4): dma(s)
    stamp(p, 1)
    for b, vm in enumerate((30, 20, 20, 20, 20, 10, 0)):
        p(f"s_waitcnt vmcnt({vm})\ns_barrier")
        if b == 0: stamp(p, 2)
        if 1 <= b <= 3: dma(b + 3)
    stamp(p, 3); stamp(p, 6); stamp_rt(p, 11)
    if STAMP: p(f"s_add_u32 s{sWV}, s{sWV}, 4")
    stamp_out(p, 0, sWV)
    p("s_endpgm")
    p.label("k1_compute")
    p(f"""s_and_b32 s7, s{sWV}, 1
s_lshr_b32 s8, s{sWV}, 1
s_lshl_b32 s{sH}, s{sPAIR}, 1
s_add_u32 s{sH}, s{sH}, s8
s_lshl_b32 s7, s7, 13
s_mul_i32 s8, s8, 56
v_and_b32 v{vT}, 31, v{vL}
v_lshrrev_b32 v{vT+1}, 5, v{vL}
v_bfe_u32 v{vT+2}, v{vL}, 1, 3
v_xor_b32 v{vT+2}, v{vT+2}, v{vT+1}
v_lshlrev_b32 v{vT+2}, 4, v{vT+2}
v_lshl_add_u32 v{vT+3}, v{vT}, 7, s7""")
    for kk in range(4):
        p(f"v_xor_b32 v{vT+4}, {32*kk}, v{vT+2}\nv_add_u32 v{vXA0+kk}, v{vT+3}, v{vT+4}")
    p(f"""v_bfe_u32 v{vT+2}, v{vL}, 2, 2
v_lshl_add_u32 v{vT+3}, v{vT+1}, 3, v{vT+2}
s_movk_i32 s9, 384
v_mul_u32_u24 v{vT+3}, s9, v{vT+3}
v_bfe_u32 v{vT+4}, v{vL}, 4, 1
v_lshlrev_b32 v{vT+4}, 5, v{vT+4}
v_and_b32 v{vT+5}, 3, v{vL}
v_lshl_add_u32 v{vT+4}, v{vT+5}, 3, v{vT+4}
v_add_u32 v{vT+4}, s8, v{vT+4}
v_lshlrev_b32 v{vT+2}, 5, v{vT+2}
v_and_b32 v{vT+2}, 64, v{vT+2}
v_xor_b32 v{vT+4}, v{vT+4}, v{vT+2}
v_add_u32 v{vT+3}, v{vT+3}, v{vT+4}
v_add_u32 v{vWA0}, 16384, v{vT+3}
s_mov_b32 s{sUP}, 0
s_mov_b32 s{sUP+1}, -1
s_waitcnt lgkmcnt(0)""")
    srd(p, WS, 34, WS_USED); srd(p, WP, 26, WPHI_BYTES)
    p(f"s_cmp_eq_u32 s{sB}, 0\ns_cbranch_scc1 k1_go")
    p(f"""v_add_u32 v{vT+2}, -4, v{vT}
v_cmp_gt_u32 vcc, 28, v{vT}
s_movk_i32 s9, 224
s_mul_i32 s7, s{sH}, 1568
v_cndmask_b32 v{vT+2}, v{vT+2}, v{vT}, vcc
v_lshlrev_b32 v{vT+2}, 1, v{vT+2}
v_mad_u32_u24 v{vT+2}, v{vT+1}, s9, v{vT+2}
v_lshlrev_b32 v{vT+3}, 20, v{vT+1}
v_add_u32 v{vT+3}, v{vT+3}, v{vT+2}""")
    for t in range(2):
        for jj in range(8):
            d = 16 * t + 8 * (jj >> 2) + (jj & 3)
            va = vT + 3 if (t == 1 and jj >= 4) else vT + 2
            p(f"buffer_load_ushort v{WPH+8*t+jj}, v{va}, s[{WP}:{WP+3}], s7 offen offset:{d*56}")
    p.label("k1_go")
    for r in range(AQ, AQ + 96): p(f"v_mov_b32 v{r}, 0")
    p(f"s_mov_b32 s{sRS}, 0\ns_mov_b32 s{sCNT}, 0")
    for kk in range(4): p(f"v_mov_b32 v{vXA+kk}, v{vXA0+kk}")
    p(f"v_mov_b32 v{vWA}, v{vWA0}")
    stamp(p, 1)
    p("s_barrier")
    stamp(p, 2)
    def reads(kk, st):
        for a in range(2):
            p(f"ds_read_b128 {vr(XF[st]+4*a,4)}, v{vXA+kk} offset:{4096*a}")
        for seg in range(3):
            for x in range(2):
                p(f"ds_read_b64_tr_b16 {vr(WF[st]+4*seg+2*x,2)}, v{vWA} offset:{(16*kk+4*x)*384+seg*128}")
    def mfmas(st):
        for a in range(2):
            xf = vr(XF[st] + 4 * a, 4)
            p(f"{MFMA} {vr(AQ+16*a,16)}, {vr(WF[st],4)}, {xf}, {vr(AQ+16*a,16)}")
            p(f"{MFMA} {vr(AK+16*a,16)}, {vr(WF[st]+4,4)}, {xf}, {vr(AK+16*a,16)}")
            p(f"{MFMA} {vr(AV+16*a,16)}, {xf}, {vr(WF[st]+8,4)}, {vr(AV+16*a,16)}")
    reads(0, 0)
    p(".p2align 4")
    p.label("k1_loop")
    for kk in range(3):
        reads(kk + 1, (kk + 1) & 1)
        p("s_waitcnt lgkmcnt(8)")
        mfmas(kk & 1)
    p(f"""s_add_u32 s{sRS}, s{sRS}, {SLOT}
s_cmp_ge_u32 s{sRS}, {4*SLOT}
s_cselect_b32 s{sRS}, 0, s{sRS}
s_add_u32 s{sCNT}, s{sCNT}, 1""")
    for kk in range(4): p(f"v_add_u32 v{vXA+kk}, s{sRS}, v{vXA0+kk}")
    p(f"v_add_u32 v{vWA}, s{sRS}, v{vWA0}")
    p("s_waitcnt lgkmcnt(0)\ns_barrier")
    reads(0, 0)
    mfmas(1)
    p(f"s_cmp_lt_u32 s{sCNT}, 7\ns_cbranch_scc1 k1_loop")
    stamp(p, 3)
    p(f"""s_and_b32 s7, s{sWV}, 1
s_lshl_b32 s8, s{sRB}, 2
s_lshl_b32 s7, s7, 1
s_add_u32 s8, s8, s7
s_lshl_b32 s9, s{sH}, 6
s_add_u32 s8, s8, s9
v_lshlrev_b32 v{vT}, 4, v{vL}
v_and_b32 v{vT+1}, 31, v{vL}
v_mov_b32 v{vT+2}, 0x3f803f80
v_cmp_eq_u32 vcc, 28, v{vT+1}
s_mov_b32 s12, 0xf0000000
s_mov_b32 s13, 0xf0000000
v_cndmask_b32 v{vT+2}, 0, v{vT+2}, vcc
s_waitcnt vmcnt(0) lgkmcnt(0)
s_cmp_eq_u32 s{sB}, 0
s_cbranch_scc0 k1_epiB""")
    PKQ, PKK, PKV = 28, 44, 172
    def pack(dst, acc, scale):
        for j in range(8):
            if scale is not None:
                p(pk("v_pk_mul_f32", acc + 2 * j, vr(acc + 2 * j, 2), sr(scale, 2)))
            p(f"v_cvt_pk_bf16_f32 v{dst+j}, v{acc+2*j}, v{acc+2*j+1}")
    def fixV(a):
        p("s_mov_b64 exec, s[12:13]")
        for j in range(8): p(f"v_mov_b32 v{PKV+8*a+j}, v{vT+2}")
        p("s_mov_b64 exec, -1")
    W4 = f"s[{WS}:{WS+3}]"
    c = f32(LOG2E / math.sqrt(28.0))
    p(f"s_mov_b32 s14, {c}\ns_mov_b32 s15, {c}\ns_lshl_b32 s10, s8, 11\ns_lshl_b32 s11, s8, 12\ns_add_u32 s11, s11, {KV_OFF}\nv_mov_b32 v{vT+3}, 0x3f80")
    for a in range(2):
        pack(PKK + 8 * a, AK + 16 * a, None)
        p(f"v_cndmask_b32 v{PKK+8*a+6}, v{PKK+8*a+6}, v{vT+3}, {sr(sUP,2)}\nv_cndmask_b32 v{PKK+8*a+7}, v{PKK+8*a+7}, 0, {sr(sUP,2)}")
        for t in range(2): p(f"buffer_store_dwordx4 {vr(PKK+8*a+4*t,4)}, v{vT}, {W4}, s11 offen offset:{t*1024}{ST}")
        pack(PKV + 8 * a, AV + 16 * a, None)
        fixV(a)
        for t in range(2): p(f"buffer_store_dwordx4 {vr(PKV+8*a+4*t,4)}, v{vT}, {W4}, s11 offen offset:{2048+t*1024}{ST}")
        if a == 0: p("s_add_u32 s11, s11, 4096")
    for a in range(2):
        pack(PKQ + 8 * a, AQ + 16 * a, 14)
        p(f"v_cndmask_b32 v{PKQ+8*a+6}, v{PKQ+8*a+6}, 0, {sr(sUP,2)}\nv_cndmask_b32 v{PKQ+8*a+7}, v{PKQ+8*a+7}, 0, {sr(sUP,2)}")
        for t in range(2): p(f"buffer_store_dwordx4 {vr(PKQ+8*a+4*t,4)}, v{vT}, {W4}, s10 offen offset:{a*2048+t*1024}{ST}")
    stamp(p, 5)
    if STAMP: p("s_waitcnt vmcnt(0)")
    stamp(p, 6); stamp_rt(p, 11); stamp_out(p, 0, sWV)
    p("s_endpgm")
    p.label("k1_epiB")
    c = f32(LOG2E)
    p(f"s_mov_b32 s14, {c}\ns_mov_b32 s15, {c}\ns_lshl_b32 s11, s8, 12\ns_add_u32 s11, s11, {PQ_OFF}")
    for j in range(8): p(f"v_lshl_or_b32 v{WPH+j}, v{WPH+2*j+1}, 16, v{WPH+2*j}")
    def phi(acc, pkd):
        p(f"{MFMA} {vr(acc,16)}, {vr(WPH,4)}, {vr(pkd,4)}, 0")
        p(f"{MFMA} {vr(acc,16)}, {vr(WPH+4,4)}, {vr(pkd+4,4)}, {vr(acc,16)}")
    pack(PKK, AK, 14); pack(PKK + 8, AK + 16, 14)
    phi(AK, PKK)
    pack(PKQ, AQ, 14)
    phi(AK + 16, PKK + 8)
    pack(PKQ + 8, AQ + 16, 14)
    phi(AQ, PKQ)
    TMP = 188
    OPM = 216
    OPM2 = 232
    KVA = AV
    vWR, vRD = vT + 3, vT + 4
    p(f"""s_mul_i32 s7, s{sWV}, 8704
s_movk_i32 s9, 136
v_lshrrev_b32 v{vT+5}, 5, v{vL}
v_mul_u32_u24 v{vWR}, s9, v{vT+1}
v_add_u32 v{vWR}, s7, v{vWR}
v_lshl_add_u32 v{vWR}, v{vT+5}, 3, v{vWR}
v_bfe_u32 v{vRD}, v{vL}, 2, 2
v_lshl_add_u32 v{vRD}, v{vT+5}, 2, v{vRD}
v_mul_u32_u24 v{vRD}, s9, v{vRD}
v_add_u32 v{vRD}, s7, v{vRD}
v_bfe_u32 v{vT+5}, v{vL}, 4, 1
v_lshl_add_u32 v{vRD}, v{vT+5}, 5, v{vRD}
v_and_b32 v{vT+5}, 3, v{vL}
v_lshl_add_u32 v{vRD}, v{vT+5}, 3, v{vRD}""")
    phi(AQ + 16, PKQ + 8)
    stamp(p, 4)
    PFb = [28, 44]
    for a in range(2):
        o = (OPM, OPM2)[a]
        softmax_pm(p, AK + 16 * a, o, o + 8, TMP, sUP)
        for sg in range(2):
            for g in range(4):
                p(f"ds_write_b64 v{vWR}, {vr(o+8*sg+2*g,2)} offset:{a*4352+sg*64+g*16}")
    for a in range(2):
        pack(PKV + 8 * a, AV + 16 * a, None); fixV(a)
    p("s_waitcnt lgkmcnt(0)")
    for a in range(2):
        for sg in range(2):
            for u in range(2):
                for x in range(2):
                    p(f"ds_read_b64_tr_b16 {vr(PFb[a]+8*sg+4*u+2*x,2)}, v{vRD} offset:{a*4352+(16*u+8*x)*136+sg*64}")
    p(f"""s_lshl_b32 s7, s{sWV}, 12
s_add_u32 s7, s7, 40960
s_xor_b32 s9, s7, 4096
v_add_u32 v{vWR}, s7, v{vT}
v_add_u32 v{vT+5}, s9, v{vT}
s_and_b32 s7, s{sWV}, 1
s_lshl_b32 s9, s{sH}, 4
s_add_u32 s9, s9, s{sRB}
s_lshl_b32 s9, s9, 1
s_add_u32 s9, s9, s7
s_lshl_b32 s9, s9, 12
s_add_u32 s9, s9, {KP_OFF}""")
    for a in range(2):
        p(f"s_waitcnt lgkmcnt({8 if a == 0 else 0})")
        for u in range(2):
            for sg in range(2):
                c = "0" if (a == 0 and u == 0) else vr(KVA + 16 * sg, 16)
                p(f"{MFMA} {vr(KVA+16*sg,16)}, {vr(PFb[a]+8*sg+4*u,4)}, {vr(PKV+8*a+4*u,4)}, {c}")
    softmax_pm(p, AQ, OPM, OPM + 8, TMP, sUP)
    for f in range(4):
        p(f"buffer_store_dwordx4 {vr(OPM+4*f,4)}, v{vT}, {W4}, s11 offen offset:{f*1024}{ST}")
    p("s_add_u32 s11, s11, 4096\ns_cmp_eq_u32 s7, 0\ns_cbranch_scc1 k1_x0")
    for sel, lab in ((1, None), (0, "k1_x0")):
        if lab: p.label(lab)
        keep, send = KVA + 16 * sel, KVA + 16 * (1 - sel)
        for q in range(4): p(f"ds_write_b128 v{vWR}, {vr(send+4*q,4)} offset:{q*1024}")
        p("s_branch k1_x2" if sel else "")
    p.label("k1_x2")
    softmax_pm(p, AQ + 16, OPM2, OPM2 + 8, TMP, sUP)
    for f in range(4):
        p(f"buffer_store_dwordx4 {vr(OPM2+4*f,4)}, v{vT}, {W4}, s11 offen offset:{f*1024}{ST}")
    p("s_waitcnt lgkmcnt(0)\ns_barrier")
    for q in range(4): p(f"ds_read_b128 {vr(TMP+4*q,4)}, v{vT+5} offset:{q*1024}")
    p("s_cmp_eq_u32 s7, 0\ns_cbranch_scc1 k1_y0")
    for sel, lab in ((1, None), (0, "k1_y0")):
        if lab: p.label(lab)
        keep = KVA + 16 * sel
        for q in range(4):
            p(f"s_waitcnt lgkmcnt({3-q})")
            for i in range(0, 4, 2): p(pk("v_pk_add_f32", keep + 4 * q + i, vr(keep + 4 * q + i, 2), vr(TMP + 4 * q + i, 2)))
            p(f"buffer_store_dwordx4 {vr(keep+4*q,4)}, v{vT}, {W4}, s9 offen offset:{q*1024}{ST}")
        stamp(p, 5)
        if STAMP: p("s_waitcnt vmcnt(0)")
        stamp(p, 6); stamp_rt(p, 11); stamp_out(p, 0, sWV)
        p("s_endpgm")
    p.label("k1_end")
    p("s_endpgm")
    return p

def k2():
    p = Prog()
    SLOT = 32768; NS = 4
    sH, sQB, sWV, sTILE, sHALF = 3, 4, 5, 6, 7
    WS = 36
    sKO, sDS, sRS, sCNT, sPO, sUP, sM0 = 40, 41, 42, 43, 44, 46, 48
    vL16, vRB, vCUR, vNXT, vTHR, vNM = 1, 2, 3, 4, 5, 6
    vT = 8
    S = [16, 32]; O = 48; K = 64; V0 = [72, 76]; V1 = 80; Q = 84; P = 92; PH = 100; PA = 116; PL = 120
    p("s_cmp_ge_u32 s2, 256\ns_cbranch_scc1 k2_end")
    stamp(p, 0); stamp_rt(p, 10)
    p("s_load_dwordx2 s[34:35], s[0:1], 72")
    p(f"""v_lshrrev_b32 v{vT}, 6, v0
v_and_b32 v{vL16}, 63, v0
s_and_b32 s8, s2, 7
s_bfe_u32 s9, s2, 0x10003
v_readfirstlane_b32 s{sWV}, v{vT}
s_lshl_b32 s{sH}, s8, 1
s_add_u32 s{sH}, s{sH}, s9
s_lshr_b32 s{sQB}, s2, 4
v_lshlrev_b32 v{vL16}, 4, v{vL16}
s_and_b32 s8, s{sWV}, 3
s_lshr_b32 s{sHALF}, s{sWV}, 2
s_lshl_b32 s{sTILE}, s{sQB}, 2
s_add_u32 s{sTILE}, s{sTILE}, s8
s_lshl_b32 s9, s{sH}, 6
s_lshl_b32 s10, s{sHALF}, 5
s_add_u32 s10, s10, s8
s_add_u32 s10, s10, s9
s_lshl_b32 s{sKO}, s10, 12
s_add_u32 s{sKO}, s{sKO}, {KV_OFF}
s_lshl_b32 s{sM0}, s{sWV}, 12
s_mov_b32 s{sDS}, 0
s_add_u32 s9, s9, s{sTILE}
s_lshl_b32 s10, s9, 11
s_lshl_b32 s11, s9, 12
s_add_u32 s11, s11, {PQ_OFF}
s_lshl_b32 s{sPO}, s{sH}, 17
s_lshl_b32 s13, s{sWV}, 10
s_add_u32 s{sPO}, s{sPO}, s13
s_add_u32 s{sPO}, s{sPO}, {KP_OFF}
s_mov_b32 s{sUP}, 0
s_mov_b32 s{sUP+1}, -1
s_mov_b32 s{WS+2}, {hex(WS_USED)}
s_mov_b32 s{WS+3}, 0x20000
s_mov_b32 m0, s{sM0}
s_waitcnt lgkmcnt(0)
s_mov_b32 s{WS}, s34
s_mov_b32 s{WS+1}, s35""")
    W4 = f"s[{WS}:{WS+3}]"
    def dma_piece(f): p(f"buffer_load_dwordx4 v{vL16}, {W4}, s{sKO} offen offset:{f*1024} lds")
    def dma_next():
        p(f"s_add_u32 s{sDS}, s{sDS}, {SLOT}\ns_and_b32 s{sDS}, s{sDS}, {NS*SLOT-1}\ns_add_u32 m0, s{sDS}, s{sM0}\ns_add_u32 s{sKO}, s{sKO}, 16384")
    def part_loads():
        p(f"buffer_load_dwordx4 {vr(PL,4)}, v{vL16}, {W4}, s{sPO} offen\ns_add_u32 s12, s{sPO}, 8192")
        p(f"buffer_load_dwordx4 {vr(PL+4,4)}, v{vL16}, {W4}, s12 offen\ns_add_u32 s{sPO}, s{sPO}, 16384")
    for f in range(4): dma_piece(f)
    for t in range(2):
        p(f"buffer_load_dwordx4 {vr(Q+4*t,4)}, v{vL16}, {W4}, s10 offen offset:{t*1024}")
    dma_next()
    for f in range(4): dma_piece(f)
    part_loads()
    dma_next()
    p(f"s_cmp_eq_u32 s{sHALF}, 0\ns_cbranch_scc1 k2_noph")
    for f in range(4):
        p(f"buffer_load_dwordx4 {vr(PH+4*f,4)}, v{vL16}, {W4}, s11 offen offset:{f*1024}")
    p.label("k2_noph")
    for f in range(2): dma_piece(f)
    stamp(p, 1)
    p(f"""s_lshl_b32 s8, s{sHALF}, 14
v_add_u32 v{vRB}, s8, v{vL16}
v_mov_b32 v{vTHR}, 0x7f800000
v_mov_b32 v{vT+2}, {f32(2.0**60)}
v_cndmask_b32 v{vTHR}, v{vTHR}, v{vT+2}, {sr(sUP,2)}""")
    for j in range(16): p(f"v_mov_b32 v{O+j}, 0")
    for j in range(4): p(f"v_mov_b32 v{V1+j}, 0\nv_mov_b32 v{P+4+j}, 0\nv_mov_b32 v{PA+j}, 0")
    p(f"v_mov_b32 v{vCUR}, v{vRB}\nv_add_u32 v{vNXT}, {SLOT}, v{vRB}\ns_mov_b32 s{sRS}, {SLOT}\ns_mov_b32 s{sCNT}, 0")
    p(f"s_cmp_eq_u32 s{sHALF}, 0\ns_cbranch_scc1 k2_w8\ns_waitcnt vmcnt(12)\ns_branch k2_w9")
    p.label("k2_w8")
    p("s_waitcnt vmcnt(8)")
    p.label("k2_w9")
    p("s_barrier")
    stamp(p, 3)
    p(f"ds_read_b128 {vr(K,4)}, v{vRB}\nds_read_b128 {vr(K+4,4)}, v{vRB} offset:1024")
    p(f"ds_read_b128 {vr(V0[0],4)}, v{vRB} offset:2048")
    p("s_waitcnt lgkmcnt(2)")
    p(f"{MFMA} {vr(S[0],16)}, {vr(K,4)}, {vr(Q,4)}, 0\ns_waitcnt lgkmcnt(1)\n{MFMA} {vr(S[0],16)}, {vr(K+4,4)}, {vr(Q+4,4)}, {vr(S[0],16)}")
    p(f"ds_read_b128 {vr(K,4)}, v{vRB} offset:4096\nds_read_b128 {vr(K+4,4)}, v{vRB} offset:5120\ns_nop 9")
    p(f"v_max3_f32 v{vT}, v{S[0]}, v{S[0]+1}, v{S[0]+2}\nv_max3_f32 v{vT+1}, v{S[0]+3}, v{S[0]+4}, v{S[0]+5}")
    for j in range(6, 14, 4): p(f"v_max3_f32 v{vT}, v{vT}, v{S[0]+j}, v{S[0]+j+1}\nv_max3_f32 v{vT+1}, v{vT+1}, v{S[0]+j+2}, v{S[0]+j+3}")
    p(f"v_max3_f32 v{vT}, v{vT}, v{S[0]+14}, v{S[0]+15}\nv_max_f32 v{vT}, v{vT}, v{vT+1}")
    xhalf(p, "v_max_f32", vT, vT + 1)
    p(f"v_cvt_pk_bf16_f32 v{vT}, -v{vT}, 0\nv_lshlrev_b32 v{vNM}, 16, v{vT}\nv_cndmask_b32 v{Q+6}, v{Q+6}, v{vT}, {sr(sUP,2)}")
    for j in range(0, 16, 2): p(pk("v_pk_add_f32", S[0] + j, vr(S[0] + j, 2), vr(vNM, 2), "op_sel_hi:[1,0]"))
    stamp(p, 4)
    p(".p2align 4")
    p.label("k2_loop")
    for j in range(4):
        Sc, Sn = S[j & 1], S[(j + 1) & 1]
        e = lambda i: p(f"v_exp_f32 v{Sc+i}, v{Sc+i}")
        c = lambda i: p(f"v_cvt_pk_bf16_f32 v{P+i}, v{Sc+2*i}, v{Sc+2*i+1}")
        if OPT["prio"]: p(f"s_setprio {j & 1}")
        e(0); e(1)
        p("s_waitcnt lgkmcnt(0)")
        p(f"{MFMA} {vr(O,16)}, {vr(V1,4)}, {vr(P+4,4)}, {vr(O,16)}")
        p(f"ds_read_b128 {vr(V1,4)}, v{vCUR} offset:{j*4096+3072}")
        e(2); e(3); c(0); e(4); c(1); e(5)
        p(f"{MFMA} {vr(Sn,16)}, {vr(K,4)}, {vr(Q,4)}, 0")
        e(6); e(7); c(2); e(8); c(3); e(9)
        p(f"{MFMA} {vr(Sn,16)}, {vr(K+4,4)}, {vr(Q+4,4)}, {vr(Sn,16)}")
        if j == 2:
            p(f"s_add_u32 s{sCNT}, s{sCNT}, 1")
            dma_next()
            p(f"s_cmp_ge_u32 s{sCNT}, 6\ns_cselect_b32 s{sKO}, 0x7fff0000, s{sKO}")
            p("s_waitcnt vmcnt(4)\ns_barrier")
        ka, ko = (vCUR, (j + 2) * 4096) if j < 2 else (vNXT, (j - 2) * 4096)
        va, vo = (vCUR, (j + 1) * 4096) if j < 3 else (vNXT, 0)
        p(f"ds_read_b128 {vr(K,4)}, v{ka} offset:{ko}\nds_read_b128 {vr(K+4,4)}, v{ka} offset:{ko+1024}")
        p(f"ds_read_b128 {vr(V0[(j+1)&1],4)}, v{va} offset:{vo+2048}")
        if j == 2:
            for i in range(0, 4, 2): p(pk("v_pk_add_f32", PA + i, vr(PA + i, 2), vr(PL + i, 2)))
            for i in range(0, 4, 2): p(pk("v_pk_add_f32", PA + i, vr(PA + i, 2), vr(PL + 4 + i, 2)))
            part_loads()
        e(10); e(11); c(4); e(12); c(5); e(13)
        if j == 3: p(f"v_cmp_gt_f32 vcc, v{O+12}, v{vTHR}")
        p(f"{MFMA} {vr(O,16)}, {vr(V0[j&1],4)}, {vr(P,4)}, {vr(O,16)}")
        if j >= 2: dma_piece(j - 2)
        else: dma_piece(j + 2)
        if j == 3:
            p(f"v_mov_b32 v{vCUR}, v{vNXT}\ns_add_u32 s{sRS}, s{sRS}, {SLOT}\ns_and_b32 s{sRS}, s{sRS}, {NS*SLOT-1}\nv_add_u32 v{vNXT}, s{sRS}, v{vRB}")
        e(14); e(15); c(6); c(7)
    p("s_cbranch_vccnz k2_rescale")
    p.label("k2_cont")
    p(f"s_cmp_lt_u32 s{sCNT}, 8\ns_cbranch_scc1 k2_loop")
    stamp(p, 5)
    p("s_setprio 0\ns_waitcnt lgkmcnt(0)")
    p(f"{MFMA} {vr(O,16)}, {vr(V1,4)}, {vr(P+4,4)}, {vr(O,16)}")
    p(f"""v_cvt_pk_bf16_f32 v{PA}, v{PA}, v{PA+1}
v_cvt_pk_bf16_f32 v{PA+1}, v{PA+2}, v{PA+3}
v_lshrrev_b32 v{vT+1}, 1, v{vL16}
v_add_u32 v{vT}, s{sM0}, v{vT+1}
s_lshl_b32 s8, s{sTILE}, 4
s_add_u32 s8, s8, s{sH}
s_lshl_b32 s8, s8, 11
s_add_u32 s8, s8, {O_OFF}
s_or_b32 s9, s{sM0}, 16384
v_add_u32 v{vT+2}, s9, v{vL16}
s_waitcnt vmcnt(0)
ds_write_b64 v{vT}, {vr(PA,2)}
s_cmp_eq_u32 s{sHALF}, 0
s_cbranch_scc1 k2_fin""")
    p(f"ds_write_b32 v{vT+2}, v{vNM} offset:1024")
    for q in range(4): p(f"ds_write_b128 v{vT+2}, {vr(O+4*q,4)} offset:{SLOT+q*1024}")
    p("s_waitcnt lgkmcnt(0)\ns_barrier")
    stamp(p, 6)
    for f in range(4):
        for x in range(2): p(f"ds_read_b64 {vr(16+4*f+2*x,2)}, v{vT+1} offset:{(2*f+x)*4096}")
    p(f"s_add_u32 s8, s8, {2*MB}")
    for f in range(4):
        p(f"s_waitcnt lgkmcnt({6-2*f})")
        p(f"{MFMA} v[32:47], {vr(16+4*f,4)}, {vr(PH+4*f,4)}, {'0' if f == 0 else 'v[32:47]'}")
    p(f"s_nop 11\nv_mov_b32 v{vT+2}, v44\nv_mov_b32 v{vT+3}, v44\ns_nop 1\nv_permlane32_swap_b32 v{vT+2}, v{vT+3}\ns_nop 0")
    p(f"v_add_f32 v{vT+2}, {f32(1e-6)}, v{vT+3}\nv_rcp_f32 v{vT+2}, v{vT+2}\ns_nop 0")
    for j in range(0, 16, 2): p(pk("v_pk_mul_f32", 32 + j, vr(32 + j, 2), vr(vT + 2, 2), "op_sel_hi:[1,0]"))
    for j in range(8): p(f"v_cvt_pk_bf16_f32 v{16+j}, v{32+2*j}, v{33+2*j}")
    p(f"v_cndmask_b32 v22, v22, 0, {sr(sUP,2)}\nv_cndmask_b32 v23, v23, 0, {sr(sUP,2)}")
    for t in range(2): p(f"buffer_store_dwordx4 {vr(16+4*t,4)}, v{vL16}, {W4}, s8 offen offset:{t*1024}{ST}")
    stamp(p, 7)
    if STAMP: p("s_waitcnt vmcnt(0)")
    stamp(p, 8); stamp_rt(p, 11); stamp_out(p, 1, sWV)
    p("s_endpgm")
    p.label("k2_fin")
    p("s_waitcnt lgkmcnt(0)\ns_barrier")
    stamp(p, 6)
    p(f"ds_read_b32 v{vT+7}, v{vT+2} offset:1024")
    for q in range(4): p(f"ds_read_b128 {vr(16+4*q,4)}, v{vT+2} offset:{SLOT+q*1024}")
    p(f"""v_mov_b32 v{vT}, {f32(2.0**-100)}
v_mov_b32 v{vT+1}, {f32(2.0**120)}
s_waitcnt lgkmcnt(4)
v_min_f32 v{vT+3}, v{vNM}, v{vT+7}
v_sub_f32 v{vT+4}, v{vT+3}, v{vNM}
v_sub_f32 v{vT+6}, v{vT+3}, v{vT+7}
v_exp_f32 v{vT+4}, v{vT+4}
v_exp_f32 v{vT+6}, v{vT+6}""")
    for j in range(0, 16, 2): p(pk("v_pk_mul_f32", O + j, vr(O + j, 2), vr(vT + 4, 2), "op_sel_hi:[1,0]"))
    for q in (3, 0, 1, 2):
        if q == 3: p("s_waitcnt lgkmcnt(0)")
        for j in range(4 * q, 4 * q + 4, 2):
            p(f"v_pk_fma_f32 {vr(O+j,2)}, {vr(16+j,2)}, {vr(vT+6,2)}, {vr(O+j,2)} op_sel_hi:[1,0,1]")
        if q == 3: p(f"v_mov_b32 v{vT+4}, v{O+12}\nv_mov_b32 v{vT+5}, v{O+12}")
    p(f"v_permlane32_swap_b32 v{vT+4}, v{vT+5}\ns_nop 0\nv_rcp_f32 v{vT+4}, v{vT+5}")
    p(f"v_cmp_nlt_f32 vcc, v{vT}, v{vT+5}\nv_cmp_nlt_f32 s[10:11], v{vT+5}, v{vT+1}")
    p(f"v_maximum3_f32 v{vT+2}, abs(v{O}), abs(v{O+1}), abs(v{O+2})")
    for j in range(3, 15, 2): p(f"v_maximum3_f32 v{vT+2}, v{vT+2}, abs(v{O+j}), abs(v{O+j+1})")
    p(f"v_maximum3_f32 v{vT+2}, v{vT+2}, abs(v{O+15}), abs(v{O+15})\ns_or_b64 s[10:11], vcc, s[10:11]")
    p(f"v_cmp_nlt_f32 vcc, v{vT+2}, v{vT+1}")
    for j in range(0, 16, 2): p(pk("v_pk_mul_f32", O + j, vr(O + j, 2), vr(vT + 4, 2), "op_sel_hi:[1,0]"))
    p("s_or_b64 vcc, vcc, s[10:11]\ns_cbranch_vccnz k2_slow")
    p.label("k2_out")
    for j in range(8): p(f"v_cvt_pk_bf16_f32 v{16+j}, v{O+2*j}, v{O+2*j+1}")
    p(f"v_cndmask_b32 v22, v22, 0, {sr(sUP,2)}\nv_cndmask_b32 v23, v23, 0, {sr(sUP,2)}")
    for t in range(2): p(f"buffer_store_dwordx4 {vr(16+4*t,4)}, v{vL16}, {W4}, s8 offen offset:{t*1024}{ST}")
    stamp(p, 7)
    if STAMP: p("s_waitcnt vmcnt(0)")
    stamp(p, 8); stamp_rt(p, 11); stamp_out(p, 1, sWV)
    p("s_endpgm")
    p.label("k2_rescale")
    p("s_waitcnt lgkmcnt(0)")
    p(f"{MFMA} {vr(O,16)}, {vr(V1,4)}, {vr(P+4,4)}, {vr(O,16)}\ns_nop 11")
    p(f"v_mov_b32 v{vT}, v{O+12}\nv_mov_b32 v{vT+1}, v{O+12}")
    for j in range(4): p(f"v_mov_b32 v{P+4+j}, 0")
    p(f"""v_permlane32_swap_b32 v{vT}, v{vT+1}
s_nop 0
v_frexp_exp_i32_f32 v{vT}, v{vT+1}
v_max_i32 v{vT}, 0, v{vT}
v_cvt_f32_i32 v{vT}, v{vT}
v_sub_f32 v{vT}, v{vNM}, v{vT}
v_cvt_pk_bf16_f32 v{vT}, v{vT}, 0
v_lshlrev_b32 v{vT+1}, 16, v{vT}
v_cndmask_b32 v{Q+6}, v{Q+6}, v{vT}, {sr(sUP,2)}
v_sub_f32 v{vT}, v{vT+1}, v{vNM}
v_mov_b32 v{vNM}, v{vT+1}
v_exp_f32 v{vT+1}, v{vT}""")
    for j in range(16): p(f"v_add_f32 v{S[0]+j}, v{S[0]+j}, v{vT}")
    for j in range(16): p(f"v_mul_f32 v{O+j}, v{O+j}, v{vT+1}")
    p("s_branch k2_cont")
    p.label("k2_slow")
    p(f"""s_lshl_b32 s{sKO}, s{sH}, 18
s_add_u32 s{sKO}, s{sKO}, {KV_OFF}
s_mov_b32 s{sCNT}, 0
v_cndmask_b32 v{Q+6}, v{Q+6}, 0, {sr(sUP,2)}
v_mov_b32 v{vNM}, 0xff7fffff""")
    for j in range(16): p(f"v_mov_b32 v{O+j}, 0")
    p.label("k2_sloop")
    for f in range(4): p(f"buffer_load_dwordx4 {vr(K+4*f,4)}, v{vL16}, {W4}, s{sKO} offen offset:{f*1024}")
    p(f"s_add_u32 s{sKO}, s{sKO}, 4096\ns_add_u32 s{sCNT}, s{sCNT}, 1\ns_waitcnt vmcnt(0)")
    p(f"{MFMA} {vr(S[0],16)}, {vr(K,4)}, {vr(Q,4)}, 0\n{MFMA} {vr(S[0],16)}, {vr(K+4,4)}, {vr(Q+4,4)}, {vr(S[0],16)}\ns_nop 11")
    p(f"v_max3_f32 v{vT}, v{S[0]}, v{S[0]+1}, v{vNM}")
    for j in range(2, 16, 2): p(f"v_max3_f32 v{vT}, v{vT}, v{S[0]+j}, v{S[0]+j+1}")
    xhalf(p, "v_max_f32", vT, vT + 1)
    p(f"v_sub_f32 v{vT+1}, v{vNM}, v{vT}\nv_mov_b32 v{vNM}, v{vT}\nv_exp_f32 v{vT+1}, v{vT+1}")
    for j in range(16): p(f"v_sub_f32 v{S[0]+j}, v{S[0]+j}, v{vT}")
    for j in range(16): p(f"v_exp_f32 v{S[0]+j}, v{S[0]+j}")
    for j in range(16): p(f"v_mul_f32 v{O+j}, v{O+j}, v{vT+1}")
    for j in range(8): p(f"v_cvt_pk_bf16_f32 v{P+j}, v{S[0]+2*j}, v{S[0]+2*j+1}")
    p("s_nop 1")
    p(f"{MFMA} {vr(O,16)}, {vr(K+8,4)}, {vr(P,4)}, {vr(O,16)}\n{MFMA} {vr(O,16)}, {vr(K+12,4)}, {vr(P+4,4)}, {vr(O,16)}")
    p(f"s_cmp_lt_u32 s{sCNT}, 64\ns_cbranch_scc1 k2_sloop")
    p(f"s_nop 11\nv_mov_b32 v{vT}, v{O+12}\nv_mov_b32 v{vT+1}, v{O+12}\ns_nop 1\nv_permlane32_swap_b32 v{vT}, v{vT+1}\ns_nop 0\nv_rcp_f32 v{vT+1}, v{vT+1}\ns_nop 0")
    for j in range(16): p(f"v_mul_f32 v{O+j}, v{O+j}, v{vT+1}")
    p("s_branch k2_out")
    p.label("k2_end")
    p("s_endpgm")
    return p

def k3():
    p = Prog()
    sB, sRB, sCB, sWV = 3, 4, 5, 6
    WO, WS, OUT = 36, 40, 44
    vL, vT = 1, 2
    vWA, vST = 8, 9
    WF = [12, 28]
    AC = 44
    OF = 76
    NR = 9
    p("s_cmp_ge_u32 s2, 224\ns_cbranch_scc1 k3_end")
    stamp(p, 0); stamp_rt(p, 10)
    load_args(p)
    p(f"""v_lshrrev_b32 v{vT}, 6, v0
v_and_b32 v{vL}, 63, v0
s_and_b32 s7, s2, 7
s_lshr_b32 s8, s2, 3
v_readfirstlane_b32 s{sWV}, v{vT}
s_lshr_b32 s{sB}, s7, 2
s_mul_i32 s9, s8, 37
s_lshr_b32 s9, s9, 8
s_mul_i32 s10, s9, 7
s_sub_u32 s{sCB}, s8, s10
s_and_b32 s7, s7, 3
s_lshl_b32 s7, s7, 2
s_add_u32 s{sRB}, s7, s9
v_lshrrev_b32 v{vT}, 3, v{vL}
v_and_b32 v{vT+1}, 7, v{vL}
v_lshlrev_b32 v{vT+2}, 1, v{vT}
v_and_b32 v{vT+2}, 4, v{vT+2}
v_xor_b32 v{vT+1}, v{vT+1}, v{vT+2}
v_lshlrev_b32 v{vT+1}, 4, v{vT+1}
s_movk_i32 s9, 896
v_mad_u32_u24 v{vT}, v{vT}, s9, v{vT+1}
v_lshlrev_b32 v{vT+1}, 4, v{vL}
s_mul_i32 s10, s{sWV}, {15*8*896}
s_lshl_b32 s11, s{sCB}, 7
s_add_u32 s10, s10, s11
s_mul_i32 s11, s{sWV}, {15*1024}
s_lshl_b32 s12, s{sRB}, 2
s_add_u32 s12, s12, s{sWV}
s_lshl_b32 s13, s12, 15
s_lshl_b32 s14, s{sB}, 21
s_add_u32 s13, s13, s14
s_add_u32 s13, s13, {O_OFF}
s_cmp_eq_u32 s{sB}, 0
s_waitcnt lgkmcnt(0)
s_cselect_b64 s[8:9], s[20:21], s[28:29]""")
    srd(p, WO, 8, WO_BYTES); srd(p, WS, 34, WS_USED); srd(p, OUT, 30, OUT_BYTES)
    for i in range(15):
        p(f"s_mov_b32 m0, s11\ns_add_u32 s11, s11, 1024\nbuffer_load_dwordx4 v{vT}, s[{WO}:{WO+3}], s10 offen lds\ns_add_u32 s10, s10, {8*896}")
    def oload(h):
        for t in range(2):
            p(f"buffer_load_dwordx4 {vr(OF+8*(h%NR)+4*t,4)}, v{vT+1}, s[{WS}:{WS+3}], s13 offen offset:{(h&1)*2048+t*1024}")
        if h & 1: p("s_add_u32 s13, s13, 4096")
    for h in range(8): oload(h)
    stamp(p, 1)
    p(f"""v_lshrrev_b32 v{vT+2}, 5, v{vL}
v_bfe_u32 v{vT+3}, v{vL}, 2, 2
v_lshl_add_u32 v{vT+4}, v{vT+2}, 2, v{vT+3}
v_lshlrev_b32 v{vT+4}, 7, v{vT+4}
v_bfe_u32 v{vT+5}, v{vL}, 4, 1
v_lshl_add_u32 v{vT+4}, v{vT+5}, 5, v{vT+4}
v_and_b32 v{vT+5}, 3, v{vL}
v_lshl_add_u32 v{vT+4}, v{vT+5}, 3, v{vT+4}
v_lshlrev_b32 v{vT+3}, 5, v{vT+3}
v_and_b32 v{vT+3}, 64, v{vT+3}
v_add_u32 v{vWA}, v{vT+4}, v{vT+3}
v_xor_b32 v{vWA+2}, 64, v{vWA}
v_and_b32 v{vT+3}, 31, v{vL}
s_lshl_b32 s12, s12, 5
v_add_u32 v{vT+3}, s12, v{vT+3}
s_movk_i32 s9, 1792
v_mul_u32_u24 v{vT+3}, s9, v{vT+3}
v_lshl_add_u32 v{vST}, v{vT+2}, 4, v{vT+3}
s_mul_i32 s12, s{sB}, 896
s_lshl_b32 s14, s{sCB}, 7
s_add_u32 s12, s12, s14
s_waitcnt vmcnt(16)
s_barrier""")
    def reads(h):
        st = WF[h & 1]
        for t in range(2):
            for ct in range(2):
                for x in range(2):
                    p(f"ds_read_b64_tr_b16 {vr(st+8*t+4*ct+2*x,2)}, v{vWA+2*ct} offset:{(28*h+16*t+8*x)*128}")
    stamp(p, 2)
    reads(0)
    for h in range(16):
        if h < 15: reads(h + 1)
        if h < 8: oload(h + 8)
        p(f"s_waitcnt vmcnt({16 if h < 8 else 30-2*h}) lgkmcnt({8 if h < 15 else 0})")
        st = WF[h & 1]
        for t in range(2):
            for ct in range(2):
                c = "0" if (h == 0 and t == 0) else vr(AC + 16 * ct, 16)
                p(f"{MFMA} {vr(AC+16*ct,16)}, {vr(st+8*t+4*ct,4)}, {vr(OF+8*(h%NR)+4*t,4)}, {c}")
    stamp(p, 3)
    p("s_nop 10")
    for ct in range(2):
        for j in range(8): p(f"v_cvt_pk_bf16_f32 v{WF[0]+8*ct+j}, v{AC+16*ct+2*j}, v{AC+16*ct+2*j+1}")
        if ct == 1: p("s_nop 0")
    for ct in range(2):
        for gp in range(2):
            b = WF[0] + 8 * ct + 4 * gp
            p(f"v_permlane32_swap_b32 v{b}, v{b+2}\nv_permlane32_swap_b32 v{b+1}, v{b+3}")
            p(f"buffer_store_dwordx4 {vr(b,4)}, v{vST}, s[{OUT}:{OUT+3}], s12 offen offset:{ct*64+gp*32}")
    stamp(p, 4)
    if STAMP: p("s_waitcnt vmcnt(0)")
    stamp(p, 5); stamp_rt(p, 11); stamp_out(p, 2, sWV)
    p.label("k3_end")
    p("s_endpgm")
    return p

def desc(name, nv, ns):
    acc = (nv + 3) // 4 * 4
    return f""".amdhsa_kernel {name}
  .amdhsa_next_free_vgpr {nv}
  .amdhsa_next_free_sgpr {ns}
  .amdhsa_accum_offset {acc}
  .amdhsa_group_segment_fixed_size 0
  .amdhsa_kernarg_size 80
  .amdhsa_user_sgpr_count 2
  .amdhsa_user_sgpr_kernarg_segment_ptr 1
  .amdhsa_system_sgpr_workgroup_id_x 1
.end_amdhsa_kernel
"""

def main(out):
    ks = [("qkv_kernel", k1(), 256, 512, 163840), ("attn_kernel", k2(), 256, 512, 131072), ("oproj_kernel", k3(), 224, 256, 61440)]
    hdr = open(f"cdna_kernels/{NAME}.s.ref").read().split("\n")
    lines = [l for l in hdr if l.startswith(";") and "@launch" not in l and "Override launch" not in l and "grid=ceil" not in l]
    lines = [l for l in lines if l.startswith("; Kernarg") or l.startswith(";   offset")]
    s = "\n".join(lines) + "\n"
    for n, p, g, b, lds in ks: s += f"; @launch kernel={n} grid=({g},1,1) block=({b},1,1) lds={lds}\n"
    s += '.amdgcn_target "amdgcn-amd-amdhsa--gfx950"\n.text\n'
    bad = 0
    for n, p, g, b, lds in ks:
        bad += len(p.check())
        s += f".globl {n}\n.p2align 8\n.type {n},@function\n{n}:\n" + p.text()
    s += '.section .rodata,"a"\n'
    for n, p, g, b, lds in ks:
        nv, ns = p.max_regs()
        print(n, "vgpr", nv, "sgpr", ns, "instr", len(p.L))
        s += ".p2align 6\n" + desc(n, nv, max(ns, 16))
    open(out, "w").write(s)
    print("hazards:", bad)

if __name__ == "__main__":
    main(sys.argv[1] if len(sys.argv) > 1 else f"cdna_kernels/{NAME}.s")
```

```python
import sys, math, struct
sys.path.insert(0, "gen")
from asmlib import Prog, vr, sr

NAME = "concat_heads__mha_block__linear_kernel_hedgehog__prompt"
MB = 1 << 20
Q_OFF, KV_OFF, PQ_OFF, KP_OFF, O_OFF, WS_USED = 0, 2 * MB, 6 * MB, 10 * MB, 12 * MB, 16 * MB
WF_OFF = 8 * MB
X_BYTES, W_BYTES, WO_BYTES, WPHI_BYTES, OUT_BYTES = 2048 * 896, 448 * 2688, 448 * 896, 16 * 1568, 2048 * 1792
LOG2E = 1.4426950408889634
def f32(x): return "0x%08x" % struct.unpack("<I", struct.pack("<f", x))[0]
MFMA = "v_mfma_f32_32x32x16_bf16"

def srd(p, d, base, nbytes):
    p(f"s_mov_b32 s{d}, s{base}\ns_mov_b32 s{d+1}, s{base+1}\ns_mov_b32 s{d+2}, {hex(nbytes)}\ns_mov_b32 s{d+3}, 0x20000")

STAMP = "stamp" in sys.argv[2:]
def stamp(p, i):
    if STAMP: p(f"s_memtime s[{64+2*i}:{65+2*i}]")
def stamp_rt(p, i):
    if STAMP: p(f"s_memrealtime s[{64+2*i}:{65+2*i}]")
def stamp_out(p, kidx, sWV, n=12):
    if not STAMP: return
    p(f"s_waitcnt lgkmcnt(0)\ns_mov_b32 s92, s34\ns_mov_b32 s93, s35\ns_mov_b32 s94, 0x4000000\ns_mov_b32 s95, 0x20000")
    p(f"s_lshl_b32 s90, s2, 4\ns_add_u32 s90, s90, s{sWV}\ns_lshl_b32 s90, s90, 6\ns_add_u32 s90, s90, {32*MB + kidx*MB}\nv_mov_b32 v0, 0")
    for i in range(n):
        p(f"v_mov_b32 v1, s{64+2*i}\nbuffer_store_dword v1, v0, s[92:95], s90 offen offset:{4*i}")

def load_args(p):
    p("s_load_dwordx16 s[16:31], s[0:1], 0\ns_load_dwordx4 s[32:35], s[0:1], 64")

def xhalf(p, op, x, t):
    p(f"v_mov_b32 v{t}, v{x}\ns_nop 1\nv_permlane32_swap_b32 v{x}, v{t}\ns_nop 0\n{op} v{x}, v{x}, v{t}")


OPT = dict(st="sc1", prio=1, rot=1, hw=2, bias=0)
for _a in sys.argv[2:]:
    if "=" in _a:
        _k, _v = _a.split("=", 1); OPT[_k] = _v.replace("+", " ") if _k == "st" else int(_v)
ST = (" " + OPT["st"]) if OPT["st"] else ""

def pk(op, d, a, b, mods=""):
    return f"{op} {vr(d,2)}, {a}, {b} {mods}".rstrip()

def softmax_pm(p, P, OP, OM, T, sUP):
    E = T
    mx, mn, a0, a1, b0, b1, c0, c1, rp, rp2, rm, rm2 = [T + 16 + i for i in range(12)]
    p(f"v_max3_f32 v{mx}, v{P}, v{P+1}, v{P+2}\nv_min3_f32 v{mn}, v{P}, v{P+1}, v{P+2}")
    for j in range(3, 15, 2):
        p(f"v_max3_f32 v{mx}, v{mx}, v{P+j}, v{P+j+1}\nv_min3_f32 v{mn}, v{mn}, v{P+j}, v{P+j+1}")
    p(f"v_max_f32 v{mx}, v{mx}, v{P+15}\nv_min_f32 v{mn}, v{mn}, v{P+15}")
    p(f"v_mov_b32 v{a0}, v{mx}\nv_mov_b32 v{a1}, v{mn}\ns_nop 0")
    p(f"v_permlane32_swap_b32 v{mx}, v{a0}\nv_permlane32_swap_b32 v{mn}, v{a1}\ns_nop 0")
    p(f"v_max_f32 v{mx}, v{mx}, v{a0}\nv_min_f32 v{mn}, v{mn}, v{a1}")
    for j in range(0, 16, 2):
        p(pk("v_pk_add_f32", E + j, vr(mx, 2), vr(P + j, 2), "op_sel:[1,0] op_sel_hi:[1,1] neg_lo:[0,1] neg_hi:[0,1]"))
        p(pk("v_pk_add_f32", P + j, vr(P + j, 2), vr(mx, 2), "op_sel:[0,0] op_sel_hi:[1,0] neg_lo:[0,1] neg_hi:[0,1]"))
    for j in range(16):
        p(f"v_exp_f32 v{E+j}, v{E+j}\nv_exp_f32 v{P+j}, v{P+j}")
    for (B, s, t) in ((E, b0, c0), (P, a0, c0)):
        p(pk("v_pk_add_f32", s, vr(B, 2), vr(B + 2, 2)))
        p(pk("v_pk_add_f32", t, vr(B + 12, 2), vr(B + 14, 2)))
        for j in range(4, 12, 2): p(pk("v_pk_add_f32", s, vr(s, 2), vr(B + j, 2)))
        p(f"v_add_f32 v{t}, v{t}, v{t+1}\nv_add_f32 v{s}, v{s}, v{s+1}\nv_cndmask_b32 v{t}, v{t}, 0, {sr(sUP,2)}\nv_add_f32 v{s}, v{s}, v{t}")
    p(f"v_mov_b32 v{a1}, v{a0}\nv_mov_b32 v{b1}, v{b0}\ns_nop 0")
    p(f"v_permlane32_swap_b32 v{a0}, v{a1}\nv_permlane32_swap_b32 v{b0}, v{b1}\ns_nop 0")
    p(f"v_add_f32 v{a0}, v{a0}, v{a1}\nv_add_f32 v{b0}, v{b0}, v{b1}")
    p(f"v_rcp_f32 v{rp}, v{a0}\nv_rcp_f32 v{rm}, v{b0}\ns_nop 0")
    p(f"v_cndmask_b32 v{rp2}, v{rp}, 0, {sr(sUP,2)}\nv_cndmask_b32 v{rm2}, v{rm}, 0, {sr(sUP,2)}")
    for j in range(0, 16, 2):
        sel = "op_sel:[0,0] op_sel_hi:[1,0]" if j < 12 else "op_sel:[0,1] op_sel_hi:[1,1]"
        p(pk("v_pk_mul_f32", P + j, vr(P + j, 2), vr(rp, 2), sel))
        p(pk("v_pk_mul_f32", E + j, vr(E + j, 2), vr(rm, 2), sel))
    for j in range(8):
        p(f"v_cvt_pk_bf16_f32 v{OP+j}, v{P+2*j}, v{P+2*j+1}\nv_cvt_pk_bf16_f32 v{OM+j}, v{E+2*j}, v{E+2*j+1}")

def k1():
    p = Prog()
    SLOT = 40960; NS = 3
    sB, sRB, sPAIR, sWV = 3, 4, 5, 6
    X, W, WS, WP = 36, 40, 44, 48
    sXO, sWO, sRS, sCNT, sT, sH, sUP = 52, 53, 55, 56, 57, 59, 60
    sM0X, sM0W, sST, sXB, sWB = 62, 63, 54, 58, 51
    vL, vXD, vWD, vXA0, vWA0, vXA, vWA = 1, 2, 6, 12, 16, 17, 21
    vT = 22
    XF = [28, 36]; WF = [44, 56]
    AQ, AK, AV = 68, 100, 132
    WPH = 164
    p("s_cmp_ge_u32 s2, 256\ns_cbranch_scc1 k1_end")
    stamp(p, 0); stamp_rt(p, 10)
    load_args(p)
    p(f"""v_lshrrev_b32 v{vT}, 6, v0
v_and_b32 v{vL}, 63, v0
s_and_b32 s7, s2, 7
s_lshr_b32 s8, s2, 3
v_readfirstlane_b32 s{sWV}, v{vT}
s_lshr_b32 s{sB}, s7, 2
s_bfe_u32 s9, s7, 0x10001
s_lshl_b32 s9, s9, 3
s_lshr_b32 s10, s8, 2
s_add_u32 s{sRB}, s10, s9
s_and_b32 s9, s7, 1
s_lshl_b32 s9, s9, 2
s_and_b32 s11, s8, 3
s_add_u32 s{sPAIR}, s11, s9
s_cmp_lt_u32 s{sWV}, 4
s_cbranch_scc1 k1_compute""")
    p(f"""s_sub_u32 s{sWV}, s{sWV}, 4
s_lshl_b32 s11, s11, 1
s_add_u32 s{sST}, s10, s11
s_cmp_ge_u32 s{sST}, 7
s_cselect_b32 s9, 7, 0
s_sub_u32 s{sST}, s{sST}, s9
s_cmp_ge_u32 s{sST}, 7
s_cselect_b32 s9, 7, 0
s_sub_u32 s{sST}, s{sST}, s9""")
    if not OPT["rot"]: p(f"s_mov_b32 s{sST}, 0")
    p(f"v_lshrrev_b32 v{vT}, 3, v{vL}\nv_and_b32 v{vT+1}, 7, v{vL}\nv_lshrrev_b32 v{vT+2}, 4, v{vL}")
    p(f"s_mul_i32 s7, s{sWV}, {32*896}\ns_movk_i32 s8, 896\nv_mul_u32_u24 v{vT+4}, s8, v{vT}\nv_add_u32 v{vT+4}, s7, v{vT+4}")
    for i in range(2):
        p(f"""v_xor_b32 v{vT+3}, {4*i}, v{vT+2}
v_xor_b32 v{vT+3}, v{vT+3}, v{vT+1}
v_lshl_add_u32 v{vT+3}, v{vT+3}, 4, v{vT+4}
v_add_u32 v{vXD+i}, {8*i*896 - i*1024}, v{vT+3}
v_add_u32 v{vXD+i+2}, {8*(i+2)*896 - (i+2)*1024}, v{vT+3}""")
    p(f"""s_mul_i32 s{sXB}, s{sRB}, {128*896}
s_mul_i32 s{sWB}, s{sPAIR}, 112
s_lshl_b32 s{sM0X}, s{sWV}, 12
s_mul_i32 s{sM0W}, s{sWV}, 6144
s_add_u32 s{sM0W}, s{sM0W}, 16384
s_cmp_eq_u32 s{sB}, 0
s_waitcnt lgkmcnt(0)
s_cselect_b64 s[8:9], s[16:17], s[22:23]
s_cselect_b64 s[10:11], s[18:19], s[24:25]""")
    srd(p, X, 8, X_BYTES); srd(p, W, 10, W_BYTES)
    def stage_off():
        p(f"""s_lshl_b32 s{sXO}, s{sST}, 7
s_add_u32 s{sXO}, s{sXO}, s{sXB}
s_mul_i32 s{sWO}, s{sST}, {64*2688}
s_add_u32 s{sWO}, s{sWO}, s{sWB}
s_add_u32 s{sST}, s{sST}, 1
s_cmp_ge_u32 s{sST}, 7
s_cselect_b32 s{sST}, 0, s{sST}""")
    def dma_x(st):
        p(f"s_add_u32 m0, s{sM0X}, {(st % NS) * SLOT}")
        stage_off()
        for i in range(4):
            p(f"buffer_load_dwordx4 v{vXD+i}, s[{X}:{X+3}], s{sXO} offen offset:{i*1024} lds")
    def dma_w(st, i0, i1):
        for i in range(i0, i1):
            if i == i0 or i == 4: p(f"s_add_u32 m0, s{sM0W}, {(st % NS) * SLOT + (i // 4) * 4096}\ns_nop 0")
            p(f"buffer_load_dwordx4 v{vWD+i}, s[{W}:{W+3}], s{sWO} offen offset:{(i%4)*1024} lds")
    dma_x(0)
    p(f"s_mul_i32 s7, s{sWV}, 48\ns_movk_i32 s8, 171\ns_movk_i32 s9, 2688\ns_movk_i32 s10, 896")
    for i in range(6):
        p(f"""v_add3_u32 v{vT+3}, v{vT}, s7, {8*i}
v_mul_u32_u24 v{vT+4}, s8, v{vT+3}
v_lshrrev_b32 v{vT+4}, 9, v{vT+4}
v_mul_u32_u24 v{vT+5}, 3, v{vT+4}
v_sub_u32 v{vT+3}, v{vT+3}, v{vT+5}
v_mul_u32_u24 v{vT+3}, s10, v{vT+3}
v_mad_u32_u24 v{vT+3}, v{vT+4}, s9, v{vT+3}
v_lshlrev_b32 v{vT+4}, 1, v{vT+4}
v_and_b32 v{vT+4}, 4, v{vT+4}
v_xor_b32 v{vT+4}, v{vT+4}, v{vT+1}
v_lshl_add_u32 v{vT+3}, v{vT+4}, 4, v{vT+3}
v_subrev_u32 v{vWD+i}, {(i%4)*1024}, v{vT+3}""")
    dma_w(0, 0, 6)
    HW = OPT["hw"]
    for b in range(7):
        if b < 6:
            dma_x(b + 1); dma_w(b + 1, 0, HW)
            p(f"s_waitcnt vmcnt({4 + HW})\ns_barrier")
            dma_w(b + 1, HW, 6)
        else:
            p("s_waitcnt vmcnt(0)\ns_barrier")
        if b == 0: stamp(p, 2)
    stamp(p, 3); stamp(p, 6); stamp_rt(p, 11)
    if STAMP: p(f"s_add_u32 s{sWV}, s{sWV}, 4")
    stamp_out(p, 0, sWV)
    p("s_endpgm")
    p.label("k1_compute")
    p(f"""s_and_b32 s7, s{sWV}, 1
s_lshr_b32 s8, s{sWV}, 1
s_lshl_b32 s{sH}, s{sPAIR}, 1
s_add_u32 s{sH}, s{sH}, s8
s_lshl_b32 s7, s7, 13
s_mul_i32 s8, s8, 56
v_and_b32 v{vT}, 31, v{vL}
v_lshrrev_b32 v{vT+1}, 5, v{vL}
v_bfe_u32 v{vT+2}, v{vL}, 1, 3
v_xor_b32 v{vT+2}, v{vT+2}, v{vT+1}
v_lshlrev_b32 v{vT+2}, 4, v{vT+2}
v_lshl_add_u32 v{vT+3}, v{vT}, 7, s7""")
    for kk in range(4):
        p(f"v_xor_b32 v{vT+4}, {32*kk}, v{vT+2}\nv_add_u32 v{vXA0+kk}, v{vT+3}, v{vT+4}")
    p(f"""v_bfe_u32 v{vT+2}, v{vL}, 2, 2
v_lshl_add_u32 v{vT+3}, v{vT+1}, 3, v{vT+2}
s_movk_i32 s9, 384
v_mul_u32_u24 v{vT+3}, s9, v{vT+3}
v_bfe_u32 v{vT+4}, v{vL}, 4, 1
v_lshlrev_b32 v{vT+4}, 5, v{vT+4}
v_and_b32 v{vT+5}, 3, v{vL}
v_lshl_add_u32 v{vT+4}, v{vT+5}, 3, v{vT+4}
v_add_u32 v{vT+4}, s8, v{vT+4}
v_lshlrev_b32 v{vT+2}, 5, v{vT+2}
v_and_b32 v{vT+2}, 64, v{vT+2}
v_xor_b32 v{vT+4}, v{vT+4}, v{vT+2}
v_add_u32 v{vT+3}, v{vT+3}, v{vT+4}
v_add_u32 v{vWA0}, 16384, v{vT+3}
s_mov_b32 s{sUP}, 0
s_mov_b32 s{sUP+1}, -1""")
    for r in range(AQ, AQ + 96): p(f"v_mov_b32 v{r}, 0")
    p(f"s_mov_b32 s{sRS}, 0\ns_mov_b32 s{sCNT}, 0")
    for kk in range(4): p(f"v_mov_b32 v{vXA+kk}, v{vXA0+kk}")
    p(f"v_mov_b32 v{vWA}, v{vWA0}")
    p("s_waitcnt lgkmcnt(0)")
    srd(p, WS, 34, WS_USED); srd(p, WP, 26, WPHI_BYTES)
    p(f"s_cmp_eq_u32 s{sB}, 0\ns_cbranch_scc1 k1_go")
    p(f"""v_add_u32 v{vT+2}, -4, v{vT}
v_cmp_gt_u32 vcc, 28, v{vT}
s_movk_i32 s9, 224
s_mul_i32 s7, s{sH}, 1568
v_cndmask_b32 v{vT+2}, v{vT+2}, v{vT}, vcc
v_lshlrev_b32 v{vT+2}, 1, v{vT+2}
v_mad_u32_u24 v{vT+2}, v{vT+1}, s9, v{vT+2}
v_lshlrev_b32 v{vT+3}, 20, v{vT+1}
v_add_u32 v{vT+3}, v{vT+3}, v{vT+2}""")
    for t in range(2):
        for jj in range(8):
            d = 16 * t + 8 * (jj >> 2) + (jj & 3)
            va = vT + 3 if (t == 1 and jj >= 4) else vT + 2
            p(f"buffer_load_ushort v{WPH+8*t+jj}, v{va}, s[{WP}:{WP+3}], s7 offen offset:{d*56}")
    p.label("k1_go")
    stamp(p, 1)
    p("s_barrier")
    stamp(p, 2)
    def reads(kk, st):
        for a in range(2):
            p(f"ds_read_b128 {vr(XF[st]+4*a,4)}, v{vXA+kk} offset:{4096*a}")
        for seg in range(3):
            for x in range(2):
                p(f"ds_read_b64_tr_b16 {vr(WF[st]+4*seg+2*x,2)}, v{vWA} offset:{(16*kk+4*x)*384+seg*128}")
    def mfmas(st):
        for a in range(2):
            xf = vr(XF[st] + 4 * a, 4)
            p(f"{MFMA} {vr(AQ+16*a,16)}, {vr(WF[st],4)}, {xf}, {vr(AQ+16*a,16)}")
            p(f"{MFMA} {vr(AK+16*a,16)}, {vr(WF[st]+4,4)}, {xf}, {vr(AK+16*a,16)}")
            p(f"{MFMA} {vr(AV+16*a,16)}, {xf}, {vr(WF[st]+8,4)}, {vr(AV+16*a,16)}")
    reads(0, 0)
    p(".p2align 4")
    p.label("k1_loop")
    for kk in range(3):
        reads(kk + 1, (kk + 1) & 1)
        p("s_waitcnt lgkmcnt(8)")
        mfmas(kk & 1)
    p(f"""s_add_u32 s{sRS}, s{sRS}, {SLOT}
s_cmp_ge_u32 s{sRS}, {NS*SLOT}
s_cselect_b32 s{sRS}, 0, s{sRS}
s_add_u32 s{sCNT}, s{sCNT}, 1""")
    for kk in range(4): p(f"v_add_u32 v{vXA+kk}, s{sRS}, v{vXA0+kk}")
    p(f"v_add_u32 v{vWA}, s{sRS}, v{vWA0}")
    p("s_waitcnt lgkmcnt(0)\ns_barrier")
    reads(0, 0)
    mfmas(1)
    p(f"s_cmp_lt_u32 s{sCNT}, 7\ns_cbranch_scc1 k1_loop")
    stamp(p, 3)
    p(f"""s_and_b32 s7, s{sWV}, 1
s_lshl_b32 s8, s{sRB}, 2
s_lshl_b32 s9, s7, 1
s_add_u32 s8, s8, s9
s_lshl_b32 s9, s{sH}, 6
s_add_u32 s8, s8, s9
v_lshlrev_b32 v{vT}, 4, v{vL}
v_and_b32 v{vT+1}, 31, v{vL}
v_mov_b32 v{vT+2}, 0x3f803f80
v_cmp_eq_u32 vcc, 28, v{vT+1}
s_mov_b32 s12, 0xf0000000
s_mov_b32 s13, 0xf0000000
v_cndmask_b32 v{vT+2}, 0, v{vT+2}, vcc
s_lshl_b32 s10, s8, 11
s_waitcnt vmcnt(0) lgkmcnt(0)
s_cmp_eq_u32 s{sB}, 0
s_cbranch_scc0 k1_epiB""")
    PKQ, PKK, PKV = 28, 44, 172
    def pack(dst, acc, scale):
        if scale is not None:
            for j in range(8): p(pk("v_pk_mul_f32", acc + 2 * j, vr(acc + 2 * j, 2), sr(scale, 2)))
        for j in range(8): p(f"v_cvt_pk_bf16_f32 v{dst+j}, v{acc+2*j}, v{acc+2*j+1}")
    def fixV(a):
        p("s_mov_b64 exec, s[12:13]")
        for j in range(8): p(f"v_mov_b32 v{PKV+8*a+j}, v{vT+2}")
        p("s_mov_b64 exec, -1")
    W4 = f"s[{WS}:{WS+3}]"
    c = f32(LOG2E / math.sqrt(28.0))
    p(f"s_mov_b32 s14, {c}\ns_mov_b32 s15, {c}\ns_lshl_b32 s11, s8, 12\ns_add_u32 s11, s11, {KV_OFF}\nv_mov_b32 v{vT+3}, 0x3f80")
    for a in range(2):
        pack(PKK + 8 * a, AK + 16 * a, None)
        p(f"v_cndmask_b32 v{PKK+8*a+6}, v{PKK+8*a+6}, v{vT+3}, {sr(sUP,2)}\nv_cndmask_b32 v{PKK+8*a+7}, v{PKK+8*a+7}, 0, {sr(sUP,2)}")
        for t in range(2): p(f"buffer_store_dwordx4 {vr(PKK+8*a+4*t,4)}, v{vT}, {W4}, s11 offen offset:{t*1024}{ST}")
        pack(PKV + 8 * a, AV + 16 * a, None)
        fixV(a)
        for t in range(2): p(f"buffer_store_dwordx4 {vr(PKV+8*a+4*t,4)}, v{vT}, {W4}, s11 offen offset:{2048+t*1024}{ST}")
        if a == 0: p("s_add_u32 s11, s11, 4096")
    for a in range(2):
        pack(PKQ + 8 * a, AQ + 16 * a, 14)
        p(f"v_cndmask_b32 v{PKQ+8*a+6}, v{PKQ+8*a+6}, 0, {sr(sUP,2)}\nv_cndmask_b32 v{PKQ+8*a+7}, v{PKQ+8*a+7}, 0, {sr(sUP,2)}")
        for t in range(2): p(f"buffer_store_dwordx4 {vr(PKQ+8*a+4*t,4)}, v{vT}, {W4}, s10 offen offset:{a*2048+t*1024}{ST}")
    stamp(p, 5)
    if STAMP: p("s_waitcnt vmcnt(0)")
    stamp(p, 6); stamp_rt(p, 11); stamp_out(p, 0, sWV)
    p("s_endpgm")
    p.label("k1_epiB")
    c = f32(LOG2E)
    p(f"s_mov_b32 s14, {c}\ns_mov_b32 s15, {c}\ns_add_u32 s10, s10, {PQ_OFF}")
    for j in range(8): p(f"v_lshl_or_b32 v{WPH+j}, v{WPH+2*j+1}, 16, v{WPH+2*j}")
    def phi(acc, pkd):
        p(f"{MFMA} {vr(acc,16)}, {vr(WPH,4)}, {vr(pkd,4)}, 0")
        p(f"{MFMA} {vr(acc,16)}, {vr(WPH+4,4)}, {vr(pkd+4,4)}, {vr(acc,16)}")
    pack(PKK, AK, 14); pack(PKK + 8, AK + 16, 14)
    phi(AK, PKK)
    phi(AK + 16, PKK + 8)
    for a in range(2):
        pack(PKQ + 8 * a, AQ + 16 * a, 14)
        for t in range(2): p(f"buffer_store_dwordx4 {vr(PKQ+8*a+4*t,4)}, v{vT}, {W4}, s10 offen offset:{a*2048+t*1024}{ST}")
    p(f"s_add_u32 s11, s{sRB}, s7\ns_cmp_lg_u32 s11, 0\ns_cbranch_scc1 k1_nowf")
    p(f"s_lshl_b32 s11, s{sH}, 11\ns_add_u32 s11, s11, {WF_OFF}")
    for t in range(2): p(f"buffer_store_dwordx4 {vr(WPH+4*t,4)}, v{vT}, {W4}, s11 offen offset:{t*1024}{ST}")
    p.label("k1_nowf")
    TMP = [188, 68]
    OPM = [216, 232]
    KVA = AV
    vWR, vRD = vT + 3, vT + 4
    p(f"""s_mul_i32 s11, s{sWV}, 8704
s_movk_i32 s9, 136
v_lshrrev_b32 v{vT+5}, 5, v{vL}
v_mul_u32_u24 v{vWR}, s9, v{vT+1}
v_add_u32 v{vWR}, s11, v{vWR}
v_lshl_add_u32 v{vWR}, v{vT+5}, 3, v{vWR}
v_bfe_u32 v{vRD}, v{vL}, 2, 2
v_lshl_add_u32 v{vRD}, v{vT+5}, 2, v{vRD}
v_mul_u32_u24 v{vRD}, s9, v{vRD}
v_add_u32 v{vRD}, s11, v{vRD}
v_bfe_u32 v{vT+5}, v{vL}, 4, 1
v_lshl_add_u32 v{vRD}, v{vT+5}, 5, v{vRD}
v_and_b32 v{vT+5}, 3, v{vL}
v_lshl_add_u32 v{vRD}, v{vT+5}, 3, v{vRD}""")
    stamp(p, 4)
    q = [Prog(), Prog()]
    for a in range(2):
        softmax_pm(q[a], AK + 16 * a, OPM[a], OPM[a] + 8, TMP[a], sUP)
        for sg in range(2):
            for g in range(4):
                q[a](f"ds_write_b64 v{vWR}, {vr(OPM[a]+8*sg+2*g,2)} offset:{a*4352+sg*64+g*16}")
    for x, y in zip(q[0].L, q[1].L):
        if x.startswith("s_nop"): continue
        p(x); p(y)
    PFb = [28, 44]
    for a in range(2):
        pack(PKV + 8 * a, AV + 16 * a, None); fixV(a)
    p("s_waitcnt lgkmcnt(0)")
    for a in range(2):
        for sg in range(2):
            for u in range(2):
                for x in range(2):
                    p(f"ds_read_b64_tr_b16 {vr(PFb[a]+8*sg+4*u+2*x,2)}, v{vRD} offset:{a*4352+(16*u+8*x)*136+sg*64}")
    p(f"""s_lshl_b32 s11, s{sWV}, 12
s_add_u32 s11, s11, 40960
s_xor_b32 s9, s11, 4096
v_add_u32 v{vWR}, s11, v{vT}
v_add_u32 v{vT+5}, s9, v{vT}
s_lshl_b32 s9, s{sH}, 4
s_add_u32 s9, s9, s{sRB}
s_lshl_b32 s9, s9, 1
s_add_u32 s9, s9, s7
s_lshl_b32 s9, s9, 12
s_add_u32 s9, s9, {KP_OFF}
s_cmp_eq_u32 s7, 0
s_cbranch_scc1 k1_x0""")
    for sel, lab in ((1, None), (0, "k1_x0")):
        if lab: p.label(lab)
        keep, send = KVA + 16 * sel, KVA + 16 * (1 - sel)
        p("s_waitcnt lgkmcnt(0)")
        for sg in (1 - sel, sel):
            for a in range(2):
                for u in range(2):
                    c = "0" if (a == 0 and u == 0) else vr(KVA + 16 * sg, 16)
                    p(f"{MFMA} {vr(KVA+16*sg,16)}, {vr(PFb[a]+8*sg+4*u,4)}, {vr(PKV+8*a+4*u,4)}, {c}")
        p("s_nop 7")
        for q4 in range(4): p(f"ds_write_b128 v{vWR}, {vr(send+4*q4,4)} offset:{q4*1024}")
        p("s_waitcnt lgkmcnt(0)\ns_barrier")
        for q4 in range(4): p(f"ds_read_b128 {vr(TMP[0]+4*q4,4)}, v{vT+5} offset:{q4*1024}")
        for q4 in range(4):
            p(f"s_waitcnt lgkmcnt({3-q4})")
            for i in range(0, 4, 2): p(pk("v_pk_add_f32", keep + 4 * q4 + i, vr(keep + 4 * q4 + i, 2), vr(TMP[0] + 4 * q4 + i, 2)))
            p(f"buffer_store_dwordx4 {vr(keep+4*q4,4)}, v{vT}, {W4}, s9 offen offset:{q4*1024}{ST}")
        stamp(p, 5)
        if STAMP: p("s_waitcnt vmcnt(0)")
        stamp(p, 6); stamp_rt(p, 11); stamp_out(p, 0, sWV)
        p("s_endpgm")
    p.label("k1_end")
    p("s_endpgm")
    return p

def k2():
    p = Prog()
    SLOT = 32768
    sH, sQB, sWV, sTILE, sHALF = 3, 4, 5, 6, 7
    WS = 36
    sKO, sRET, sCNT, sPO, sUP, sM0 = 40, 41, 43, 44, 46, 48
    vL16, vRA, vRB, vTHR, vNM = 1, 2, 3, 5, 6
    vT = 8
    S = [16, 32]; O = 48; K = 64; V0 = [72, 76]; V1 = 80; Q = 84; P = 92; PH = 100; PA = 116; PL = 120
    p("s_cmp_ge_u32 s2, 256\ns_cbranch_scc1 k2_end")
    stamp(p, 0); stamp_rt(p, 10)
    p("s_load_dwordx2 s[34:35], s[0:1], 72")
    p(f"""v_lshrrev_b32 v{vT}, 6, v0
v_and_b32 v{vL16}, 63, v0
s_and_b32 s8, s2, 7
s_bfe_u32 s9, s2, 0x10003
v_readfirstlane_b32 s{sWV}, v{vT}
s_lshl_b32 s{sH}, s8, 1
s_add_u32 s{sH}, s{sH}, s9
s_lshr_b32 s{sQB}, s2, 4
v_lshlrev_b32 v{vL16}, 4, v{vL16}
s_and_b32 s8, s{sWV}, 3
s_lshr_b32 s{sHALF}, s{sWV}, 2
s_lshl_b32 s{sTILE}, s{sQB}, 2
s_add_u32 s{sTILE}, s{sTILE}, s8
s_lshl_b32 s9, s{sH}, 6
s_lshl_b32 s10, s{sHALF}, 5
s_add_u32 s10, s10, s8
s_add_u32 s10, s10, s9
s_lshl_b32 s{sKO}, s10, 12
s_add_u32 s{sKO}, s{sKO}, {KV_OFF}
s_lshl_b32 s{sM0}, s{sWV}, 12
s_add_u32 s9, s9, s{sTILE}
s_lshl_b32 s10, s9, 11
s_add_u32 s11, s10, {PQ_OFF}
s_lshl_b32 s12, s{sH}, 11
s_add_u32 s12, s12, {WF_OFF}
s_lshl_b32 s{sPO}, s{sH}, 17
s_lshl_b32 s13, s{sWV}, 10
s_add_u32 s{sPO}, s{sPO}, s13
s_add_u32 s{sPO}, s{sPO}, {KP_OFF}
s_mov_b32 s{sUP}, 0
s_mov_b32 s{sUP+1}, -1
s_mov_b32 s{WS+2}, {hex(WS_USED)}
s_mov_b32 s{WS+3}, 0x20000
s_mov_b32 m0, s{sM0}
s_cmp_eq_u32 s{sHALF}, 0
s_waitcnt lgkmcnt(0)
s_mov_b32 s{WS}, s34
s_mov_b32 s{WS+1}, s35
s_cbranch_scc1 k2_noph""")
    W4 = f"s[{WS}:{WS+3}]"
    def dma_piece(f): p(f"buffer_load_dwordx4 v{vL16}, {W4}, s{sKO} offen offset:{f*1024} lds")
    def dma_stage(st):
        p(f"s_add_u32 m0, s{sM0}, {(st % 4) * SLOT}\ns_add_u32 s{sKO}, s{sKO}, 16384")
    def part_loads():
        p(f"buffer_load_dwordx4 {vr(PL,4)}, v{vL16}, {W4}, s{sPO} offen")
        p(f"buffer_load_dwordx4 {vr(PL+4,4)}, v{vT+7}, {W4}, s{sPO} offen\ns_add_u32 s{sPO}, s{sPO}, 16384")
    def part_adds():
        for i in range(0, 4, 2): p(pk("v_pk_add_f32", PA + i, vr(PA + i, 2), vr(PL + i, 2)))
        for i in range(0, 4, 2): p(pk("v_pk_add_f32", PA + i, vr(PA + i, 2), vr(PL + 4 + i, 2)))
    for t in range(2):
        p(f"buffer_load_dwordx4 {vr(K+4*t,4)}, v{vL16}, {W4}, s11 offen offset:{t*1024}")
        p(f"buffer_load_dwordx4 {vr(K+8+4*t,4)}, v{vL16}, {W4}, s12 offen offset:{t*1024}")
    p.label("k2_noph")
    for f in range(4): dma_piece(f)
    for t in range(2):
        p(f"buffer_load_dwordx4 {vr(Q+4*t,4)}, v{vL16}, {W4}, s10 offen offset:{t*1024}")
    dma_stage(1)
    p(f"v_add_u32 v{vT+7}, 8192, v{vL16}")
    for f in range(4): dma_piece(f)
    part_loads()
    dma_stage(2)
    for f in range(2): dma_piece(f)
    stamp(p, 1)
    p(f"s_cmp_eq_u32 s{sHALF}, 0\ns_cbranch_scc1 k2_init")
    p("s_waitcnt vmcnt(14)")
    p(f"{MFMA} {vr(S[0],16)}, {vr(K+8,4)}, {vr(K,4)}, 0\n{MFMA} {vr(S[0],16)}, {vr(K+12,4)}, {vr(K+4,4)}, {vr(S[0],16)}\ns_nop 11")
    softmax_pm(p, S[0], PH, PH + 8, S[1], sUP)
    p.label("k2_init")
    p(f"""s_lshl_b32 s8, s{sHALF}, 14
v_add_u32 v{vRA}, s8, v{vL16}
v_add_u32 v{vRB}, 0x10000, v{vRA}
v_mov_b32 v{vTHR}, 0x7f800000
v_mov_b32 v{vT+2}, {f32(2.0**60)}
v_cndmask_b32 v{vTHR}, v{vTHR}, v{vT+2}, {sr(sUP,2)}""")
    for j in range(4): p(f"v_mov_b32 v{PA+j}, 0")
    for j in range(16): p(f"v_mov_b32 v{O+j}, 0")
    p("s_waitcnt vmcnt(8)\ns_barrier")
    stamp(p, 3)
    def rd(dst, i, frag):
        st, tl = divmod(i, 4)
        base = vRA if (st % 4) < 2 else vRB
        p(f"ds_read_b128 {vr(dst,4)}, v{base} offset:{(st & 1) * SLOT + tl * 4096 + frag * 1024}")
    rd(K, 0, 0); rd(K + 4, 0, 1); rd(V0[0], 0, 2)
    p("s_waitcnt lgkmcnt(2)")
    p(f"{MFMA} {vr(S[0],16)}, {vr(K,4)}, {vr(Q,4)}, 0\ns_waitcnt lgkmcnt(1)\n{MFMA} {vr(S[0],16)}, {vr(K+4,4)}, {vr(Q+4,4)}, {vr(S[0],16)}")
    rd(K, 1, 0); rd(K + 4, 1, 1)
    p("s_nop 9")
    p(f"v_max3_f32 v{vT}, v{S[0]}, v{S[0]+1}, v{S[0]+2}\nv_max3_f32 v{vT+1}, v{S[0]+3}, v{S[0]+4}, v{S[0]+5}")
    for j in range(6, 14, 4): p(f"v_max3_f32 v{vT}, v{vT}, v{S[0]+j}, v{S[0]+j+1}\nv_max3_f32 v{vT+1}, v{vT+1}, v{S[0]+j+2}, v{S[0]+j+3}")
    p(f"v_max3_f32 v{vT}, v{vT}, v{S[0]+14}, v{S[0]+15}\nv_max_f32 v{vT}, v{vT}, v{vT+1}")
    xhalf(p, "v_max_f32", vT, vT + 1)
    if OPT["bias"]: p(f"v_add_f32 v{vT}, {f32(float(OPT['bias']))}, v{vT}")
    p(f"v_cvt_pk_bf16_f32 v{vT}, -v{vT}, 0\nv_lshlrev_b32 v{vNM}, 16, v{vT}\nv_cndmask_b32 v{Q+6}, v{Q+6}, v{vT}, {sr(sUP,2)}")
    for j in range(0, 16, 2): p(pk("v_pk_add_f32", S[0] + j, vr(S[0] + j, 2), vr(vNM, 2), "op_sel_hi:[1,0]"))
    stamp(p, 4)
    CHECK = (0, 1, 3, 5)
    PR = OPT["prio"]
    for i in range(32):
        s, j = divmod(i, 4)
        Sc, Sn = S[i & 1], S[(i + 1) & 1]
        e = lambda n: p(f"v_exp_f32 v{Sc+n}, v{Sc+n}")
        c = lambda n: p(f"v_cvt_pk_bf16_f32 v{P+n}, v{Sc+2*n}, v{Sc+2*n+1}")
        e(0); e(1)
        p("s_waitcnt lgkmcnt(0)")
        if i > 0: p(f"{MFMA} {vr(O,16)}, {vr(V1,4)}, {vr(P+4,4)}, {vr(O,16)}")
        rd(V1, i, 3)
        e(2); e(3); c(0); e(4); c(1); e(5)
        if i < 31: p(f"{MFMA} {vr(Sn,16)}, {vr(K,4)}, {vr(Q,4)}, 0")
        if PR: p("s_setprio 0")
        e(6); e(7); c(2); e(8); c(3); e(9)
        if i < 31: p(f"{MFMA} {vr(Sn,16)}, {vr(K+4,4)}, {vr(Q+4,4)}, {vr(Sn,16)}")
        if j == 2 and s < 7:
            if s + 3 <= 7: dma_stage(s + 3)
            p(f"s_waitcnt vmcnt({4 if s < 6 else 0})\ns_barrier")
        if i + 2 < 32: rd(K, i + 2, 0); rd(K + 4, i + 2, 1)
        if PR: p("s_setprio 1")
        if i + 1 < 32: rd(V0[(i + 1) & 1], i + 1, 2)
        if j == 2 and s < 7:
            part_adds(); part_loads()
        e(10); e(11); c(4); e(12); c(5); e(13)
        if j == 3 and s in CHECK: p(f"v_cmp_gt_f32 vcc, v{O+12}, v{vTHR}")
        p(f"{MFMA} {vr(O,16)}, {vr(V0[i&1],4)}, {vr(P,4)}, {vr(O,16)}")
        ds = s + 3 if j >= 2 else s + 2
        if ds <= 7: dma_piece((j + 2) % 4)
        e(14); e(15); c(6); c(7)
        if j == 3 and s in CHECK:
            p(f"s_cbranch_vccnz k2_rs{s}")
            p.label(f"k2_cont{s}")
    stamp(p, 5)
    p("s_setprio 0\ns_waitcnt vmcnt(0) lgkmcnt(0)")
    p(f"{MFMA} {vr(O,16)}, {vr(V1,4)}, {vr(P+4,4)}, {vr(O,16)}")
    part_adds()
    p(f"""v_lshrrev_b32 v{vT+1}, 1, v{vL16}
v_add_u32 v{vT}, s{sM0}, v{vT+1}
v_cvt_pk_bf16_f32 v{PA}, v{PA}, v{PA+1}
v_cvt_pk_bf16_f32 v{PA+1}, v{PA+2}, v{PA+3}
s_lshl_b32 s8, s{sTILE}, 4
s_add_u32 s8, s8, s{sH}
s_lshl_b32 s8, s8, 11
s_add_u32 s8, s8, {O_OFF}
s_or_b32 s9, s{sM0}, 16384
v_add_u32 v{vT+2}, s9, v{vL16}
ds_write_b64 v{vT}, {vr(PA,2)}
s_cmp_eq_u32 s{sHALF}, 0
s_cbranch_scc1 k2_fin""")
    p(f"ds_write_b32 v{vT+2}, v{vNM} offset:1024")
    for q in range(4): p(f"ds_write_b128 v{vT+2}, {vr(O+4*q,4)} offset:{SLOT+q*1024}")
    p("s_waitcnt lgkmcnt(0)\ns_barrier")
    stamp(p, 6)
    for f in range(4):
        for x in range(2): p(f"ds_read_b64 {vr(16+4*f+2*x,2)}, v{vT+1} offset:{(2*f+x)*4096}")
    p(f"s_add_u32 s8, s8, {2*MB}")
    for f in range(4):
        p(f"s_waitcnt lgkmcnt({6-2*f})")
        p(f"{MFMA} v[32:47], {vr(16+4*f,4)}, {vr(PH+4*f,4)}, {'0' if f == 0 else 'v[32:47]'}")
    p(f"s_nop 11\nv_mov_b32 v{vT+2}, v44\nv_mov_b32 v{vT+3}, v44\ns_nop 1\nv_permlane32_swap_b32 v{vT+2}, v{vT+3}\ns_nop 0")
    p(f"v_add_f32 v{vT+2}, {f32(1e-6)}, v{vT+3}\nv_rcp_f32 v{vT+2}, v{vT+2}\ns_nop 0")
    for j in range(0, 16, 2): p(pk("v_pk_mul_f32", 32 + j, vr(32 + j, 2), vr(vT + 2, 2), "op_sel_hi:[1,0]"))
    for j in range(8): p(f"v_cvt_pk_bf16_f32 v{16+j}, v{32+2*j}, v{33+2*j}")
    p(f"v_cndmask_b32 v22, v22, 0, {sr(sUP,2)}\nv_cndmask_b32 v23, v23, 0, {sr(sUP,2)}")
    for t in range(2): p(f"buffer_store_dwordx4 {vr(16+4*t,4)}, v{vL16}, {W4}, s8 offen offset:{t*1024}{ST}")
    stamp(p, 7)
    if STAMP: p("s_waitcnt vmcnt(0)")
    stamp(p, 8); stamp_rt(p, 11); stamp_out(p, 1, sWV)
    p("s_endpgm")
    p.label("k2_fin")
    p("s_waitcnt lgkmcnt(0)\ns_barrier")
    stamp(p, 6)
    p(f"ds_read_b32 v{vT+7}, v{vT+2} offset:1024")
    for q in range(4): p(f"ds_read_b128 {vr(16+4*q,4)}, v{vT+2} offset:{SLOT+q*1024}")
    p(f"""v_mov_b32 v{vT}, {f32(2.0**-120)}
v_mov_b32 v{vT+1}, {f32(2.0**120)}
s_waitcnt lgkmcnt(4)
v_min_f32 v{vT+3}, v{vNM}, v{vT+7}
v_sub_f32 v{vT+4}, v{vT+3}, v{vNM}
v_sub_f32 v{vT+6}, v{vT+3}, v{vT+7}
v_exp_f32 v{vT+4}, v{vT+4}
v_exp_f32 v{vT+6}, v{vT+6}""")
    for j in range(0, 16, 2): p(pk("v_pk_mul_f32", O + j, vr(O + j, 2), vr(vT + 4, 2), "op_sel_hi:[1,0]"))
    for q in (3, 0, 1, 2):
        if q == 3: p("s_waitcnt lgkmcnt(0)")
        for j in range(4 * q, 4 * q + 4, 2):
            p(f"v_pk_fma_f32 {vr(O+j,2)}, {vr(16+j,2)}, {vr(vT+6,2)}, {vr(O+j,2)} op_sel_hi:[1,0,1]")
        if q == 3: p(f"v_mov_b32 v{vT+4}, v{O+12}\nv_mov_b32 v{vT+5}, v{O+12}")
    p(f"v_permlane32_swap_b32 v{vT+4}, v{vT+5}\ns_nop 0\nv_rcp_f32 v{vT+4}, v{vT+5}")
    p(f"v_cmp_nlt_f32 vcc, v{vT}, v{vT+5}\nv_cmp_nlt_f32 s[10:11], v{vT+5}, v{vT+1}")
    p(f"v_maximum3_f32 v{vT+2}, abs(v{O}), abs(v{O+1}), abs(v{O+2})")
    for j in range(3, 15, 2): p(f"v_maximum3_f32 v{vT+2}, v{vT+2}, abs(v{O+j}), abs(v{O+j+1})")
    p(f"v_maximum3_f32 v{vT+2}, v{vT+2}, abs(v{O+15}), abs(v{O+15})\ns_or_b64 s[10:11], vcc, s[10:11]")
    p(f"v_cmp_nlt_f32 vcc, v{vT+2}, v{vT+1}")
    for j in range(0, 16, 2): p(pk("v_pk_mul_f32", O + j, vr(O + j, 2), vr(vT + 4, 2), "op_sel_hi:[1,0]"))
    p("s_or_b64 vcc, vcc, s[10:11]\ns_cbranch_vccnz k2_slow")
    p.label("k2_out")
    for j in range(8): p(f"v_cvt_pk_bf16_f32 v{16+j}, v{O+2*j}, v{O+2*j+1}")
    p(f"v_cndmask_b32 v22, v22, 0, {sr(sUP,2)}\nv_cndmask_b32 v23, v23, 0, {sr(sUP,2)}")
    for t in range(2): p(f"buffer_store_dwordx4 {vr(16+4*t,4)}, v{vL16}, {W4}, s8 offen offset:{t*1024}{ST}")
    stamp(p, 7)
    if STAMP: p("s_waitcnt vmcnt(0)")
    stamp(p, 8); stamp_rt(p, 11); stamp_out(p, 1, sWV)
    p("s_endpgm")
    for s in CHECK:
        p.label(f"k2_rs{s}")
        p(f"s_mov_b32 s{sRET}, {s}\ns_branch k2_rescale")
    p.label("k2_rescale")
    p("s_waitcnt lgkmcnt(0)")
    p(f"{MFMA} {vr(O,16)}, {vr(V1,4)}, {vr(P+4,4)}, {vr(O,16)}\ns_nop 11")
    p(f"v_mov_b32 v{vT}, v{O+12}\nv_mov_b32 v{vT+1}, v{O+12}")
    for j in range(4): p(f"v_mov_b32 v{P+4+j}, 0")
    p(f"""v_permlane32_swap_b32 v{vT}, v{vT+1}
s_nop 0
v_frexp_exp_i32_f32 v{vT}, v{vT+1}
v_max_i32 v{vT}, 0, v{vT}
v_cvt_f32_i32 v{vT}, v{vT}
v_sub_f32 v{vT}, v{vNM}, v{vT}
v_cvt_pk_bf16_f32 v{vT}, v{vT}, 0
v_lshlrev_b32 v{vT+1}, 16, v{vT}
v_cndmask_b32 v{Q+6}, v{Q+6}, v{vT}, {sr(sUP,2)}
v_sub_f32 v{vT}, v{vT+1}, v{vNM}
v_mov_b32 v{vNM}, v{vT+1}
v_exp_f32 v{vT+1}, v{vT}""")
    for j in range(16): p(f"v_add_f32 v{S[0]+j}, v{S[0]+j}, v{vT}")
    for j in range(16): p(f"v_mul_f32 v{O+j}, v{O+j}, v{vT+1}")
    for s in CHECK[:-1]: p(f"s_cmp_eq_u32 s{sRET}, {s}\ns_cbranch_scc1 k2_cont{s}")
    p(f"s_branch k2_cont{CHECK[-1]}")
    p.label("k2_slow")
    p(f"""s_lshl_b32 s{sKO}, s{sH}, 18
s_add_u32 s{sKO}, s{sKO}, {KV_OFF}
s_mov_b32 s{sCNT}, 0
v_cndmask_b32 v{Q+6}, v{Q+6}, 0, {sr(sUP,2)}
v_mov_b32 v{vNM}, 0xff7fffff""")
    for j in range(16): p(f"v_mov_b32 v{O+j}, 0")
    p.label("k2_sloop")
    for f in range(4): p(f"buffer_load_dwordx4 {vr(K+4*f,4)}, v{vL16}, {W4}, s{sKO} offen offset:{f*1024}")
    p(f"s_add_u32 s{sKO}, s{sKO}, 4096\ns_add_u32 s{sCNT}, s{sCNT}, 1\ns_waitcnt vmcnt(0)")
    p(f"{MFMA} {vr(S[0],16)}, {vr(K,4)}, {vr(Q,4)}, 0\n{MFMA} {vr(S[0],16)}, {vr(K+4,4)}, {vr(Q+4,4)}, {vr(S[0],16)}\ns_nop 11")
    p(f"v_max3_f32 v{vT}, v{S[0]}, v{S[0]+1}, v{vNM}")
    for j in range(2, 16, 2): p(f"v_max3_f32 v{vT}, v{vT}, v{S[0]+j}, v{S[0]+j+1}")
    xhalf(p, "v_max_f32", vT, vT + 1)
    p(f"v_sub_f32 v{vT+1}, v{vNM}, v{vT}\nv_mov_b32 v{vNM}, v{vT}\nv_exp_f32 v{vT+1}, v{vT+1}")
    for j in range(16): p(f"v_sub_f32 v{S[0]+j}, v{S[0]+j}, v{vT}")
    for j in range(16): p(f"v_exp_f32 v{S[0]+j}, v{S[0]+j}")
    for j in range(16): p(f"v_mul_f32 v{O+j}, v{O+j}, v{vT+1}")
    for j in range(8): p(f"v_cvt_pk_bf16_f32 v{P+j}, v{S[0]+2*j}, v{S[0]+2*j+1}")
    p("s_nop 1")
    p(f"{MFMA} {vr(O,16)}, {vr(K+8,4)}, {vr(P,4)}, {vr(O,16)}\n{MFMA} {vr(O,16)}, {vr(K+12,4)}, {vr(P+4,4)}, {vr(O,16)}")
    p(f"s_cmp_lt_u32 s{sCNT}, 64\ns_cbranch_scc1 k2_sloop")
    p(f"s_nop 11\nv_mov_b32 v{vT}, v{O+12}\nv_mov_b32 v{vT+1}, v{O+12}\ns_nop 1\nv_permlane32_swap_b32 v{vT}, v{vT+1}\ns_nop 0\nv_rcp_f32 v{vT+1}, v{vT+1}\ns_nop 0")
    for j in range(16): p(f"v_mul_f32 v{O+j}, v{O+j}, v{vT+1}")
    p("s_branch k2_out")
    p.label("k2_end")
    p("s_endpgm")
    return p

def k3():
    p = Prog()
    sB, sRB, sCB, sWV = 3, 4, 5, 6
    WO, WS, OUT = 36, 40, 44
    vL, vT = 1, 2
    vWA, vST = 8, 9
    WF = [12, 28]
    AC = 44
    OF = 76
    NR = 9
    p("s_cmp_ge_u32 s2, 224\ns_cbranch_scc1 k3_end")
    stamp(p, 0); stamp_rt(p, 10)
    load_args(p)
    p(f"""v_lshrrev_b32 v{vT}, 6, v0
v_and_b32 v{vL}, 63, v0
s_and_b32 s7, s2, 7
s_lshr_b32 s8, s2, 3
v_readfirstlane_b32 s{sWV}, v{vT}
s_lshr_b32 s{sB}, s7, 2
s_mul_i32 s9, s8, 37
s_lshr_b32 s9, s9, 8
s_mul_i32 s10, s9, 7
s_sub_u32 s{sCB}, s8, s10
s_and_b32 s7, s7, 3
s_lshl_b32 s7, s7, 2
s_add_u32 s{sRB}, s7, s9
v_lshrrev_b32 v{vT}, 3, v{vL}
v_and_b32 v{vT+1}, 7, v{vL}
v_lshlrev_b32 v{vT+2}, 1, v{vT}
v_and_b32 v{vT+2}, 4, v{vT+2}
v_xor_b32 v{vT+1}, v{vT+1}, v{vT+2}
v_lshlrev_b32 v{vT+1}, 4, v{vT+1}
s_movk_i32 s9, 896
v_mad_u32_u24 v{vT}, v{vT}, s9, v{vT+1}
v_lshlrev_b32 v{vT+1}, 4, v{vL}
s_mul_i32 s10, s{sWV}, {15*8*896}
s_lshl_b32 s11, s{sCB}, 7
s_add_u32 s10, s10, s11
s_mul_i32 s11, s{sWV}, {15*1024}
s_lshl_b32 s12, s{sRB}, 2
s_add_u32 s12, s12, s{sWV}
s_lshl_b32 s13, s12, 15
s_lshl_b32 s14, s{sB}, 21
s_add_u32 s13, s13, s14
s_add_u32 s13, s13, {O_OFF}
s_cmp_eq_u32 s{sB}, 0
s_waitcnt lgkmcnt(0)
s_cselect_b64 s[8:9], s[20:21], s[28:29]""")
    srd(p, WO, 8, WO_BYTES); srd(p, WS, 34, WS_USED); srd(p, OUT, 30, OUT_BYTES)
    for i in range(15):
        p(f"s_mov_b32 m0, s11\ns_add_u32 s11, s11, 1024\nbuffer_load_dwordx4 v{vT}, s[{WO}:{WO+3}], s10 offen lds\ns_add_u32 s10, s10, {8*896}")
    def oload(h):
        for t in range(2):
            p(f"buffer_load_dwordx4 {vr(OF+8*(h%NR)+4*t,4)}, v{vT+1}, s[{WS}:{WS+3}], s13 offen offset:{(h&1)*2048+t*1024}")
        if h & 1: p("s_add_u32 s13, s13, 4096")
    for h in range(8): oload(h)
    stamp(p, 1)
    p(f"""v_lshrrev_b32 v{vT+2}, 5, v{vL}
v_bfe_u32 v{vT+3}, v{vL}, 2, 2
v_lshl_add_u32 v{vT+4}, v{vT+2}, 2, v{vT+3}
v_lshlrev_b32 v{vT+4}, 7, v{vT+4}
v_bfe_u32 v{vT+5}, v{vL}, 4, 1
v_lshl_add_u32 v{vT+4}, v{vT+5}, 5, v{vT+4}
v_and_b32 v{vT+5}, 3, v{vL}
v_lshl_add_u32 v{vT+4}, v{vT+5}, 3, v{vT+4}
v_lshlrev_b32 v{vT+3}, 5, v{vT+3}
v_and_b32 v{vT+3}, 64, v{vT+3}
v_add_u32 v{vWA}, v{vT+4}, v{vT+3}
v_xor_b32 v{vWA+2}, 64, v{vWA}
v_and_b32 v{vT+3}, 31, v{vL}
s_lshl_b32 s12, s12, 5
v_add_u32 v{vT+3}, s12, v{vT+3}
s_movk_i32 s9, 1792
v_mul_u32_u24 v{vT+3}, s9, v{vT+3}
v_lshl_add_u32 v{vST}, v{vT+2}, 4, v{vT+3}
s_mul_i32 s12, s{sB}, 896
s_lshl_b32 s14, s{sCB}, 7
s_add_u32 s12, s12, s14
s_waitcnt vmcnt(16)
s_barrier""")
    def reads(h):
        st = WF[h & 1]
        for t in range(2):
            for ct in range(2):
                for x in range(2):
                    p(f"ds_read_b64_tr_b16 {vr(st+8*t+4*ct+2*x,2)}, v{vWA+2*ct} offset:{(28*h+16*t+8*x)*128}")
    stamp(p, 2)
    reads(0)
    for h in range(16):
        if h < 15: reads(h + 1)
        if h < 8: oload(h + 8)
        p(f"s_waitcnt vmcnt({16 if h < 8 else 30-2*h}) lgkmcnt({8 if h < 15 else 0})")
        st = WF[h & 1]
        for t in range(2):
            for ct in range(2):
                c = "0" if (h == 0 and t == 0) else vr(AC + 16 * ct, 16)
                p(f"{MFMA} {vr(AC+16*ct,16)}, {vr(st+8*t+4*ct,4)}, {vr(OF+8*(h%NR)+4*t,4)}, {c}")
    stamp(p, 3)
    p("s_nop 10")
    for ct in range(2):
        for j in range(8): p(f"v_cvt_pk_bf16_f32 v{WF[0]+8*ct+j}, v{AC+16*ct+2*j}, v{AC+16*ct+2*j+1}")
        if ct == 1: p("s_nop 0")
    for ct in range(2):
        for gp in range(2):
            b = WF[0] + 8 * ct + 4 * gp
            p(f"v_permlane32_swap_b32 v{b}, v{b+2}\nv_permlane32_swap_b32 v{b+1}, v{b+3}")
            p(f"buffer_store_dwordx4 {vr(b,4)}, v{vST}, s[{OUT}:{OUT+3}], s12 offen offset:{ct*64+gp*32}")
    stamp(p, 4)
    if STAMP: p("s_waitcnt vmcnt(0)")
    stamp(p, 5); stamp_rt(p, 11); stamp_out(p, 2, sWV)
    p.label("k3_end")
    p("s_endpgm")
    return p

def desc(name, nv, ns):
    acc = (nv + 3) // 4 * 4
    return f""".amdhsa_kernel {name}
  .amdhsa_next_free_vgpr {nv}
  .amdhsa_next_free_sgpr {ns}
  .amdhsa_accum_offset {acc}
  .amdhsa_group_segment_fixed_size 0
  .amdhsa_kernarg_size 80
  .amdhsa_user_sgpr_count 2
  .amdhsa_user_sgpr_kernarg_segment_ptr 1
  .amdhsa_system_sgpr_workgroup_id_x 1
.end_amdhsa_kernel
"""

def main(out):
    ks = [("qkv_kernel", k1(), 256, 512, 122880), ("attn_kernel", k2(), 256, 512, 131072), ("oproj_kernel", k3(), 224, 256, 61440)]
    hdr = open(f"cdna_kernels/{NAME}.s.ref").read().split("\n")
    lines = [l for l in hdr if l.startswith(";") and "@launch" not in l and "Override launch" not in l and "grid=ceil" not in l]
    lines = [l for l in lines if l.startswith("; Kernarg") or l.startswith(";   offset")]
    s = "\n".join(lines) + "\n"
    for n, p, g, b, lds in ks: s += f"; @launch kernel={n} grid=({g},1,1) block=({b},1,1) lds={lds}\n"
    s += '.amdgcn_target "amdgcn-amd-amdhsa--gfx950"\n.text\n'
    bad = 0
    for n, p, g, b, lds in ks:
        bad += len(p.check())
        s += f".globl {n}\n.p2align 8\n.type {n},@function\n{n}:\n" + p.text()
    s += '.section .rodata,"a"\n'
    for n, p, g, b, lds in ks:
        nv, ns = p.max_regs()
        print(n, "vgpr", nv, "sgpr", ns, "instr", len(p.L))
        s += ".p2align 6\n" + desc(n, nv, max(ns, 16))
    open(out, "w").write(s)
    print("hazards:", bad)

if __name__ == "__main__":
    main(sys.argv[1] if len(sys.argv) > 1 else f"cdna_kernels/{NAME}.s")
```

```python
import sys, math, struct
sys.path.insert(0, "gen")
from asmlib import Prog, vr, sr

NAME = "concat_heads__mha_block__linear_kernel_hedgehog__prompt"
MB = 1 << 20
Q_OFF, KV_OFF, PQ_OFF, KP_OFF, O_OFF, WS_USED = 0, 2 * MB, 6 * MB, 10 * MB, 12 * MB, 16 * MB
WF_OFF = 8 * MB
X_BYTES, W_BYTES, WO_BYTES, WPHI_BYTES, OUT_BYTES = 2048 * 896, 448 * 2688, 448 * 896, 16 * 1568, 2048 * 1792
LOG2E = 1.4426950408889634
def f32(x): return "0x%08x" % struct.unpack("<I", struct.pack("<f", x))[0]
MFMA = "v_mfma_f32_32x32x16_bf16"

def srd(p, d, base, nbytes):
    p(f"s_mov_b32 s{d}, s{base}\ns_mov_b32 s{d+1}, s{base+1}\ns_mov_b32 s{d+2}, {hex(nbytes)}\ns_mov_b32 s{d+3}, 0x20000")

STAMP = "stamp" in sys.argv[2:]
def stamp(p, i):
    if STAMP: p(f"s_memtime s[{64+2*i}:{65+2*i}]")
def stamp_rt(p, i):
    if STAMP: p(f"s_memrealtime s[{64+2*i}:{65+2*i}]")
def stamp_out(p, kidx, sWV, n=12):
    if not STAMP: return
    p(f"s_waitcnt lgkmcnt(0)\ns_mov_b32 s92, s34\ns_mov_b32 s93, s35\ns_mov_b32 s94, 0x4000000\ns_mov_b32 s95, 0x20000")
    p(f"s_lshl_b32 s90, s2, 4\ns_add_u32 s90, s90, s{sWV}\ns_lshl_b32 s90, s90, 6\ns_add_u32 s90, s90, {32*MB + kidx*MB}\nv_mov_b32 v0, 0")
    for i in range(n):
        p(f"v_mov_b32 v1, s{64+2*i}\nbuffer_store_dword v1, v0, s[92:95], s90 offen offset:{4*i}")

def load_args(p):
    p("s_load_dwordx16 s[16:31], s[0:1], 0\ns_load_dwordx4 s[32:35], s[0:1], 64")

def xhalf(p, op, x, t):
    p(f"v_mov_b32 v{t}, v{x}\ns_nop 1\nv_permlane32_swap_b32 v{x}, v{t}\ns_nop 0\n{op} v{x}, v{x}, v{t}")


OPT = dict(st="sc1", prio=1, rot=1, hw=2, bias=0, pfc=1, pfw=1)
for _a in sys.argv[2:]:
    if "=" in _a:
        _k, _v = _a.split("=", 1); OPT[_k] = _v.replace("+", " ") if _k == "st" else int(_v)
ST = (" " + OPT["st"]) if OPT["st"] else ""

def pk(op, d, a, b, mods=""):
    return f"{op} {vr(d,2)}, {a}, {b} {mods}".rstrip()

def softmax_pm(p, P, OP, OM, T, sUP):
    E = T
    mx, mn, a0, a1, b0, b1, c0, c1, rp, rp2, rm, rm2 = [T + 16 + i for i in range(12)]
    p(f"v_max3_f32 v{mx}, v{P}, v{P+1}, v{P+2}\nv_min3_f32 v{mn}, v{P}, v{P+1}, v{P+2}")
    for j in range(3, 15, 2):
        p(f"v_max3_f32 v{mx}, v{mx}, v{P+j}, v{P+j+1}\nv_min3_f32 v{mn}, v{mn}, v{P+j}, v{P+j+1}")
    p(f"v_max_f32 v{mx}, v{mx}, v{P+15}\nv_min_f32 v{mn}, v{mn}, v{P+15}")
    p(f"v_mov_b32 v{a0}, v{mx}\nv_mov_b32 v{a1}, v{mn}\ns_nop 0")
    p(f"v_permlane32_swap_b32 v{mx}, v{a0}\nv_permlane32_swap_b32 v{mn}, v{a1}\ns_nop 0")
    p(f"v_max_f32 v{mx}, v{mx}, v{a0}\nv_min_f32 v{mn}, v{mn}, v{a1}")
    for j in range(0, 16, 2):
        p(pk("v_pk_add_f32", E + j, vr(mx, 2), vr(P + j, 2), "op_sel:[1,0] op_sel_hi:[1,1] neg_lo:[0,1] neg_hi:[0,1]"))
        p(pk("v_pk_add_f32", P + j, vr(P + j, 2), vr(mx, 2), "op_sel:[0,0] op_sel_hi:[1,0] neg_lo:[0,1] neg_hi:[0,1]"))
    for j in range(16):
        p(f"v_exp_f32 v{E+j}, v{E+j}\nv_exp_f32 v{P+j}, v{P+j}")
    for (B, s, t) in ((E, b0, c0), (P, a0, c0)):
        p(pk("v_pk_add_f32", s, vr(B, 2), vr(B + 2, 2)))
        p(pk("v_pk_add_f32", t, vr(B + 12, 2), vr(B + 14, 2)))
        for j in range(4, 12, 2): p(pk("v_pk_add_f32", s, vr(s, 2), vr(B + j, 2)))
        p(f"v_add_f32 v{t}, v{t}, v{t+1}\nv_add_f32 v{s}, v{s}, v{s+1}\nv_cndmask_b32 v{t}, v{t}, 0, {sr(sUP,2)}\nv_add_f32 v{s}, v{s}, v{t}")
    p(f"v_mov_b32 v{a1}, v{a0}\nv_mov_b32 v{b1}, v{b0}\ns_nop 0")
    p(f"v_permlane32_swap_b32 v{a0}, v{a1}\nv_permlane32_swap_b32 v{b0}, v{b1}\ns_nop 0")
    p(f"v_add_f32 v{a0}, v{a0}, v{a1}\nv_add_f32 v{b0}, v{b0}, v{b1}")
    p(f"v_rcp_f32 v{rp}, v{a0}\nv_rcp_f32 v{rm}, v{b0}\ns_nop 0")
    p(f"v_cndmask_b32 v{rp2}, v{rp}, 0, {sr(sUP,2)}\nv_cndmask_b32 v{rm2}, v{rm}, 0, {sr(sUP,2)}")
    for j in range(0, 16, 2):
        sel = "op_sel:[0,0] op_sel_hi:[1,0]" if j < 12 else "op_sel:[0,1] op_sel_hi:[1,1]"
        p(pk("v_pk_mul_f32", P + j, vr(P + j, 2), vr(rp, 2), sel))
        p(pk("v_pk_mul_f32", E + j, vr(E + j, 2), vr(rm, 2), sel))
    for j in range(8):
        p(f"v_cvt_pk_bf16_f32 v{OP+j}, v{P+2*j}, v{P+2*j+1}\nv_cvt_pk_bf16_f32 v{OM+j}, v{E+2*j}, v{E+2*j+1}")

def k1():
    p = Prog()
    SLOT = 40960; NS = 3
    sB, sRB, sPAIR, sWV = 3, 4, 5, 6
    X, W, WS, WP = 36, 40, 44, 48
    sXO, sWO, sRS, sCNT, sT, sH, sUP = 52, 53, 55, 56, 57, 59, 60
    sM0X, sM0W, sST, sXB, sWB = 62, 63, 54, 58, 51
    vL, vXD, vWD, vXA0, vWA0, vXA, vWA = 1, 2, 6, 12, 16, 17, 21
    vT = 22
    XF = [28, 36]; WF = [44, 56]
    AQ, AK, AV = 68, 100, 132
    WPH = 164
    p("s_cmp_ge_u32 s2, 256\ns_cbranch_scc1 k1_end")
    stamp(p, 0); stamp_rt(p, 10)
    load_args(p)
    p(f"""v_lshrrev_b32 v{vT}, 6, v0
v_and_b32 v{vL}, 63, v0
s_and_b32 s7, s2, 7
s_lshr_b32 s8, s2, 3
v_readfirstlane_b32 s{sWV}, v{vT}
s_lshr_b32 s{sB}, s7, 2
s_bfe_u32 s9, s7, 0x10001
s_lshl_b32 s9, s9, 3
s_lshr_b32 s10, s8, 2
s_add_u32 s{sRB}, s10, s9
s_and_b32 s9, s7, 1
s_lshl_b32 s9, s9, 2
s_and_b32 s11, s8, 3
s_add_u32 s{sPAIR}, s11, s9
s_cmp_lt_u32 s{sWV}, 4
s_cbranch_scc1 k1_compute""")
    p(f"""s_sub_u32 s{sWV}, s{sWV}, 4
s_lshl_b32 s11, s11, 1
s_add_u32 s{sST}, s10, s11
s_cmp_ge_u32 s{sST}, 7
s_cselect_b32 s9, 7, 0
s_sub_u32 s{sST}, s{sST}, s9
s_cmp_ge_u32 s{sST}, 7
s_cselect_b32 s9, 7, 0
s_sub_u32 s{sST}, s{sST}, s9""")
    if not OPT["rot"]: p(f"s_mov_b32 s{sST}, 0")
    p(f"v_lshrrev_b32 v{vT}, 3, v{vL}\nv_and_b32 v{vT+1}, 7, v{vL}\nv_lshrrev_b32 v{vT+2}, 4, v{vL}")
    p(f"s_mul_i32 s7, s{sWV}, {32*896}\ns_movk_i32 s8, 896\nv_mul_u32_u24 v{vT+4}, s8, v{vT}\nv_add_u32 v{vT+4}, s7, v{vT+4}")
    for i in range(2):
        p(f"""v_xor_b32 v{vT+3}, {4*i}, v{vT+2}
v_xor_b32 v{vT+3}, v{vT+3}, v{vT+1}
v_lshl_add_u32 v{vT+3}, v{vT+3}, 4, v{vT+4}
v_add_u32 v{vXD+i}, {8*i*896 - i*1024}, v{vT+3}
v_add_u32 v{vXD+i+2}, {8*(i+2)*896 - (i+2)*1024}, v{vT+3}""")
    p(f"""s_mul_i32 s{sXB}, s{sRB}, {128*896}
s_mul_i32 s{sWB}, s{sPAIR}, 112
s_lshl_b32 s{sM0X}, s{sWV}, 12
s_mul_i32 s{sM0W}, s{sWV}, 6144
s_add_u32 s{sM0W}, s{sM0W}, 16384
s_cmp_eq_u32 s{sB}, 0
s_waitcnt lgkmcnt(0)
s_cselect_b64 s[8:9], s[16:17], s[22:23]
s_cselect_b64 s[10:11], s[18:19], s[24:25]""")
    srd(p, X, 8, X_BYTES); srd(p, W, 10, W_BYTES)
    def stage_off():
        p(f"""s_lshl_b32 s{sXO}, s{sST}, 7
s_add_u32 s{sXO}, s{sXO}, s{sXB}
s_mul_i32 s{sWO}, s{sST}, {64*2688}
s_add_u32 s{sWO}, s{sWO}, s{sWB}
s_add_u32 s{sST}, s{sST}, 1
s_cmp_ge_u32 s{sST}, 7
s_cselect_b32 s{sST}, 0, s{sST}""")
    def dma_x(st):
        p(f"s_add_u32 m0, s{sM0X}, {(st % NS) * SLOT}")
        stage_off()
        for i in range(4):
            p(f"buffer_load_dwordx4 v{vXD+i}, s[{X}:{X+3}], s{sXO} offen offset:{i*1024} lds")
    def dma_w(st, i0, i1):
        for i in range(i0, i1):
            if i == i0 or i == 4: p(f"s_add_u32 m0, s{sM0W}, {(st % NS) * SLOT + (i // 4) * 4096}\ns_nop 0")
            p(f"buffer_load_dwordx4 v{vWD+i}, s[{W}:{W+3}], s{sWO} offen offset:{(i%4)*1024} lds")
    dma_x(0)
    p(f"s_mul_i32 s7, s{sWV}, 48\ns_movk_i32 s8, 171\ns_movk_i32 s9, 2688\ns_movk_i32 s10, 896")
    for i in range(6):
        p(f"""v_add3_u32 v{vT+3}, v{vT}, s7, {8*i}
v_mul_u32_u24 v{vT+4}, s8, v{vT+3}
v_lshrrev_b32 v{vT+4}, 9, v{vT+4}
v_mul_u32_u24 v{vT+5}, 3, v{vT+4}
v_sub_u32 v{vT+3}, v{vT+3}, v{vT+5}
v_mul_u32_u24 v{vT+3}, s10, v{vT+3}
v_mad_u32_u24 v{vT+3}, v{vT+4}, s9, v{vT+3}
v_lshlrev_b32 v{vT+4}, 1, v{vT+4}
v_and_b32 v{vT+4}, 4, v{vT+4}
v_xor_b32 v{vT+4}, v{vT+4}, v{vT+1}
v_lshl_add_u32 v{vT+3}, v{vT+4}, 4, v{vT+3}
v_subrev_u32 v{vWD+i}, {(i%4)*1024}, v{vT+3}""")
    dma_w(0, 0, 6)
    HW = OPT["hw"]
    for b in range(7):
        if b < 6:
            dma_x(b + 1); dma_w(b + 1, 0, HW)
            p(f"s_waitcnt vmcnt({4 + HW})\ns_barrier")
            dma_w(b + 1, HW, 6)
        else:
            p("s_waitcnt vmcnt(0)\ns_barrier")
        if b == 0: stamp(p, 2)
    stamp(p, 3); stamp(p, 6); stamp_rt(p, 11)
    if STAMP: p(f"s_add_u32 s{sWV}, s{sWV}, 4")
    stamp_out(p, 0, sWV)
    p("s_endpgm")
    p.label("k1_compute")
    if OPT["pfc"]:
        p(f"""s_lshr_b32 s8, s2, 3
s_or_b32 s9, s8, s{sWV}
s_lshl_b32 s9, s{sWV}, 5
s_add_u32 s9, s9, s8
s_cmp_ge_u32 s9, 5
s_cbranch_scc1 k1_nopf
s_getpc_b64 s[10:11]
k1_pc:
s_lshl_b32 s9, s9, 13
s_sub_u32 s10, s10, k1_pc-qkv_kernel
s_subb_u32 s11, s11, 0
v_lshlrev_b32 v{vT}, 7, v{vL}
v_add_u32 v{vT}, s9, v{vT}
v_min_u32 v{vT}, code_end-qkv_kernel-4, v{vT}
global_load_dword v247, v{vT}, s[10:11]
k1_nopf:""")
    p(f"""s_and_b32 s7, s{sWV}, 1
s_lshr_b32 s8, s{sWV}, 1
s_lshl_b32 s{sH}, s{sPAIR}, 1
s_add_u32 s{sH}, s{sH}, s8
s_lshl_b32 s7, s7, 13
s_mul_i32 s8, s8, 56
v_and_b32 v{vT}, 31, v{vL}
v_lshrrev_b32 v{vT+1}, 5, v{vL}
v_bfe_u32 v{vT+2}, v{vL}, 1, 3
v_xor_b32 v{vT+2}, v{vT+2}, v{vT+1}
v_lshlrev_b32 v{vT+2}, 4, v{vT+2}
v_lshl_add_u32 v{vT+3}, v{vT}, 7, s7""")
    for kk in range(4):
        p(f"v_xor_b32 v{vT+4}, {32*kk}, v{vT+2}\nv_add_u32 v{vXA0+kk}, v{vT+3}, v{vT+4}")
    p(f"""v_bfe_u32 v{vT+2}, v{vL}, 2, 2
v_lshl_add_u32 v{vT+3}, v{vT+1}, 3, v{vT+2}
s_movk_i32 s9, 384
v_mul_u32_u24 v{vT+3}, s9, v{vT+3}
v_bfe_u32 v{vT+4}, v{vL}, 4, 1
v_lshlrev_b32 v{vT+4}, 5, v{vT+4}
v_and_b32 v{vT+5}, 3, v{vL}
v_lshl_add_u32 v{vT+4}, v{vT+5}, 3, v{vT+4}
v_add_u32 v{vT+4}, s8, v{vT+4}
v_lshlrev_b32 v{vT+2}, 5, v{vT+2}
v_and_b32 v{vT+2}, 64, v{vT+2}
v_xor_b32 v{vT+4}, v{vT+4}, v{vT+2}
v_add_u32 v{vT+3}, v{vT+3}, v{vT+4}
v_add_u32 v{vWA0}, 16384, v{vT+3}
s_mov_b32 s{sUP}, 0
s_mov_b32 s{sUP+1}, -1""")
    for r in range(AQ, AQ + 96): p(f"v_mov_b32 v{r}, 0")
    p(f"s_mov_b32 s{sRS}, 0\ns_mov_b32 s{sCNT}, 0")
    for kk in range(4): p(f"v_mov_b32 v{vXA+kk}, v{vXA0+kk}")
    p(f"v_mov_b32 v{vWA}, v{vWA0}")
    p("s_waitcnt lgkmcnt(0)")
    srd(p, WS, 34, WS_USED); srd(p, WP, 26, WPHI_BYTES)
    p(f"s_cmp_eq_u32 s{sB}, 0\ns_cbranch_scc1 k1_go")
    p(f"""v_add_u32 v{vT+2}, -4, v{vT}
v_cmp_gt_u32 vcc, 28, v{vT}
s_movk_i32 s9, 224
s_mul_i32 s7, s{sH}, 1568
v_cndmask_b32 v{vT+2}, v{vT+2}, v{vT}, vcc
v_lshlrev_b32 v{vT+2}, 1, v{vT+2}
v_mad_u32_u24 v{vT+2}, v{vT+1}, s9, v{vT+2}
v_lshlrev_b32 v{vT+3}, 20, v{vT+1}
v_add_u32 v{vT+3}, v{vT+3}, v{vT+2}""")
    for t in range(2):
        for jj in range(8):
            d = 16 * t + 8 * (jj >> 2) + (jj & 3)
            va = vT + 3 if (t == 1 and jj >= 4) else vT + 2
            p(f"buffer_load_ushort v{WPH+8*t+jj}, v{va}, s[{WP}:{WP+3}], s7 offen offset:{d*56}")
    p.label("k1_go")
    stamp(p, 1)
    p("s_barrier")
    stamp(p, 2)
    def reads(kk, st):
        for a in range(2):
            p(f"ds_read_b128 {vr(XF[st]+4*a,4)}, v{vXA+kk} offset:{4096*a}")
        for seg in range(3):
            for x in range(2):
                p(f"ds_read_b64_tr_b16 {vr(WF[st]+4*seg+2*x,2)}, v{vWA} offset:{(16*kk+4*x)*384+seg*128}")
    def mfmas(st):
        for a in range(2):
            xf = vr(XF[st] + 4 * a, 4)
            p(f"{MFMA} {vr(AQ+16*a,16)}, {vr(WF[st],4)}, {xf}, {vr(AQ+16*a,16)}")
            p(f"{MFMA} {vr(AK+16*a,16)}, {vr(WF[st]+4,4)}, {xf}, {vr(AK+16*a,16)}")
            p(f"{MFMA} {vr(AV+16*a,16)}, {xf}, {vr(WF[st]+8,4)}, {vr(AV+16*a,16)}")
    reads(0, 0)
    p(".p2align 4")
    p.label("k1_loop")
    for kk in range(3):
        reads(kk + 1, (kk + 1) & 1)
        p("s_waitcnt lgkmcnt(8)")
        mfmas(kk & 1)
    p(f"""s_add_u32 s{sRS}, s{sRS}, {SLOT}
s_cmp_ge_u32 s{sRS}, {NS*SLOT}
s_cselect_b32 s{sRS}, 0, s{sRS}
s_add_u32 s{sCNT}, s{sCNT}, 1""")
    for kk in range(4): p(f"v_add_u32 v{vXA+kk}, s{sRS}, v{vXA0+kk}")
    p(f"v_add_u32 v{vWA}, s{sRS}, v{vWA0}")
    p("s_waitcnt lgkmcnt(0)\ns_barrier")
    reads(0, 0)
    mfmas(1)
    p(f"s_cmp_lt_u32 s{sCNT}, 7\ns_cbranch_scc1 k1_loop")
    stamp(p, 3)
    p(f"""s_and_b32 s7, s{sWV}, 1
s_lshl_b32 s8, s{sRB}, 2
s_lshl_b32 s9, s7, 1
s_add_u32 s8, s8, s9
s_lshl_b32 s9, s{sH}, 6
s_add_u32 s8, s8, s9
v_lshlrev_b32 v{vT}, 4, v{vL}
v_and_b32 v{vT+1}, 31, v{vL}
v_mov_b32 v{vT+2}, 0x3f803f80
v_cmp_eq_u32 vcc, 28, v{vT+1}
s_mov_b32 s12, 0xf0000000
s_mov_b32 s13, 0xf0000000
v_cndmask_b32 v{vT+2}, 0, v{vT+2}, vcc
s_lshl_b32 s10, s8, 11
s_waitcnt vmcnt(0) lgkmcnt(0)
s_cmp_eq_u32 s{sB}, 0
s_cbranch_scc0 k1_epiB""")
    PKQ, PKK, PKV = 28, 44, 172
    def pack(dst, acc, scale):
        if scale is not None:
            for j in range(8): p(pk("v_pk_mul_f32", acc + 2 * j, vr(acc + 2 * j, 2), sr(scale, 2)))
        for j in range(8): p(f"v_cvt_pk_bf16_f32 v{dst+j}, v{acc+2*j}, v{acc+2*j+1}")
    def fixV(a):
        p("s_mov_b64 exec, s[12:13]")
        for j in range(8): p(f"v_mov_b32 v{PKV+8*a+j}, v{vT+2}")
        p("s_mov_b64 exec, -1")
    W4 = f"s[{WS}:{WS+3}]"
    c = f32(LOG2E / math.sqrt(28.0))
    p(f"s_mov_b32 s14, {c}\ns_mov_b32 s15, {c}\ns_lshl_b32 s11, s8, 12\ns_add_u32 s11, s11, {KV_OFF}\nv_mov_b32 v{vT+3}, 0x3f80")
    for a in range(2):
        pack(PKK + 8 * a, AK + 16 * a, None)
        p(f"v_cndmask_b32 v{PKK+8*a+6}, v{PKK+8*a+6}, v{vT+3}, {sr(sUP,2)}\nv_cndmask_b32 v{PKK+8*a+7}, v{PKK+8*a+7}, 0, {sr(sUP,2)}")
        for t in range(2): p(f"buffer_store_dwordx4 {vr(PKK+8*a+4*t,4)}, v{vT}, {W4}, s11 offen offset:{t*1024}{ST}")
        pack(PKV + 8 * a, AV + 16 * a, None)
        fixV(a)
        for t in range(2): p(f"buffer_store_dwordx4 {vr(PKV+8*a+4*t,4)}, v{vT}, {W4}, s11 offen offset:{2048+t*1024}{ST}")
        if a == 0: p("s_add_u32 s11, s11, 4096")
    for a in range(2):
        pack(PKQ + 8 * a, AQ + 16 * a, 14)
        p(f"v_cndmask_b32 v{PKQ+8*a+6}, v{PKQ+8*a+6}, 0, {sr(sUP,2)}\nv_cndmask_b32 v{PKQ+8*a+7}, v{PKQ+8*a+7}, 0, {sr(sUP,2)}")
        for t in range(2): p(f"buffer_store_dwordx4 {vr(PKQ+8*a+4*t,4)}, v{vT}, {W4}, s10 offen offset:{a*2048+t*1024}{ST}")
    stamp(p, 5)
    if STAMP: p("s_waitcnt vmcnt(0)")
    stamp(p, 6); stamp_rt(p, 11); stamp_out(p, 0, sWV)
    p("s_endpgm")
    p.label("k1_epiB")
    c = f32(LOG2E)
    p(f"s_mov_b32 s14, {c}\ns_mov_b32 s15, {c}\ns_add_u32 s10, s10, {PQ_OFF}")
    for j in range(8): p(f"v_lshl_or_b32 v{WPH+j}, v{WPH+2*j+1}, 16, v{WPH+2*j}")
    def phi(acc, pkd):
        p(f"{MFMA} {vr(acc,16)}, {vr(WPH,4)}, {vr(pkd,4)}, 0")
        p(f"{MFMA} {vr(acc,16)}, {vr(WPH+4,4)}, {vr(pkd+4,4)}, {vr(acc,16)}")
    pack(PKK, AK, 14); pack(PKK + 8, AK + 16, 14)
    phi(AK, PKK)
    phi(AK + 16, PKK + 8)
    for a in range(2):
        pack(PKQ + 8 * a, AQ + 16 * a, 14)
        for t in range(2): p(f"buffer_store_dwordx4 {vr(PKQ+8*a+4*t,4)}, v{vT}, {W4}, s10 offen offset:{a*2048+t*1024}{ST}")
    p(f"s_add_u32 s11, s{sRB}, s7\ns_cmp_lg_u32 s11, 0\ns_cbranch_scc1 k1_nowf")
    p(f"s_lshl_b32 s11, s{sH}, 11\ns_add_u32 s11, s11, {WF_OFF}")
    for t in range(2): p(f"buffer_store_dwordx4 {vr(WPH+4*t,4)}, v{vT}, {W4}, s11 offen offset:{t*1024}{ST}")
    p.label("k1_nowf")
    TMP = [188, 68]
    OPM = [216, 232]
    KVA = AV
    vWR, vRD = vT + 3, vT + 4
    p(f"""s_mul_i32 s11, s{sWV}, 8704
s_movk_i32 s9, 136
v_lshrrev_b32 v{vT+5}, 5, v{vL}
v_mul_u32_u24 v{vWR}, s9, v{vT+1}
v_add_u32 v{vWR}, s11, v{vWR}
v_lshl_add_u32 v{vWR}, v{vT+5}, 3, v{vWR}
v_bfe_u32 v{vRD}, v{vL}, 2, 2
v_lshl_add_u32 v{vRD}, v{vT+5}, 2, v{vRD}
v_mul_u32_u24 v{vRD}, s9, v{vRD}
v_add_u32 v{vRD}, s11, v{vRD}
v_bfe_u32 v{vT+5}, v{vL}, 4, 1
v_lshl_add_u32 v{vRD}, v{vT+5}, 5, v{vRD}
v_and_b32 v{vT+5}, 3, v{vL}
v_lshl_add_u32 v{vRD}, v{vT+5}, 3, v{vRD}""")
    stamp(p, 4)
    q = [Prog(), Prog()]
    for a in range(2):
        softmax_pm(q[a], AK + 16 * a, OPM[a], OPM[a] + 8, TMP[a], sUP)
        for sg in range(2):
            for g in range(4):
                q[a](f"ds_write_b64 v{vWR}, {vr(OPM[a]+8*sg+2*g,2)} offset:{a*4352+sg*64+g*16}")
    for x, y in zip(q[0].L, q[1].L):
        if x.startswith("s_nop"): continue
        p(x); p(y)
    PFb = [28, 44]
    for a in range(2):
        pack(PKV + 8 * a, AV + 16 * a, None); fixV(a)
    p("s_waitcnt lgkmcnt(0)")
    for a in range(2):
        for sg in range(2):
            for u in range(2):
                for x in range(2):
                    p(f"ds_read_b64_tr_b16 {vr(PFb[a]+8*sg+4*u+2*x,2)}, v{vRD} offset:{a*4352+(16*u+8*x)*136+sg*64}")
    p(f"""s_lshl_b32 s11, s{sWV}, 12
s_add_u32 s11, s11, 40960
s_xor_b32 s9, s11, 4096
v_add_u32 v{vWR}, s11, v{vT}
v_add_u32 v{vT+5}, s9, v{vT}
s_lshl_b32 s9, s{sH}, 4
s_add_u32 s9, s9, s{sRB}
s_lshl_b32 s9, s9, 1
s_add_u32 s9, s9, s7
s_lshl_b32 s9, s9, 12
s_add_u32 s9, s9, {KP_OFF}
s_cmp_eq_u32 s7, 0
s_cbranch_scc1 k1_x0""")
    for sel, lab in ((1, None), (0, "k1_x0")):
        if lab: p.label(lab)
        keep, send = KVA + 16 * sel, KVA + 16 * (1 - sel)
        p("s_waitcnt lgkmcnt(0)")
        for sg in (1 - sel, sel):
            for a in range(2):
                for u in range(2):
                    c = "0" if (a == 0 and u == 0) else vr(KVA + 16 * sg, 16)
                    p(f"{MFMA} {vr(KVA+16*sg,16)}, {vr(PFb[a]+8*sg+4*u,4)}, {vr(PKV+8*a+4*u,4)}, {c}")
        p("s_nop 7")
        for q4 in range(4): p(f"ds_write_b128 v{vWR}, {vr(send+4*q4,4)} offset:{q4*1024}")
        p("s_waitcnt lgkmcnt(0)\ns_barrier")
        for q4 in range(4): p(f"ds_read_b128 {vr(TMP[0]+4*q4,4)}, v{vT+5} offset:{q4*1024}")
        for q4 in range(4):
            p(f"s_waitcnt lgkmcnt({3-q4})")
            for i in range(0, 4, 2): p(pk("v_pk_add_f32", keep + 4 * q4 + i, vr(keep + 4 * q4 + i, 2), vr(TMP[0] + 4 * q4 + i, 2)))
            p(f"buffer_store_dwordx4 {vr(keep+4*q4,4)}, v{vT}, {W4}, s9 offen offset:{q4*1024}{ST}")
        stamp(p, 5)
        if STAMP: p("s_waitcnt vmcnt(0)")
        stamp(p, 6); stamp_rt(p, 11); stamp_out(p, 0, sWV)
        p("s_endpgm")
    p.label("k1_end")
    p("s_endpgm")
    return p

def k2():
    p = Prog()
    SLOT = 32768
    sH, sQB, sWV, sTILE, sHALF = 3, 4, 5, 6, 7
    WS = 36
    sKO, sRET, sCNT, sPO, sUP, sM0 = 40, 41, 43, 44, 46, 48
    vL16, vRA, vRB, vTHR, vNM = 1, 2, 3, 5, 6
    vT = 8
    S = [16, 32]; O = 48; K = 64; V0 = [72, 76]; V1 = 80; Q = 84; P = 92; PH = 100; PA = 116; PL = 120
    p("s_cmp_ge_u32 s2, 256\ns_cbranch_scc1 k2_end")
    stamp(p, 0); stamp_rt(p, 10)
    p("s_load_dwordx2 s[34:35], s[0:1], 72")
    if OPT["pfw"]: p("s_load_dwordx2 s[50:51], s[0:1], 16\ns_load_dwordx2 s[52:53], s[0:1], 48")
    p(f"""v_lshrrev_b32 v{vT}, 6, v0
v_and_b32 v{vL16}, 63, v0
s_and_b32 s8, s2, 7
s_bfe_u32 s9, s2, 0x10003
v_readfirstlane_b32 s{sWV}, v{vT}
s_lshl_b32 s{sH}, s8, 1
s_add_u32 s{sH}, s{sH}, s9
s_lshr_b32 s{sQB}, s2, 4
v_lshlrev_b32 v{vL16}, 4, v{vL16}
s_and_b32 s8, s{sWV}, 3
s_lshr_b32 s{sHALF}, s{sWV}, 2
s_lshl_b32 s{sTILE}, s{sQB}, 2
s_add_u32 s{sTILE}, s{sTILE}, s8
s_lshl_b32 s9, s{sH}, 6
s_lshl_b32 s10, s{sHALF}, 5
s_add_u32 s10, s10, s8
s_add_u32 s10, s10, s9
s_lshl_b32 s{sKO}, s10, 12
s_add_u32 s{sKO}, s{sKO}, {KV_OFF}
s_lshl_b32 s{sM0}, s{sWV}, 12
s_add_u32 s9, s9, s{sTILE}
s_lshl_b32 s10, s9, 11
s_add_u32 s11, s10, {PQ_OFF}
s_lshl_b32 s12, s{sH}, 11
s_add_u32 s12, s12, {WF_OFF}
s_lshl_b32 s{sPO}, s{sH}, 17
s_lshl_b32 s13, s{sWV}, 10
s_add_u32 s{sPO}, s{sPO}, s13
s_add_u32 s{sPO}, s{sPO}, {KP_OFF}
s_mov_b32 s{sUP}, 0
s_mov_b32 s{sUP+1}, -1
s_mov_b32 s{WS+2}, {hex(WS_USED)}
s_mov_b32 s{WS+3}, 0x20000
s_mov_b32 m0, s{sM0}
s_cmp_eq_u32 s{sHALF}, 0
s_waitcnt lgkmcnt(0)
s_mov_b32 s{WS}, s34
s_mov_b32 s{WS+1}, s35
s_cbranch_scc1 k2_noph""")
    W4 = f"s[{WS}:{WS+3}]"
    def dma_piece(f): p(f"buffer_load_dwordx4 v{vL16}, {W4}, s{sKO} offen offset:{f*1024} lds")
    def dma_stage(st):
        p(f"s_add_u32 m0, s{sM0}, {(st % 4) * SLOT}\ns_add_u32 s{sKO}, s{sKO}, 16384")
    def part_loads():
        p(f"buffer_load_dwordx4 {vr(PL,4)}, v{vL16}, {W4}, s{sPO} offen")
        p(f"buffer_load_dwordx4 {vr(PL+4,4)}, v{vT+7}, {W4}, s{sPO} offen\ns_add_u32 s{sPO}, s{sPO}, 16384")
    def part_adds():
        for i in range(0, 4, 2): p(pk("v_pk_add_f32", PA + i, vr(PA + i, 2), vr(PL + i, 2)))
        for i in range(0, 4, 2): p(pk("v_pk_add_f32", PA + i, vr(PA + i, 2), vr(PL + 4 + i, 2)))
    for t in range(2):
        p(f"buffer_load_dwordx4 {vr(K+4*t,4)}, v{vL16}, {W4}, s11 offen offset:{t*1024}")
        p(f"buffer_load_dwordx4 {vr(K+8+4*t,4)}, v{vL16}, {W4}, s12 offen offset:{t*1024}")
    p.label("k2_noph")
    for f in range(4): dma_piece(f)
    for t in range(2):
        p(f"buffer_load_dwordx4 {vr(Q+4*t,4)}, v{vL16}, {W4}, s10 offen offset:{t*1024}")
    dma_stage(1)
    p(f"v_add_u32 v{vT+7}, 8192, v{vL16}")
    for f in range(4): dma_piece(f)
    part_loads()
    dma_stage(2)
    for f in range(2): dma_piece(f)
    stamp(p, 1)
    p(f"s_cmp_eq_u32 s{sHALF}, 0\ns_cbranch_scc1 k2_init")
    p("s_waitcnt vmcnt(14)")
    p(f"{MFMA} {vr(S[0],16)}, {vr(K+8,4)}, {vr(K,4)}, 0\n{MFMA} {vr(S[0],16)}, {vr(K+12,4)}, {vr(K+4,4)}, {vr(S[0],16)}\ns_nop 11")
    softmax_pm(p, S[0], PH, PH + 8, S[1], sUP)
    p.label("k2_init")
    p(f"""s_lshl_b32 s8, s{sHALF}, 14
v_add_u32 v{vRA}, s8, v{vL16}
v_add_u32 v{vRB}, 0x10000, v{vRA}
v_mov_b32 v{vTHR}, 0x7f800000
v_mov_b32 v{vT+2}, {f32(2.0**60)}
v_cndmask_b32 v{vTHR}, v{vTHR}, v{vT+2}, {sr(sUP,2)}""")
    for j in range(4): p(f"v_mov_b32 v{PA+j}, 0")
    for j in range(16): p(f"v_mov_b32 v{O+j}, 0")
    p("s_waitcnt vmcnt(8)\ns_barrier")
    stamp(p, 3)
    def rd(dst, i, frag):
        st, tl = divmod(i, 4)
        base = vRA if (st % 4) < 2 else vRB
        p(f"ds_read_b128 {vr(dst,4)}, v{base} offset:{(st & 1) * SLOT + tl * 4096 + frag * 1024}")
    rd(K, 0, 0); rd(K + 4, 0, 1); rd(V0[0], 0, 2)
    p("s_waitcnt lgkmcnt(2)")
    p(f"{MFMA} {vr(S[0],16)}, {vr(K,4)}, {vr(Q,4)}, 0\ns_waitcnt lgkmcnt(1)\n{MFMA} {vr(S[0],16)}, {vr(K+4,4)}, {vr(Q+4,4)}, {vr(S[0],16)}")
    rd(K, 1, 0); rd(K + 4, 1, 1)
    p("s_nop 9")
    p(f"v_max3_f32 v{vT}, v{S[0]}, v{S[0]+1}, v{S[0]+2}\nv_max3_f32 v{vT+1}, v{S[0]+3}, v{S[0]+4}, v{S[0]+5}")
    for j in range(6, 14, 4): p(f"v_max3_f32 v{vT}, v{vT}, v{S[0]+j}, v{S[0]+j+1}\nv_max3_f32 v{vT+1}, v{vT+1}, v{S[0]+j+2}, v{S[0]+j+3}")
    p(f"v_max3_f32 v{vT}, v{vT}, v{S[0]+14}, v{S[0]+15}\nv_max_f32 v{vT}, v{vT}, v{vT+1}")
    xhalf(p, "v_max_f32", vT, vT + 1)
    if OPT["bias"]: p(f"v_add_f32 v{vT}, {f32(float(OPT['bias']))}, v{vT}")
    p(f"v_cvt_pk_bf16_f32 v{vT}, -v{vT}, 0\nv_lshlrev_b32 v{vNM}, 16, v{vT}\nv_cndmask_b32 v{Q+6}, v{Q+6}, v{vT}, {sr(sUP,2)}")
    for j in range(0, 16, 2): p(pk("v_pk_add_f32", S[0] + j, vr(S[0] + j, 2), vr(vNM, 2), "op_sel_hi:[1,0]"))
    stamp(p, 4)
    if OPT["pfw"]:
        p(f"""s_cmp_ge_u32 s{sWV}, 2
s_cbranch_scc1 k2_nopf
s_bitcmp1_b32 s2, 2
s_cselect_b64 s[52:53], s[52:53], s[50:51]
s_mov_b32 s54, {WO_BYTES}
s_mov_b32 s55, 0x20000
s_lshr_b32 s8, s2, 3
s_lshl_b32 s8, s8, 1
s_add_u32 s8, s8, s{sWV}
s_lshl_b32 s8, s8, 13
v_lshlrev_b32 v{vT}, 3, v{vL16}
buffer_load_dword v4, v{vT}, s[52:55], s8 offen
k2_nopf:""")
    CHECK = (0, 1, 3, 5)
    PR = OPT["prio"]
    for i in range(32):
        s, j = divmod(i, 4)
        Sc, Sn = S[i & 1], S[(i + 1) & 1]
        e = lambda n: p(f"v_exp_f32 v{Sc+n}, v{Sc+n}")
        c = lambda n: p(f"v_cvt_pk_bf16_f32 v{P+n}, v{Sc+2*n}, v{Sc+2*n+1}")
        e(0); e(1)
        p("s_waitcnt lgkmcnt(0)")
        if i > 0: p(f"{MFMA} {vr(O,16)}, {vr(V1,4)}, {vr(P+4,4)}, {vr(O,16)}")
        rd(V1, i, 3)
        e(2); e(3); c(0); e(4); c(1); e(5)
        if i < 31: p(f"{MFMA} {vr(Sn,16)}, {vr(K,4)}, {vr(Q,4)}, 0")
        if PR: p("s_setprio 0")
        e(6); e(7); c(2); e(8); c(3); e(9)
        if i < 31: p(f"{MFMA} {vr(Sn,16)}, {vr(K+4,4)}, {vr(Q+4,4)}, {vr(Sn,16)}")
        if j == 2 and s < 7:
            if s + 3 <= 7: dma_stage(s + 3)
            p(f"s_waitcnt vmcnt({4 if s < 6 else 0})\ns_barrier")
        if i + 2 < 32: rd(K, i + 2, 0); rd(K + 4, i + 2, 1)
        if PR: p("s_setprio 1")
        if i + 1 < 32: rd(V0[(i + 1) & 1], i + 1, 2)
        if j == 2 and s < 7:
            part_adds(); part_loads()
        e(10); e(11); c(4); e(12); c(5); e(13)
        if j == 3 and s in CHECK: p(f"v_cmp_gt_f32 vcc, v{O+12}, v{vTHR}")
        p(f"{MFMA} {vr(O,16)}, {vr(V0[i&1],4)}, {vr(P,4)}, {vr(O,16)}")
        ds = s + 3 if j >= 2 else s + 2
        if ds <= 7: dma_piece((j + 2) % 4)
        e(14); e(15); c(6); c(7)
        if j == 3 and s in CHECK:
            p(f"s_cbranch_vccnz k2_rs{s}")
            p.label(f"k2_cont{s}")
    stamp(p, 5)
    p("s_setprio 0\ns_waitcnt vmcnt(0) lgkmcnt(0)")
    p(f"{MFMA} {vr(O,16)}, {vr(V1,4)}, {vr(P+4,4)}, {vr(O,16)}")
    part_adds()
    p(f"""v_lshrrev_b32 v{vT+1}, 1, v{vL16}
v_add_u32 v{vT}, s{sM0}, v{vT+1}
v_cvt_pk_bf16_f32 v{PA}, v{PA}, v{PA+1}
v_cvt_pk_bf16_f32 v{PA+1}, v{PA+2}, v{PA+3}
s_lshl_b32 s8, s{sTILE}, 4
s_add_u32 s8, s8, s{sH}
s_lshl_b32 s8, s8, 11
s_add_u32 s8, s8, {O_OFF}
s_or_b32 s9, s{sM0}, 16384
v_add_u32 v{vT+2}, s9, v{vL16}
ds_write_b64 v{vT}, {vr(PA,2)}
s_cmp_eq_u32 s{sHALF}, 0
s_cbranch_scc1 k2_fin""")
    p(f"ds_write_b32 v{vT+2}, v{vNM} offset:1024")
    for q in range(4): p(f"ds_write_b128 v{vT+2}, {vr(O+4*q,4)} offset:{SLOT+q*1024}")
    p("s_waitcnt lgkmcnt(0)\ns_barrier")
    stamp(p, 6)
    for f in range(4):
        for x in range(2): p(f"ds_read_b64 {vr(16+4*f+2*x,2)}, v{vT+1} offset:{(2*f+x)*4096}")
    p(f"s_add_u32 s8, s8, {2*MB}")
    for f in range(4):
        p(f"s_waitcnt lgkmcnt({6-2*f})")
        p(f"{MFMA} v[32:47], {vr(16+4*f,4)}, {vr(PH+4*f,4)}, {'0' if f == 0 else 'v[32:47]'}")
    p(f"s_nop 11\nv_mov_b32 v{vT+2}, v44\nv_mov_b32 v{vT+3}, v44\ns_nop 1\nv_permlane32_swap_b32 v{vT+2}, v{vT+3}\ns_nop 0")
    p(f"v_add_f32 v{vT+2}, {f32(1e-6)}, v{vT+3}\nv_rcp_f32 v{vT+2}, v{vT+2}\ns_nop 0")
    for j in range(0, 16, 2): p(pk("v_pk_mul_f32", 32 + j, vr(32 + j, 2), vr(vT + 2, 2), "op_sel_hi:[1,0]"))
    for j in range(8): p(f"v_cvt_pk_bf16_f32 v{16+j}, v{32+2*j}, v{33+2*j}")
    p(f"v_cndmask_b32 v22, v22, 0, {sr(sUP,2)}\nv_cndmask_b32 v23, v23, 0, {sr(sUP,2)}")
    for t in range(2): p(f"buffer_store_dwordx4 {vr(16+4*t,4)}, v{vL16}, {W4}, s8 offen offset:{t*1024}{ST}")
    stamp(p, 7)
    if STAMP: p("s_waitcnt vmcnt(0)")
    stamp(p, 8); stamp_rt(p, 11); stamp_out(p, 1, sWV)
    p("s_endpgm")
    p.label("k2_fin")
    p("s_waitcnt lgkmcnt(0)\ns_barrier")
    stamp(p, 6)
    p(f"ds_read_b32 v{vT+7}, v{vT+2} offset:1024")
    for q in range(4): p(f"ds_read_b128 {vr(16+4*q,4)}, v{vT+2} offset:{SLOT+q*1024}")
    p(f"""v_mov_b32 v{vT}, {f32(2.0**-120)}
v_mov_b32 v{vT+1}, {f32(2.0**120)}
s_waitcnt lgkmcnt(4)
v_min_f32 v{vT+3}, v{vNM}, v{vT+7}
v_sub_f32 v{vT+4}, v{vT+3}, v{vNM}
v_sub_f32 v{vT+6}, v{vT+3}, v{vT+7}
v_exp_f32 v{vT+4}, v{vT+4}
v_exp_f32 v{vT+6}, v{vT+6}""")
    for j in range(0, 16, 2): p(pk("v_pk_mul_f32", O + j, vr(O + j, 2), vr(vT + 4, 2), "op_sel_hi:[1,0]"))
    for q in (3, 0, 1, 2):
        if q == 3: p("s_waitcnt lgkmcnt(0)")
        for j in range(4 * q, 4 * q + 4, 2):
            p(f"v_pk_fma_f32 {vr(O+j,2)}, {vr(16+j,2)}, {vr(vT+6,2)}, {vr(O+j,2)} op_sel_hi:[1,0,1]")
        if q == 3: p(f"v_mov_b32 v{vT+4}, v{O+12}\nv_mov_b32 v{vT+5}, v{O+12}")
    p(f"v_permlane32_swap_b32 v{vT+4}, v{vT+5}\ns_nop 0\nv_rcp_f32 v{vT+4}, v{vT+5}")
    p(f"v_cmp_nlt_f32 vcc, v{vT}, v{vT+5}\nv_cmp_nlt_f32 s[10:11], v{vT+5}, v{vT+1}")
    p(f"v_maximum3_f32 v{vT+2}, abs(v{O}), abs(v{O+1}), abs(v{O+2})")
    for j in range(3, 15, 2): p(f"v_maximum3_f32 v{vT+2}, v{vT+2}, abs(v{O+j}), abs(v{O+j+1})")
    p(f"v_maximum3_f32 v{vT+2}, v{vT+2}, abs(v{O+15}), abs(v{O+15})\ns_or_b64 s[10:11], vcc, s[10:11]")
    p(f"v_cmp_nlt_f32 vcc, v{vT+2}, v{vT+1}")
    for j in range(0, 16, 2): p(pk("v_pk_mul_f32", O + j, vr(O + j, 2), vr(vT + 4, 2), "op_sel_hi:[1,0]"))
    p("s_or_b64 vcc, vcc, s[10:11]\ns_cbranch_vccnz k2_slow")
    p.label("k2_out")
    for j in range(8): p(f"v_cvt_pk_bf16_f32 v{16+j}, v{O+2*j}, v{O+2*j+1}")
    p(f"v_cndmask_b32 v22, v22, 0, {sr(sUP,2)}\nv_cndmask_b32 v23, v23, 0, {sr(sUP,2)}")
    for t in range(2): p(f"buffer_store_dwordx4 {vr(16+4*t,4)}, v{vL16}, {W4}, s8 offen offset:{t*1024}{ST}")
    stamp(p, 7)
    if STAMP: p("s_waitcnt vmcnt(0)")
    stamp(p, 8); stamp_rt(p, 11); stamp_out(p, 1, sWV)
    p("s_endpgm")
    for s in CHECK:
        p.label(f"k2_rs{s}")
        p(f"s_mov_b32 s{sRET}, {s}\ns_branch k2_rescale")
    p.label("k2_rescale")
    p("s_waitcnt lgkmcnt(0)")
    p(f"{MFMA} {vr(O,16)}, {vr(V1,4)}, {vr(P+4,4)}, {vr(O,16)}\ns_nop 11")
    p(f"v_mov_b32 v{vT}, v{O+12}\nv_mov_b32 v{vT+1}, v{O+12}")
    for j in range(4): p(f"v_mov_b32 v{P+4+j}, 0")
    p(f"""v_permlane32_swap_b32 v{vT}, v{vT+1}
s_nop 0
v_frexp_exp_i32_f32 v{vT}, v{vT+1}
v_max_i32 v{vT}, 0, v{vT}
v_cvt_f32_i32 v{vT}, v{vT}
v_sub_f32 v{vT}, v{vNM}, v{vT}
v_cvt_pk_bf16_f32 v{vT}, v{vT}, 0
v_lshlrev_b32 v{vT+1}, 16, v{vT}
v_cndmask_b32 v{Q+6}, v{Q+6}, v{vT}, {sr(sUP,2)}
v_sub_f32 v{vT}, v{vT+1}, v{vNM}
v_mov_b32 v{vNM}, v{vT+1}
v_exp_f32 v{vT+1}, v{vT}""")
    for j in range(16): p(f"v_add_f32 v{S[0]+j}, v{S[0]+j}, v{vT}")
    for j in range(16): p(f"v_mul_f32 v{O+j}, v{O+j}, v{vT+1}")
    for s in CHECK[:-1]: p(f"s_cmp_eq_u32 s{sRET}, {s}\ns_cbranch_scc1 k2_cont{s}")
    p(f"s_branch k2_cont{CHECK[-1]}")
    p.label("k2_slow")
    p(f"""s_lshl_b32 s{sKO}, s{sH}, 18
s_add_u32 s{sKO}, s{sKO}, {KV_OFF}
s_mov_b32 s{sCNT}, 0
v_cndmask_b32 v{Q+6}, v{Q+6}, 0, {sr(sUP,2)}
v_mov_b32 v{vNM}, 0xff7fffff""")
    for j in range(16): p(f"v_mov_b32 v{O+j}, 0")
    p.label("k2_sloop")
    for f in range(4): p(f"buffer_load_dwordx4 {vr(K+4*f,4)}, v{vL16}, {W4}, s{sKO} offen offset:{f*1024}")
    p(f"s_add_u32 s{sKO}, s{sKO}, 4096\ns_add_u32 s{sCNT}, s{sCNT}, 1\ns_waitcnt vmcnt(0)")
    p(f"{MFMA} {vr(S[0],16)}, {vr(K,4)}, {vr(Q,4)}, 0\n{MFMA} {vr(S[0],16)}, {vr(K+4,4)}, {vr(Q+4,4)}, {vr(S[0],16)}\ns_nop 11")
    p(f"v_max3_f32 v{vT}, v{S[0]}, v{S[0]+1}, v{vNM}")
    for j in range(2, 16, 2): p(f"v_max3_f32 v{vT}, v{vT}, v{S[0]+j}, v{S[0]+j+1}")
    xhalf(p, "v_max_f32", vT, vT + 1)
    p(f"v_sub_f32 v{vT+1}, v{vNM}, v{vT}\nv_mov_b32 v{vNM}, v{vT}\nv_exp_f32 v{vT+1}, v{vT+1}")
    for j in range(16): p(f"v_sub_f32 v{S[0]+j}, v{S[0]+j}, v{vT}")
    for j in range(16): p(f"v_exp_f32 v{S[0]+j}, v{S[0]+j}")
    for j in range(16): p(f"v_mul_f32 v{O+j}, v{O+j}, v{vT+1}")
    for j in range(8): p(f"v_cvt_pk_bf16_f32 v{P+j}, v{S[0]+2*j}, v{S[0]+2*j+1}")
    p("s_nop 1")
    p(f"{MFMA} {vr(O,16)}, {vr(K+8,4)}, {vr(P,4)}, {vr(O,16)}\n{MFMA} {vr(O,16)}, {vr(K+12,4)}, {vr(P+4,4)}, {vr(O,16)}")
    p(f"s_cmp_lt_u32 s{sCNT}, 64\ns_cbranch_scc1 k2_sloop")
    p(f"s_nop 11\nv_mov_b32 v{vT}, v{O+12}\nv_mov_b32 v{vT+1}, v{O+12}\ns_nop 1\nv_permlane32_swap_b32 v{vT}, v{vT+1}\ns_nop 0\nv_rcp_f32 v{vT+1}, v{vT+1}\ns_nop 0")
    for j in range(16): p(f"v_mul_f32 v{O+j}, v{O+j}, v{vT+1}")
    p("s_branch k2_out")
    p.label("k2_end")
    p("s_endpgm")
    return p

def k3():
    p = Prog()
    sB, sRB, sCB, sWV = 3, 4, 5, 6
    WO, WS, OUT = 36, 40, 44
    vL, vT = 1, 2
    vWA, vST = 8, 9
    WF = [12, 28]
    AC = 44
    OF = 76
    NR = 9
    p("s_cmp_ge_u32 s2, 224\ns_cbranch_scc1 k3_end")
    stamp(p, 0); stamp_rt(p, 10)
    load_args(p)
    p(f"""v_lshrrev_b32 v{vT}, 6, v0
v_and_b32 v{vL}, 63, v0
s_and_b32 s7, s2, 7
s_lshr_b32 s8, s2, 3
v_readfirstlane_b32 s{sWV}, v{vT}
s_lshr_b32 s{sB}, s7, 2
s_mul_i32 s9, s8, 37
s_lshr_b32 s9, s9, 8
s_mul_i32 s10, s9, 7
s_sub_u32 s{sCB}, s8, s10
s_and_b32 s7, s7, 3
s_lshl_b32 s7, s7, 2
s_add_u32 s{sRB}, s7, s9
v_lshrrev_b32 v{vT}, 3, v{vL}
v_and_b32 v{vT+1}, 7, v{vL}
v_lshlrev_b32 v{vT+2}, 1, v{vT}
v_and_b32 v{vT+2}, 4, v{vT+2}
v_xor_b32 v{vT+1}, v{vT+1}, v{vT+2}
v_lshlrev_b32 v{vT+1}, 4, v{vT+1}
s_movk_i32 s9, 896
v_mad_u32_u24 v{vT}, v{vT}, s9, v{vT+1}
v_lshlrev_b32 v{vT+1}, 4, v{vL}
s_mul_i32 s10, s{sWV}, {15*8*896}
s_lshl_b32 s11, s{sCB}, 7
s_add_u32 s10, s10, s11
s_mul_i32 s11, s{sWV}, {15*1024}
s_lshl_b32 s12, s{sRB}, 2
s_add_u32 s12, s12, s{sWV}
s_lshl_b32 s13, s12, 15
s_lshl_b32 s14, s{sB}, 21
s_add_u32 s13, s13, s14
s_add_u32 s13, s13, {O_OFF}
s_cmp_eq_u32 s{sB}, 0
s_waitcnt lgkmcnt(0)
s_cselect_b64 s[8:9], s[20:21], s[28:29]""")
    srd(p, WO, 8, WO_BYTES); srd(p, WS, 34, WS_USED); srd(p, OUT, 30, OUT_BYTES)
    for i in range(15):
        p(f"s_mov_b32 m0, s11\ns_add_u32 s11, s11, 1024\nbuffer_load_dwordx4 v{vT}, s[{WO}:{WO+3}], s10 offen lds\ns_add_u32 s10, s10, {8*896}")
    def oload(h):
        for t in range(2):
            p(f"buffer_load_dwordx4 {vr(OF+8*(h%NR)+4*t,4)}, v{vT+1}, s[{WS}:{WS+3}], s13 offen offset:{(h&1)*2048+t*1024}")
        if h & 1: p("s_add_u32 s13, s13, 4096")
    for h in range(8): oload(h)
    stamp(p, 1)
    p(f"""v_lshrrev_b32 v{vT+2}, 5, v{vL}
v_bfe_u32 v{vT+3}, v{vL}, 2, 2
v_lshl_add_u32 v{vT+4}, v{vT+2}, 2, v{vT+3}
v_lshlrev_b32 v{vT+4}, 7, v{vT+4}
v_bfe_u32 v{vT+5}, v{vL}, 4, 1
v_lshl_add_u32 v{vT+4}, v{vT+5}, 5, v{vT+4}
v_and_b32 v{vT+5}, 3, v{vL}
v_lshl_add_u32 v{vT+4}, v{vT+5}, 3, v{vT+4}
v_lshlrev_b32 v{vT+3}, 5, v{vT+3}
v_and_b32 v{vT+3}, 64, v{vT+3}
v_add_u32 v{vWA}, v{vT+4}, v{vT+3}
v_xor_b32 v{vWA+2}, 64, v{vWA}
v_and_b32 v{vT+3}, 31, v{vL}
s_lshl_b32 s12, s12, 5
v_add_u32 v{vT+3}, s12, v{vT+3}
s_movk_i32 s9, 1792
v_mul_u32_u24 v{vT+3}, s9, v{vT+3}
v_lshl_add_u32 v{vST}, v{vT+2}, 4, v{vT+3}
s_mul_i32 s12, s{sB}, 896
s_lshl_b32 s14, s{sCB}, 7
s_add_u32 s12, s12, s14
s_waitcnt vmcnt(16)
s_barrier""")
    def reads(h):
        st = WF[h & 1]
        for t in range(2):
            for ct in range(2):
                for x in range(2):
                    p(f"ds_read_b64_tr_b16 {vr(st+8*t+4*ct+2*x,2)}, v{vWA+2*ct} offset:{(28*h+16*t+8*x)*128}")
    stamp(p, 2)
    reads(0)
    for h in range(16):
        if h < 15: reads(h + 1)
        if h < 8: oload(h + 8)
        p(f"s_waitcnt vmcnt({16 if h < 8 else 30-2*h}) lgkmcnt({8 if h < 15 else 0})")
        st = WF[h & 1]
        for t in range(2):
            for ct in range(2):
                c = "0" if (h == 0 and t == 0) else vr(AC + 16 * ct, 16)
                p(f"{MFMA} {vr(AC+16*ct,16)}, {vr(st+8*t+4*ct,4)}, {vr(OF+8*(h%NR)+4*t,4)}, {c}")
    stamp(p, 3)
    p("s_nop 10")
    for ct in range(2):
        for j in range(8): p(f"v_cvt_pk_bf16_f32 v{WF[0]+8*ct+j}, v{AC+16*ct+2*j}, v{AC+16*ct+2*j+1}")
        if ct == 1: p("s_nop 0")
    for ct in range(2):
        for gp in range(2):
            b = WF[0] + 8 * ct + 4 * gp
            p(f"v_permlane32_swap_b32 v{b}, v{b+2}\nv_permlane32_swap_b32 v{b+1}, v{b+3}")
            p(f"buffer_store_dwordx4 {vr(b,4)}, v{vST}, s[{OUT}:{OUT+3}], s12 offen offset:{ct*64+gp*32}")
    stamp(p, 4)
    if STAMP: p("s_waitcnt vmcnt(0)")
    stamp(p, 5); stamp_rt(p, 11); stamp_out(p, 2, sWV)
    p.label("k3_end")
    p("s_endpgm")
    return p

def desc(name, nv, ns):
    acc = (nv + 3) // 4 * 4
    return f""".amdhsa_kernel {name}
  .amdhsa_next_free_vgpr {nv}
  .amdhsa_next_free_sgpr {ns}
  .amdhsa_accum_offset {acc}
  .amdhsa_group_segment_fixed_size 0
  .amdhsa_kernarg_size 80
  .amdhsa_user_sgpr_count 2
  .amdhsa_user_sgpr_kernarg_segment_ptr 1
  .amdhsa_system_sgpr_workgroup_id_x 1
.end_amdhsa_kernel
"""

def main(out):
    ks = [("qkv_kernel", k1(), 256, 512, 122880), ("attn_kernel", k2(), 256, 512, 131072), ("oproj_kernel", k3(), 224, 256, 61440)]
    hdr = open(f"cdna_kernels/{NAME}.s.ref").read().split("\n")
    lines = [l for l in hdr if l.startswith(";") and "@launch" not in l and "Override launch" not in l and "grid=ceil" not in l]
    lines = [l for l in lines if l.startswith("; Kernarg") or l.startswith(";   offset")]
    s = "\n".join(lines) + "\n"
    for n, p, g, b, lds in ks: s += f"; @launch kernel={n} grid=({g},1,1) block=({b},1,1) lds={lds}\n"
    s += '.amdgcn_target "amdgcn-amd-amdhsa--gfx950"\n.text\n'
    bad = 0
    for n, p, g, b, lds in ks:
        bad += len(p.check())
        s += f".globl {n}\n.p2align 8\n.type {n},@function\n{n}:\n" + p.text()
    s += 'code_end:\n.section .rodata,"a"\n'
    for n, p, g, b, lds in ks:
        nv, ns = p.max_regs()
        print(n, "vgpr", nv, "sgpr", ns, "instr", len(p.L))
        s += ".p2align 6\n" + desc(n, nv, max(ns, 16))
    open(out, "w").write(s)
    print("hazards:", bad)

if __name__ == "__main__":
    main(sys.argv[1] if len(sys.argv) > 1 else f"cdna_kernels/{NAME}.s")
```

```python
import sys, math, struct
sys.path.insert(0, "gen")
from asmlib import Prog, vr, sr

NAME = "concat_heads__mha_block__linear_kernel_hedgehog__prompt"
KNAME = NAME + "_kernel"
MB = 1 << 20
Q_OFF, KV_OFF, PQ_OFF, FL_OFF, KP_OFF, O_OFF, WS_USED = 0, 2 * MB, 6 * MB, 9 * MB, 10 * MB, 12 * MB, 16 * MB
FKV, FQ, FB, FQB, FR, FO = [FL_OFF + 4096 * i for i in range(6)]
KR_OFF = 8 * MB
X_BYTES, W_BYTES, WO_BYTES, WPHI_BYTES, OUT_BYTES = 2048 * 896, 448 * 2688, 448 * 896, 16 * 1568, 2048 * 1792
LOG2E = 1.4426950408889634
MFMA = "v_mfma_f32_32x32x16_bf16"
def f32(x): return "0x%08x" % struct.unpack("<I", struct.pack("<f", x))[0]

OPT = dict(prio=1, rot=1, hw=2, pfc=1, b8=200, ost="", eprio=1, gate=2, zpad=1)
for _a in sys.argv[2:]:
    if "=" in _a:
        _k, _v = _a.split("=", 1); OPT[_k] = _v.replace("+", " ") if _k == "ost" else int(_v)
ST = LD = " sc1"
OST = (" " + OPT["ost"]) if OPT["ost"] else ""
STAMP = "stamp" in sys.argv[2:]

sBR, sRB, sPAIR = 3, 4, 5
WS, sUP, sWAVE, sTAG, DBG = 44, 60, 96, 98, 92
W4 = f"s[{WS}:{WS+3}]"

def srd(p, d, base, nbytes):
    p(f"s_mov_b32 s{d}, s{base}\ns_mov_b32 s{d+1}, s{base+1}\ns_mov_b32 s{d+2}, {hex(nbytes)}\ns_mov_b32 s{d+3}, 0x20000")
def stamp(p, i):
    if STAMP: p(f"{'s_memrealtime' if 'rt' in sys.argv[2:] else 's_memtime'} s[{64+2*i}:{65+2*i}]")
def stamp_out(p, kidx, n=10):
    if not STAMP: return
    p(f"s_waitcnt lgkmcnt(0)\ns_mov_b32 s88, s34\ns_mov_b32 s89, s35\ns_mov_b32 s90, 0x4000000\ns_mov_b32 s91, 0x20000")
    p(f"s_lshl_b32 s86, s2, 4\ns_add_u32 s86, s86, s{sWAVE}\ns_lshl_b32 s86, s86, 6\ns_add_u32 s86, s86, {32*MB + kidx*MB}\nv_mov_b32 v254, 0")
    for i in range(n): p(f"v_mov_b32 v255, s{64+2*i}\nbuffer_store_dword v255, v254, s[88:91], s86 offen offset:{4*i}")
def xhalf(p, op, x, t):
    p(f"v_mov_b32 v{t}, v{x}\ns_nop 1\nv_permlane32_swap_b32 v{x}, v{t}\ns_nop 0\n{op} v{x}, v{x}, v{t}")
def pk(op, d, a, b, mods=""): return f"{op} {vr(d,2)}, {a}, {b} {mods}".rstrip()

def softmax_pm(p, P, OP, OM, T):
    E = T
    mx, mn, a0, a1, b0, b1, c0, c1, rp, rp2, rm, rm2 = [T + 16 + i for i in range(12)]
    U = sr(sUP, 2)
    p(f"v_max3_f32 v{mx}, v{P}, v{P+1}, v{P+2}\nv_min3_f32 v{mn}, v{P}, v{P+1}, v{P+2}")
    for j in range(3, 15, 2):
        p(f"v_max3_f32 v{mx}, v{mx}, v{P+j}, v{P+j+1}\nv_min3_f32 v{mn}, v{mn}, v{P+j}, v{P+j+1}")
    p(f"v_max_f32 v{mx}, v{mx}, v{P+15}\nv_min_f32 v{mn}, v{mn}, v{P+15}")
    p(f"v_mov_b32 v{a0}, v{mx}\nv_mov_b32 v{a1}, v{mn}\ns_nop 0")
    p(f"v_permlane32_swap_b32 v{mx}, v{a0}\nv_permlane32_swap_b32 v{mn}, v{a1}\ns_nop 0")
    p(f"v_max_f32 v{mx}, v{mx}, v{a0}\nv_min_f32 v{mn}, v{mn}, v{a1}")
    for j in range(16): p(f"v_sub_f32 v{E+j}, v{mn}, v{P+j}\nv_sub_f32 v{P+j}, v{P+j}, v{mx}")
    for j in range(16): p(f"v_exp_f32 v{E+j}, v{E+j}\nv_exp_f32 v{P+j}, v{P+j}")
    for (B, s, t) in ((E, b0, c0), (P, a0, c0)):
        p(f"v_add_f32 v{t}, v{B+12}, v{B+13}\nv_add_f32 v{s}, v{B}, v{B+1}\nv_add_f32 v{s+1}, v{B+2}, v{B+3}\nv_add_f32 v{t}, v{t}, v{B+14}")
        p(f"v_add_f32 v{s}, v{s}, v{B+4}\nv_add_f32 v{s+1}, v{s+1}, v{B+5}\nv_add_f32 v{t}, v{t}, v{B+15}")
        for j in range(6, 12, 2): p(f"v_add_f32 v{s}, v{s}, v{B+j}\nv_add_f32 v{s+1}, v{s+1}, v{B+j+1}")
        p(f"v_cndmask_b32 v{t}, v{t}, 0, {U}\nv_add_f32 v{s}, v{s}, v{s+1}\nv_add_f32 v{s}, v{s}, v{t}")
    p(f"v_mov_b32 v{a1}, v{a0}\nv_mov_b32 v{b1}, v{b0}\ns_nop 0")
    p(f"v_permlane32_swap_b32 v{a0}, v{a1}\nv_permlane32_swap_b32 v{b0}, v{b1}\ns_nop 0")
    p(f"v_add_f32 v{a0}, v{a0}, v{a1}\nv_add_f32 v{b0}, v{b0}, v{b1}")
    p(f"v_rcp_f32 v{rp}, v{a0}\nv_rcp_f32 v{rm}, v{b0}\ns_nop 0")
    p(f"v_cndmask_b32 v{rp2}, v{rp}, 0, {U}\nv_cndmask_b32 v{rm2}, v{rm}, 0, {U}")
    for j in range(16): p(f"v_mul_f32 v{P+j}, v{P+j}, v{rp if j < 12 else rp2}\nv_mul_f32 v{E+j}, v{E+j}, v{rm if j < 12 else rm2}")
    for j in range(8): p(f"v_cvt_pk_bf16_f32 v{OP+j}, v{P+2*j}, v{P+2*j+1}\nv_cvt_pk_bf16_f32 v{OM+j}, v{E+2*j}, v{E+2*j+1}")

class Tr:
    def __init__(self): self.L = []
    def __call__(self, text):
        for line in text.strip("\n").split("\n"):
            if line.strip(): self.L.append(line.strip())
    def ds(self, text, tag=None): self.L.append(("ds", text, tag))
    def wait(self, tag): self.L.append(("wait", tag))
def emit(p, L):
    seq = []
    for it in L:
        if isinstance(it, str):
            if it.startswith("ds_"): seq.append(None)
            p(it)
        elif it[0] == "ds":
            seq.append(it[2]); p(it[1])
        else:
            idx = max(i for i, t in enumerate(seq) if t == it[1])
            p(f"s_waitcnt lgkmcnt({min(15, len(seq) - 1 - idx)})")

def wphi_loads(p, dst, sHD, vLo, vHi, vt, WP):
    p(f"""v_add_u32 v{vt}, -4, v{vLo}
v_cmp_gt_u32 vcc, 28, v{vLo}
s_movk_i32 s9, 224
s_mul_i32 s14, s{sHD}, 1568
v_cndmask_b32 v{vt}, v{vt}, v{vLo}, vcc
v_lshlrev_b32 v{vt}, 1, v{vt}
v_mad_u32_u24 v{vt}, v{vHi}, s9, v{vt}
v_lshlrev_b32 v{vt+1}, 20, v{vHi}
v_add_u32 v{vt+1}, v{vt+1}, v{vt}""")
    for t in range(2):
        for jj in range(8):
            d = 16 * t + 8 * (jj >> 2) + (jj & 3)
            p(f"buffer_load_ushort v{dst+8*t+jj}, v{vt + 1 if (t == 1 and jj >= 4) else vt}, s[{WP}:{WP+3}], s14 offen offset:{d*56}")

def tag_load(p, vD, vZ): p(f"v_mov_b32 v{vZ}, 0\nbuffer_load_dwordx2 {vr(vD,2)}, v{vZ}, s[{DBG}:{DBG+3}], 0 offen sc1")
def tag_get(p, name, vD, vZ):
    p(f"""s_mov_b32 s62, 0x40000
{name}:
v_readfirstlane_b32 s{sTAG}, v{vD}
v_readfirstlane_b32 s{sTAG+1}, v{vD+1}
s_sub_u32 s62, s62, 1
s_cbranch_scc1 {name}_x
s_cmp_lg_u32 s{sTAG}, 0
s_cbranch_scc1 {name}_x
s_sleep 2
v_mov_b32 v{vZ}, 0
buffer_load_dwordx2 {vr(vD,2)}, v{vZ}, s[{DBG}:{DBG+3}], 0 offen sc1
s_waitcnt vmcnt(0)
s_branch {name}
{name}_x:""")
def poll(p, name, sOFF, vA, vD, wide=False):
    T = sr(sTAG, 2)
    ld = f"buffer_load_dwordx4 {vr(vD,4)}" if wide else f"buffer_load_dwordx2 {vr(vD,2)}"
    p(f"s_mov_b32 s62, 0x40000\n{name}:\n{ld}, v{vA}, {W4}, s{sOFF} offen sc1\ns_sub_u32 s62, s62, 1\ns_waitcnt vmcnt(0)")
    p(f"v_cmp_ne_u64 vcc, {T}, {vr(vD,2)}")
    if wide: p(f"v_cmp_ne_u64 s[14:15], {T}, {vr(vD+2,2)}\ns_or_b64 vcc, vcc, s[14:15]")
    p(f"s_cmp_eq_u32 s62, 0\ns_cbranch_scc1 {name}_x\ns_cbranch_vccz {name}_x\ns_sleep 1\ns_branch {name}\n{name}_x:")
def publish(p, sOFF, vZ, vD):
    p(f"""v_mov_b32 v{vD}, s{sTAG}
v_mov_b32 v{vD+1}, s{sTAG+1}
v_mov_b32 v{vZ}, 0
s_mov_b64 exec, 1
buffer_store_dwordx2 {vr(vD,2)}, v{vZ}, {W4}, s{sOFF} offen sc1
s_mov_b64 exec, -1""")

RING = 7 * 16384
SLOT = 32768
SL = (1, 2, 0, 3)
XA = 131072
vL16, vRA, vRB, vFA, vTHR, vNM = 1, 2, 3, 4, 5, 6
Q2 = 84
QB2 = 128
QLDS = 6 * 16384
sKO, sH2 = 40, 41

def early(p, st):
    for hf in range(2):
        p(f"s_add_u32 m0, s63, {SL[st] * SLOT + hf * 16384}\ns_add_u32 s8, s13, {st * 16384 + hf * 131072}")
        for f in range(4): p(f"buffer_load_dwordx4 v{vL16}, {W4}, s8 offen offset:{f*1024}{LD} lds")

def phase1(p):
    sWV = 6
    X, W, WP = 36, 40, 48
    sXO, sWO, sRS, sCNT, sT, sH = 52, 53, 55, 56, 57, 59
    sM0X, sST, sXB, sWB, sM0Q, sFL = 63, 54, 58, 51, 50, 97
    vL, vXD, vWD, vQD = 21, 2, 6, 10
    vXA0, vWA0, vXA, vWA, vRD2 = 2, 10, 12, 16, 19
    vT = 22
    XF = [28, 36]; WF = [44, 52]
    AK, AV = 100, 132
    WPH = 164
    QPOS = [RING + 16384, RING + 24576, RING + 32768, RING + 40960]
    def wslot(t): return RING + (t % 3) * 16384 if t < 7 else QPOS[t - 7]
    p("s_cmp_ge_u32 s2, 256\ns_cbranch_scc1 k_end")
    stamp(p, 0)
    p("s_load_dwordx16 s[16:31], s[0:1], 0\ns_load_dwordx4 s[32:35], s[0:1], 64")
    p(f"""v_lshrrev_b32 v{vT}, 6, v0
v_and_b32 v{vL}, 63, v0
s_and_b32 s7, s2, 7
s_lshr_b32 s8, s2, 3
v_readfirstlane_b32 s{sWAVE}, v{vT}
s_lshr_b32 s{sBR}, s7, 2
s_bfe_u32 s9, s7, 0x10001
s_lshl_b32 s9, s9, 3
s_lshr_b32 s10, s8, 2
s_add_u32 s{sRB}, s10, s9
s_and_b32 s9, s7, 1
s_lshl_b32 s9, s9, 2
s_and_b32 s11, s8, 3
s_add_u32 s{sPAIR}, s11, s9
s_and_b32 s{sWV}, s{sWAVE}, 3
s_mov_b32 s{sUP}, 0
s_mov_b32 s{sUP+1}, -1
v_lshlrev_b32 v{vL16}, 4, v{vL}
s_cmp_lt_u32 s{sWAVE}, 4
s_cbranch_scc1 k1_compute""")
    p(f"""s_lshl_b32 s11, s11, 1
s_add_u32 s{sST}, s10, s11
s_cmp_ge_u32 s{sST}, 7
s_cselect_b32 s9, 7, 0
s_sub_u32 s{sST}, s{sST}, s9
s_cmp_ge_u32 s{sST}, 7
s_cselect_b32 s9, 7, 0
s_sub_u32 s{sST}, s{sST}, s9""")
    if not OPT["rot"]: p(f"s_mov_b32 s{sST}, 0")
    p(f"v_lshrrev_b32 v{vT}, 3, v{vL}\nv_and_b32 v{vT+1}, 7, v{vL}\nv_lshrrev_b32 v{vT+2}, 4, v{vL}")
    p(f"s_mul_i32 s7, s{sWV}, {32*896}\ns_movk_i32 s8, 896\nv_mul_u32_u24 v{vT+4}, s8, v{vT}\nv_add_u32 v{vT+4}, s7, v{vT+4}")
    for i in range(2):
        p(f"""v_xor_b32 v{vT+3}, {4*i}, v{vT+2}
v_xor_b32 v{vT+3}, v{vT+3}, v{vT+1}
v_lshl_add_u32 v{vT+3}, v{vT+3}, 4, v{vT+4}
v_add_u32 v{vXD+i}, {8*i*896 - i*1024}, v{vT+3}
v_add_u32 v{vXD+i+2}, {8*(i+2)*896 - (i+2)*1024}, v{vT+3}""")
    p(f"""s_mul_i32 s{sXB}, s{sRB}, {128*896}
s_mul_i32 s{sWB}, s{sPAIR}, 112
s_lshl_b32 s{sM0X}, s{sWV}, 12
s_lshl_b32 s{sM0Q}, s{sWV}, 11
s_cmp_eq_u32 s{sBR}, 0
s_waitcnt lgkmcnt(0)
s_cselect_b64 s[8:9], s[16:17], s[22:23]
s_cselect_b64 s[10:11], s[18:19], s[24:25]""")
    stamp(p, 1)
    srd(p, X, 8, X_BYTES); srd(p, W, 10, W_BYTES)
    def stage_off(q, x=True):
        if x: q(f"s_lshl_b32 s{sXO}, s{sST}, 7\ns_add_u32 s{sXO}, s{sXO}, s{sXB}")
        q(f"s_mul_i32 s{sWO}, s{sST}, {64*2688}\ns_add_u32 s{sWO}, s{sWO}, s{sWB}\ns_add_u32 s{sST}, s{sST}, 1\ns_cmp_ge_u32 s{sST}, 7\ns_cselect_b32 s{sST}, 0, s{sST}")
    def dma_x(t):
        p(f"s_add_u32 m0, s{sM0X}, {t * 16384}")
        stage_off(p)
        for i in range(4): p(f"buffer_load_dwordx4 v{vXD+i}, s[{X}:{X+3}], s{sXO} offen offset:{i*1024} lds")
    def dma_w(t, i0, i1):
        if i0 < i1: p(f"s_add_u32 m0, s{sM0X}, {wslot(t)}\ns_nop 0")
        for i in range(i0, i1): p(f"buffer_load_dwordx4 v{vWD+i}, s[{W}:{W+3}], s{sWO} offen offset:{i*1024} lds")
    def dma_q(q, m0expr):
        q(m0expr)
        stage_off(q, False)
        for i in range(2): q(f"buffer_load_dwordx4 v{vQD+i}, s[{W}:{W+3}], s{sWO} offen offset:{i*1024} lds")
    dma_x(0)
    p(f"""s_movk_i32 s9, 2688
s_movk_i32 s10, 896
s_mul_i32 s7, s{sWV}, {16*2688}
v_lshlrev_b32 v{vT+4}, 2, v{vT+2}
v_xor_b32 v{vT+4}, v{vT+4}, v{vL}
v_bfe_u32 v{vT+3}, v{vT+4}, 3, 1
v_and_b32 v{vT+4}, 7, v{vT+4}
v_mul_u32_u24 v{vT+3}, s10, v{vT+3}
v_mad_u32_u24 v{vT+3}, v{vT+2}, s9, v{vT+3}
v_lshl_add_u32 v{vT+3}, v{vT+4}, 4, v{vT+3}
v_cmp_eq_u32 vcc, 7, v{vT+4}
v_add_u32 v{vT+3}, s7, v{vT+3}
v_mov_b32 v{vT+5}, 0x40000000""")
    if OPT["zpad"]: p(f"v_cndmask_b32 v{vT+3}, v{vT+3}, v{vT+5}, vcc")
    for i in range(4): p(f"v_add_u32 v{vWD+i}, {896 + 4*i*2688 - i*1024}, v{vT+3}")
    dma_w(0, 0, 4)
    p(f"""v_lshlrev_b32 v{vT+4}, 1, v{vT}
v_and_b32 v{vT+4}, 4, v{vT+4}
v_xor_b32 v{vT+4}, v{vT+4}, v{vT+1}
v_cmp_eq_u32 vcc, 7, v{vT+4}
v_lshlrev_b32 v{vT+4}, 4, v{vT+4}
v_mad_u32_u24 v{vT+3}, v{vT}, s9, v{vT+4}
v_add_u32 v{vQD}, s7, v{vT+3}""")
    if OPT["zpad"]: p(f"v_cndmask_b32 v{vQD}, v{vQD}, v{vT+5}, vcc")
    p(f"v_add_u32 v{vQD+1}, {8*2688 - 1024}, v{vQD}")
    HW = OPT["hw"]
    issued = []
    def note(t, n): issued.extend([t] * n)
    note(0, 8)
    qXA0, qXA1, qWA, qWB = 28, 32, 36, 38
    QF = [40, 44, 48]
    QA = 52
    XR = 136
    vTG = 92
    def tr_col(hd, dst, g1, c):
        p(f"v_lshlrev_b32 v{dst}, 5, v{g1}\nv_lshl_add_u32 v{dst}, v{c}, 3, v{dst}")
        p(f"v_cmp_eq_u32 vcc, 56, v{dst}\nv_add_u32 v{dst}, s{hd}, v{dst}\ns_nop 0")
        if OPT["zpad"]: p(f"v_cndmask_b32 v{dst}, v{dst}, v{vT}, vcc")
    def q_setup():
        p(f"""v_and_b32 v{vT}, 31, v{vL}
v_lshrrev_b32 v{vT+1}, 5, v{vL}
v_bfe_u32 v{vT+2}, v{vL}, 1, 3
v_xor_b32 v{vT+2}, v{vT+2}, v{vT+1}
v_lshlrev_b32 v{vT+2}, 4, v{vT+2}
v_lshl_add_u32 v{vT+3}, v{vT}, 7, s{sM0X}""")
        for kk in range(4):
            p(f"v_xor_b32 v{vT+4}, {32*kk}, v{vT+2}\nv_add_u32 v{qXA0+kk}, v{vT+3}, v{vT+4}\nv_add_u32 v{qXA1+kk}, 0x10000, v{qXA0+kk}")
        p(f"""v_bfe_u32 v{vT+2}, v{vL}, 2, 2
v_lshl_add_u32 v{vT+3}, v{vT+1}, 3, v{vT+2}
v_lshlrev_b32 v{vT+5}, 5, v{vT+2}
v_and_b32 v{vT+5}, 64, v{vT+5}
v_bfe_u32 v{vT+4}, v{vL}, 4, 1
v_and_b32 v{vT+1}, 3, v{vL}
v_mov_b32 v{vT}, 112
s_mul_i32 s9, s{sBR}, 56
s_sub_u32 s8, 56, s9""")
        for hd in range(2):
            tr_col(8 + hd, vT + 2, vT + 4, vT + 1)
            p(f"v_xor_b32 v{vT+2}, v{vT+2}, v{vT+5}\nv_lshl_add_u32 v{qWB+hd}, v{vT+3}, 7, v{vT+2}\nv_add_u32 v{qWA+hd}, {RING}, v{qWB+hd}")
        cA, cB = f32(LOG2E / math.sqrt(28.0)), f32(LOG2E)
        p(f"""s_lshl_b32 s8, s{sRB}, 2
s_add_u32 s8, s8, s{sWV}
s_lshl_b32 s9, s{sPAIR}, 7
s_add_u32 s9, s9, s8
s_lshl_b32 s10, s9, 11
s_add_u32 s11, s10, {Q_OFF + 64*2048}
s_add_u32 s10, s10, {PQ_OFF}
s_lshl_b32 s9, s{sPAIR}, 6
s_add_u32 s9, s9, s8
s_lshl_b32 s9, s9, 3
s_add_u32 s7, s9, {FQ}
s_add_u32 s{sFL}, s9, {FQB}
s_mov_b32 s15, {cB}
s_cmp_eq_u32 s{sBR}, 0
s_cselect_b32 s12, {cA}, s15
s_cselect_b32 s10, s11, s10
s_cselect_b32 s{sFL}, s7, s{sFL}
s_lshl_b32 s8, s{sPAIR}, 1
s_add_u32 s8, s8, s{sBR}
s_lshl_b32 s8, s8, 6
s_add_u32 s8, s8, s{sWV}
s_lshl_b32 s8, s8, 12
s_add_u32 s13, s8, {KV_OFF}
s_lshl_b32 s14, s{sPAIR}, 9
s_add_u32 s14, s14, {FKV}
v_lshlrev_b32 v{vTG+3}, 3, v{vL}
v_add_u32 v{vTG+4}, s{sM0X}, v{vL16}
v_add_u32 v{vTG+4}, {QLDS}, v{vTG+4}""")
        srd(p, WS, 34, WS_USED); srd(p, DBG, 32, 256)
    for t in range(8):
        if t + 1 < 7:
            dma_x(t + 1); dma_w(t + 1, 0, HW); note(t + 1, 4 + HW)
        last = max(i for i, x in enumerate(issued) if x == (10 if t == 7 else t))
        p(f"s_waitcnt vmcnt({len(issued) - 1 - last})\ns_barrier")
        if t + 1 < 7:
            dma_w(t + 1, HW, 4); note(t + 1, 4 - HW)
        for tq in {5: (7, 8), 6: (9, 10)}.get(t, ()):
            dma_q(p, f"s_add_u32 m0, s{sM0Q}, {wslot(tq)}"); note(tq, 2)
        if t == 0: stamp(p, 2)
        if t == 2: q_setup()
    stamp(p, 3)
    tag_load(p, vTG, vTG + 2)
    G = Tr()
    QX = (0, 2048, 16384)
    def rd(n):
        hd, m = divmod(n, 28); t, kk = divmod(m, 4); st = QF[n % 3]
        if hd == 0: G.ds(f"ds_read_b128 {vr(XR+4*m,4)}, v{(qXA0 if t < 4 else qXA1) + kk} offset:{(t & 3) * 16384}")
        for x in range(2):
            if t < 4: a, o = qWA + hd, 16384 + t * 8192 + (16 * kk + 4 * x) * 128
            else: a, o = qWB + hd, QX[t - 4] + kk * 4096 + 4 * x * 128
            G.ds(f"ds_read_b64_tr_b16 {vr(st+2*x,2)}, v{a} offset:{o}", f"g{n}")
    def qpack(acc, d):
        L = [f"v_mul_f32 v{acc+j}, s12, v{acc+j}" for j in range(16)] + [f"v_cvt_pk_bf16_f32 v{d+j}, v{acc+2*j}, v{acc+2*j+1}" for j in range(8)]
        return L + [f"v_cndmask_b32 v{d+6}, v{d+6}, 0, {sr(sUP,2)}", f"v_cndmask_b32 v{d+7}, v{d+7}, 0, {sr(sUP,2)}"]
    F1 = qpack(QA, 100) + [f"buffer_store_dwordx4 {vr(100+4*t,4)}, v{vL16}, {W4}, s10 offen offset:{t*1024}{ST}" for t in range(2)]
    rd(0); rd(1)
    for n in range(56):
        hd, m = divmod(n, 28); st = QF[n % 3]
        if n == 14: G("s_waitcnt vmcnt(0)"); G("s_barrier")
        if n + 2 < 56: rd(n + 2)
        G.wait(f"g{n}")
        G(f"{MFMA} {vr(QA+16*hd,16)}, {vr(st,4)}, {vr(XR+4*m,4)}, {'0' if m == 0 else vr(QA+16*hd,16)}")
        if n in (3, 7):
            for tq in ((0, 1) if n == 3 else (2,)): dma_q(G, f"s_add_u32 m0, s{sM0X}, {QX[tq]}")
        if n >= 31:
            for x in F1[:4]: G(x)
            F1 = F1[4:]
        if n == 44: G(f"buffer_load_dwordx2 {vr(vTG+6,2)}, v{vTG+3}, {W4}, s14 offen sc1")
    emit(p, G.L)
    stamp(p, 4)
    p("s_waitcnt vmcnt(0)")
    tag_get(p, "k1_tagq", vTG, vTG + 2)
    publish(p, sFL, vTG + 2, vTG)
    p(f"v_cmp_ne_u64 vcc, {sr(sTAG,2)}, {vr(vTG+6,2)}\ns_cbranch_vccz k1_kvok")
    poll(p, "k1_pkv", 14, vTG + 3, vTG + 6)
    p.label("k1_kvok")
    stamp(p, 5)
    early(p, 0)
    p(f"s_cmp_eq_u32 s{sBR}, 0\ns_cbranch_scc1 k1_qA")
    for x in qpack(QA + 16, QB2): p(x)
    p(f"v_mov_b32 v{vTG+2}, 0")
    poll(p, "k1_pq", 7, vTG + 2, vTG + 6)
    for t in range(2): p(f"buffer_load_dwordx4 {vr(Q2+4*t,4)}, v{vL16}, {W4}, s11 offen offset:{t*1024}{LD}")
    early(p, 1)
    p("s_waitcnt vmcnt(8)\ns_branch k1_q2")
    p.label("k1_qA")
    for x in qpack(QA + 16, Q2): p(x)
    early(p, 1)
    p.label("k1_q2")
    for t in range(2): p(f"ds_write_b128 v{vTG+4}, {vr(Q2+4*t,4)} offset:{t*1024}")
    p("s_branch p1_join")
    p.label("k1_compute")
    if OPT["pfc"]:
        p(f"""s_lshr_b32 s8, s2, 3
s_lshl_b32 s9, s{sWV}, 5
s_add_u32 s9, s9, s8
s_cmp_ge_u32 s9, 4
s_cbranch_scc1 k1_nopf
s_getpc_b64 s[10:11]
k1_pc:
s_lshl_b32 s9, s9, 13
s_sub_u32 s10, s10, k1_pc-{KNAME}
s_subb_u32 s11, s11, 0
v_lshlrev_b32 v{vT}, 7, v{vL}
v_add_u32 v{vT}, s9, v{vT}
v_min_u32 v{vT}, code_end-{KNAME}-4, v{vT}
global_load_dword v247, v{vT}, s[10:11]
k1_nopf:""")
    vWR, vRD, vPR, vEX, vFX = 190, 191, 192, 193, 194
    p(f"""s_and_b32 s7, s{sWV}, 1
s_lshr_b32 s8, s{sWV}, 1
s_lshl_b32 s{sH}, s{sPAIR}, 1
s_add_u32 s{sH}, s{sH}, s8
s_lshl_b32 s9, s7, 13
s_mul_i32 s8, s8, 56
v_and_b32 v{vT}, 31, v{vL}
v_lshrrev_b32 v{vT+1}, 5, v{vL}
v_bfe_u32 v{vT+2}, v{vL}, 1, 3
v_xor_b32 v{vT+2}, v{vT+2}, v{vT+1}
v_lshlrev_b32 v{vT+2}, 4, v{vT+2}
v_lshl_add_u32 v{vT+3}, v{vT}, 7, s9""")
    for kk in range(4):
        p(f"v_xor_b32 v{vT+4}, {32*kk}, v{vT+2}\nv_add_u32 v{vXA0+kk}, v{vT+3}, v{vT+4}\nv_mov_b32 v{vXA+kk}, v{vXA0+kk}")
    p(f"""v_bfe_u32 v{vT+2}, v{vL}, 2, 2
v_lshl_add_u32 v{vT+3}, v{vT+1}, 3, v{vT+2}
v_bfe_u32 v{vT+4}, v{vL}, 4, 1
v_lshlrev_b32 v{vT+4}, 5, v{vT+4}
v_and_b32 v{vT+5}, 3, v{vL}
v_lshl_add_u32 v{vT+4}, v{vT+5}, 3, v{vT+4}
v_cmp_eq_u32 vcc, 56, v{vT+4}
v_add_u32 v{vT+4}, s8, v{vT+4}
v_mov_b32 v{vT+5}, 112""")
    if OPT["zpad"]: p(f"v_cndmask_b32 v{vT+4}, v{vT+4}, v{vT+5}, vcc")
    p(f"""v_lshlrev_b32 v{vT+5}, 6, v{vT+2}
v_xor_b32 v{vT+5}, v{vT+4}, v{vT+5}
v_lshl_add_u32 v{vT+5}, v{vT+3}, 8, v{vT+5}
v_add_u32 v{vWA0}, {RING}, v{vT+5}
v_xor_b32 v{vWA0+1}, 128, v{vWA0}
v_mov_b32 v{vWA}, v{vWA0}
v_mov_b32 v{vWA+1}, v{vWA0+1}""")
    for r in range(AK, AK + 64): p(f"v_mov_b32 v{r}, 0")
    p(f"""s_mov_b32 s{sRS}, 0
s_mov_b32 s{sCNT}, 0
s_mov_b32 s{sT}, 0
s_lshl_b32 s8, s{sRB}, 2
s_add_u32 s{sFL}, s8, s{sWV}
s_lshl_b32 s9, s7, 1
s_add_u32 s8, s8, s9
s_lshl_b32 s9, s{sH}, 6
s_add_u32 s8, s8, s9
s_lshl_b32 s11, s8, 12
s_add_u32 s11, s11, {KV_OFF}
s_lshl_b32 s9, s{sPAIR}, 6
s_add_u32 s{sFL}, s{sFL}, s9
s_cmp_eq_u32 s{sBR}, 0
s_cselect_b32 s9, 0, {FB // 8 - FKV // 8}
s_add_u32 s{sFL}, s{sFL}, s9
s_add_u32 s{sFL}, s{sFL}, {FKV // 8}
s_lshl_b32 s{sFL}, s{sFL}, 3
s_lshl_b32 s10, s{sH}, 4
s_add_u32 s10, s10, s{sRB}
s_lshl_b32 s10, s10, 1
s_add_u32 s10, s10, s7
s_lshl_b32 s10, s10, 12
s_add_u32 s10, s10, {KP_OFF}
s_mov_b32 s12, 0xf0000000
s_mov_b32 s13, 0xf0000000
s_lshl_b32 s8, s{sWV}, 12
s_add_u32 s8, s8, {RING}
v_and_b32 v{vWR}, 15, v{vL}
v_xor_b32 v{vWR}, v{vWR}, v{vT+1}
v_lshlrev_b32 v{vWR}, 3, v{vWR}
v_lshl_add_u32 v{vWR}, v{vT}, 7, v{vWR}
v_add_u32 v{vWR}, s8, v{vWR}
v_lshl_add_u32 v{vRD}, v{vT+1}, 2, v{vT+2}
v_bfe_u32 v{vPR}, v{vL}, 4, 1
v_lshlrev_b32 v{vPR}, 2, v{vPR}
v_and_b32 v{vRD2}, 3, v{vL}
v_or_b32 v{vPR}, v{vPR}, v{vRD2}
v_xor_b32 v{vPR}, v{vPR}, v{vRD}
v_lshlrev_b32 v{vPR}, 3, v{vPR}
v_lshl_add_u32 v{vRD}, v{vRD}, 7, v{vPR}
v_add_u32 v{vRD}, s8, v{vRD}
s_lshl_b32 s9, s7, 6
v_add_u32 v{vRD2}, s9, v{vRD}
v_xor_b32 v{vRD}, 64, v{vRD2}
v_add_u32 v{vEX}, s8, v{vL16}
v_xor_b32 v{vPR}, 4096, v{vEX}
v_cmp_eq_u32 vcc, 28, v{vT}
v_mov_b32 v{vFX}, 0x3f803f80
s_waitcnt lgkmcnt(0)
v_cndmask_b32 v{vFX}, 0, v{vFX}, vcc""")
    srd(p, WS, 34, WS_USED); srd(p, WP, 26, WPHI_BYTES); srd(p, DBG, 32, 256)
    p(f"""s_or_b32 s14, s2, s{sWV}
s_cmp_lg_u32 s14, 0
s_cbranch_scc1 k1_notag
s_memrealtime s[14:15]
v_mov_b32 v70, 0
s_waitcnt lgkmcnt(0)
s_or_b32 s14, s14, 1
v_mov_b32 v68, s14
v_mov_b32 v69, s15
s_mov_b64 exec, 1
buffer_store_dwordx2 v[68:69], v70, s[{DBG}:{DBG+3}], 0 offen sc1
s_mov_b64 exec, -1
k1_notag:
s_cmp_eq_u32 s{sBR}, 0
s_cbranch_scc1 k1_go""")
    wphi_loads(p, WPH, sH, vT, vT + 1, vT + 2, WP)
    p.label("k1_go")
    stamp(p, 1)
    p("s_barrier")
    stamp(p, 2)
    def reads(kk, st):
        for a in range(2): p(f"ds_read_b128 {vr(XF[st]+4*a,4)}, v{vXA+kk} offset:{4096*a}")
        for seg in range(2):
            for x in range(2): p(f"ds_read_b64_tr_b16 {vr(WF[st]+4*seg+2*x,2)}, v{vWA+seg} offset:{(16*kk+4*x)*256}")
    def mfmas(st):
        for a in range(2):
            xf = vr(XF[st] + 4 * a, 4)
            p(f"{MFMA} {vr(AK+16*a,16)}, {vr(WF[st],4)}, {xf}, {vr(AK+16*a,16)}")
            p(f"{MFMA} {vr(AV+16*a,16)}, {xf}, {vr(WF[st]+4,4)}, {vr(AV+16*a,16)}")
    reads(0, 0)
    p(".p2align 4")
    p.label("k1_loop")
    for kk in range(3):
        reads(kk + 1, (kk + 1) & 1)
        p("s_waitcnt lgkmcnt(6)")
        mfmas(kk & 1)
    p(f"s_add_u32 s{sRS}, s{sRS}, 16384\ns_cmp_ge_u32 s{sRS}, {3*16384}\ns_cselect_b32 s{sRS}, 0, s{sRS}\ns_add_u32 s{sT}, s{sT}, 16384\ns_add_u32 s{sCNT}, s{sCNT}, 1")
    for kk in range(4): p(f"v_add_u32 v{vXA+kk}, s{sT}, v{vXA0+kk}")
    p(f"v_add_u32 v{vWA}, s{sRS}, v{vWA0}\nv_add_u32 v{vWA+1}, s{sRS}, v{vWA0+1}")
    p(f"s_cmp_eq_u32 s{sCNT}, 7\ns_waitcnt lgkmcnt(0)\ns_barrier\ns_cbranch_scc1 k1_pass2")
    reads(0, 0)
    mfmas(1)
    p("s_branch k1_loop")
    p.label("k1_pass2")
    stamp(p, 3)
    PKK, PKV = 200, 172
    def pack(E, dst, acc, scale):
        if scale is not None:
            for j in range(16): E(f"v_mul_f32 v{acc+j}, s{scale}, v{acc+j}")
        for j in range(8): E(f"v_cvt_pk_bf16_f32 v{dst+j}, v{acc+2*j}, v{acc+2*j+1}")
    def fixV(E, a):
        for j in range(8): E(f"v_cndmask_b32 v{PKV+8*a+j}, v{PKV+8*a+j}, v{vFX}, s[12:13]")
    mfmas(1)
    if OPT["eprio"]: p("s_setprio 2")
    p("s_waitcnt vmcnt(0)")
    tag_load(p, 68, 70)
    p(f"s_cmp_eq_u32 s{sBR}, 0\ns_cbranch_scc0 k1_epiB")
    p(f"v_mov_b32 v{vT+3}, 0x3f80\ns_nop 4")
    for a in range(2):
        pack(p, PKK + 8 * a, AK + 16 * a, None)
        p(f"v_cndmask_b32 v{PKK+8*a+6}, v{PKK+8*a+6}, v{vT+3}, {sr(sUP,2)}\nv_cndmask_b32 v{PKK+8*a+7}, v{PKK+8*a+7}, 0, {sr(sUP,2)}")
        for t in range(2): p(f"buffer_store_dwordx4 {vr(PKK+8*a+4*t,4)}, v{vL16}, {W4}, s11 offen offset:{t*1024}{ST}")
        pack(p, PKV + 8 * a, AV + 16 * a, None)
        fixV(p, a)
        for t in range(2): p(f"buffer_store_dwordx4 {vr(PKV+8*a+4*t,4)}, v{vL16}, {W4}, s11 offen offset:{2048+t*1024}{ST}")
        if a == 0: p("s_add_u32 s11, s11, 4096")
    stamp(p, 4)
    p("s_waitcnt vmcnt(0)")
    tag_get(p, "k1_taga", 68, 70)
    publish(p, sFL, 70, 68)
    stamp(p, 5)
    p("s_setprio 0\ns_barrier\ns_branch p1_join")
    p.label("k1_epiB")
    p(f"s_mov_b32 s14, {f32(LOG2E)}")
    for j in range(8): p(f"v_lshl_or_b32 v{WPH+j}, v{WPH+2*j+1}, 16, v{WPH+2*j}")
    TMP = [212, 28]; KVA = AV
    keep, send = KVA + 16, KVA
    E = Tr()
    KB = [248, 240]
    for a in range(2): pack(E, KB[a], AK + 16 * a, 14)
    E("s_nop 0")
    for a in range(2):
        E(f"{MFMA} {vr(AK+16*a,16)}, {vr(WPH,4)}, {vr(KB[a],4)}, 0")
        E(f"{MFMA} {vr(AK+16*a,16)}, {vr(WPH+4,4)}, {vr(KB[a]+4,4)}, {vr(AK+16*a,16)}")
    for a in range(2):
        pack(E, PKV + 8 * a, AV + 16 * a, None); fixV(E, a)
    stamp(E, 7)
    OP = [240, AK]
    q = [Prog(), Prog()]
    for a in range(2): softmax_pm(q[a], AK + 16 * a, OP[a], OP[a] + 8, TMP[a])
    for x, y in zip(q[0].L[:-16], q[1].L[:-16]):
        if not x.startswith("s_nop"): E(x); E(y)
    stamp(E, 8)
    PF = TMP
    AD = (16, 17, 10, 11)
    for a in range(2):
        for x in q[a].L[-16:]: E(x)
        if a == 1: E.wait("r0")
        for sg in range(2):
            for g in range(4):
                E(f"v_xor_b32 v{AD[(g&1)*2+sg]}, {sg*64+g*16}, v{vWR}")
                E.ds(f"ds_write_b64 v{AD[(g&1)*2+sg]}, {vr(OP[a]+8*sg+2*g,2)}", f"w{a}")
        E.wait(f"w{a}")
        for sg in range(2):
            for u in range(2):
                for x in range(2): E.ds(f"ds_read_b64_tr_b16 {vr(PF[a]+8*sg+4*u+2*x,2)}, v{(vRD, vRD2)[sg ^ x]} offset:{(16*u+8*x)*128}", f"r{a}")
        if a == 0:
            pass
    E.wait("r1")
    stamp(E, 9)
    for sg in (0, 1):
        for a in range(2):
            for u in range(2):
                c = "0" if (a == 0 and u == 0) else vr(KVA + 16 * sg, 16)
                E(f"{MFMA} {vr(KVA+16*sg,16)}, {vr(PF[a]+8*sg+4*u,4)}, {vr(PKV+8*a+4*u,4)}, {c}")
    E("s_nop 7")
    for q4 in range(4): E.ds(f"ds_write_b128 v{vEX}, {vr(send+4*q4,4)} offset:{q4*1024}", "x")
    E.L.insert(OPT["b8"], "s_barrier")
    emit(p, E.L)
    p("s_waitcnt vmcnt(0)")
    tag_get(p, "k1_tagb", 68, 70)
    stamp(p, 5)
    p.label("p1_join")
    return dict(vPR=vPR, keep=keep, sFL=sFL, sKP=10)

def phase23(p, c1):
    sTILE, sHALF, sRET, sCNT, sPO, sM0, sWOO, sFLB = 6, 7, 42, 43, 13, 48, 50, c1["sFL"]
    sB3, sRB3, sCB3, sQO, sFBO = 51, 52, 53, 54, 55
    WO, OUT = 36, 56
    vT = 8
    S = [16, 32]; O = 48; K = 64; V0 = [72, 76]; V1 = 80; Q = Q2; P = 92; PH = 100; PA = 116
    PL = 168; vPO = 120; vWD = 124; QB = QB2; PS = 200; TM = 216; vFD = 244; WPq = 136; KF = 152
    p(f"""s_lshl_b32 s{sH2}, s{sPAIR}, 1
s_add_u32 s{sH2}, s{sH2}, s{sBR}
s_and_b32 s8, s{sWAVE}, 3
s_lshr_b32 s{sHALF}, s{sWAVE}, 2
s_lshl_b32 s{sTILE}, s{sRB}, 2
s_add_u32 s{sTILE}, s{sTILE}, s8
s_lshl_b32 s9, s{sH2}, 6
s_lshl_b32 s11, s{sHALF}, 5
s_add_u32 s11, s11, s8
s_add_u32 s11, s11, s9
s_lshl_b32 s{sKO}, s11, 12
s_add_u32 s{sKO}, s{sKO}, {KV_OFF + 16384}
s_lshl_b32 s{sM0}, s{sWAVE}, 12
s_add_u32 s9, s9, s{sTILE}
s_lshl_b32 s{sQO}, s9, 11
s_lshl_b32 s8, s{sHALF}, 14
v_add_u32 v{vRA}, s8, v{vL16}
v_add_u32 v{vRB}, 0x10000, v{vRA}
v_mov_b32 v{vTHR}, 0x7f800000
v_mov_b32 v{vT+2}, {f32(2.0**60)}
v_cndmask_b32 v{vTHR}, v{vTHR}, v{vT+2}, {sr(sUP,2)}
s_and_b32 s8, s{sWAVE}, 3
s_lshl_b32 s8, s8, 12
v_add_u32 v{vT}, s8, v{vL16}
v_add_u32 v{vT}, {QLDS}, v{vT}""")
    for j in range(3): p(f"v_mov_b32 v{vPO+j}, 0")
    for j in range(16): p(f"v_mov_b32 v{O+j}, 0")
    p("s_setprio 0\ns_waitcnt vmcnt(8) lgkmcnt(0)\ns_barrier")
    stamp(p, 6)
    stamp_out(p, 0)
    stamp(p, 0)
    SLO = lambda st: SL[st % 4] * SLOT
    def dma_piece(f): p(f"buffer_load_dwordx4 v{vL16}, {W4}, s{sKO} offen offset:{f*1024}{LD} lds")
    def dma_stage(st): p(f"s_add_u32 m0, s{sM0}, {SLO(st)}\ns_add_u32 s{sKO}, s{sKO}, 16384")
    def rd(dst, i, frag):
        st, tl = divmod(i, 4)
        base = vRA if SL[st % 4] < 2 else vRB
        p(f"ds_read_b128 {vr(dst,4)}, v{base} offset:{(SL[st % 4] & 1) * SLOT + tl * 4096 + frag * 1024}")
    rd(K, 0, 0); rd(K + 4, 0, 1); rd(V0[0], 0, 2)
    p(f"s_cmp_ge_u32 s{sWAVE}, 4\ns_cbranch_scc1 p2_go")
    for t in range(2): p(f"ds_read_b128 {vr(Q+4*t,4)}, v{vT} offset:{t*1024}")
    p(f"s_cmp_eq_u32 s{sBR}, 0\ns_cbranch_scc1 p2_go")
    keep, vPR = c1["keep"], c1["vPR"]
    for q4 in range(4): p(f"ds_read_b128 {vr(212+4*q4,4)}, v{vPR} offset:{q4*1024}")
    for q4 in range(4):
        p(f"s_waitcnt lgkmcnt({3-q4})")
        for i in range(4): p(f"v_add_f32 v{keep+4*q4+i}, v{keep+4*q4+i}, v{212+4*q4+i}")
        p(f"buffer_store_dwordx4 {vr(keep+4*q4,4)}, v{vL16}, {W4}, s{c1['sKP']} offen offset:{q4*1024}{ST}")
    p.label("p2_go")
    dma_stage(2)
    for f in range(2): dma_piece(f)
    p("s_waitcnt lgkmcnt(0)")
    p(f"{MFMA} {vr(S[0],16)}, {vr(K,4)}, {vr(Q,4)}, 0\n{MFMA} {vr(S[0],16)}, {vr(K+4,4)}, {vr(Q+4,4)}, {vr(S[0],16)}")
    rd(K, 1, 0); rd(K + 4, 1, 1)
    p(f"""v_lshrrev_b32 v{vT}, 4, v{vL16}
s_min_u32 s13, s2, 223
s_and_b32 s8, s13, 7
s_lshr_b32 s9, s13, 3
s_lshr_b32 s{sB3}, s8, 2
s_mul_i32 s13, s9, 37
s_lshr_b32 s13, s13, 8
s_mul_i32 s14, s13, 7
s_sub_u32 s{sCB3}, s9, s14
s_and_b32 s8, s8, 3
s_lshl_b32 s8, s8, 2
s_add_u32 s{sRB3}, s8, s13
s_cmp_eq_u32 s{sB3}, 0
s_cselect_b64 s[8:9], s[20:21], s[28:29]
s_mul_i32 s{sWOO}, s{sWAVE}, {64*896}
s_lshl_b32 s13, s{sCB3}, 7
s_add_u32 s{sWOO}, s{sWOO}, s13""")
    srd(p, WO, 8, WO_BYTES)
    p(f"v_max3_f32 v{vT+4}, v{S[0]}, v{S[0]+1}, v{S[0]+2}\nv_max3_f32 v{vT+5}, v{S[0]+3}, v{S[0]+4}, v{S[0]+5}")
    for j in range(6, 14, 4): p(f"v_max3_f32 v{vT+4}, v{vT+4}, v{S[0]+j}, v{S[0]+j+1}\nv_max3_f32 v{vT+5}, v{vT+5}, v{S[0]+j+2}, v{S[0]+j+3}")
    p(f"v_max3_f32 v{vT+4}, v{vT+4}, v{S[0]+14}, v{S[0]+15}\nv_max_f32 v{vT+4}, v{vT+4}, v{vT+5}")
    xhalf(p, "v_max_f32", vT + 4, vT + 5)
    p(f"v_cvt_pk_bf16_f32 v{vT+4}, -v{vT+4}, 0\nv_lshlrev_b32 v{vNM}, 16, v{vT+4}\nv_cndmask_b32 v{Q+6}, v{Q+6}, v{vT+4}, {sr(sUP,2)}")
    for j in range(16): p(f"v_add_f32 v{S[0]+j}, v{S[0]+j}, v{vNM}")
    stamp(p, 1)
    def wo_setup():
        p(f"""v_lshrrev_b32 v{vT+1}, 7, v{vL16}
v_bfe_u32 v{vT+2}, v{vL16}, 4, 3
v_lshlrev_b32 v{vT+3}, 1, v{vT+1}
v_and_b32 v{vT+3}, 4, v{vT+3}
v_xor_b32 v{vT+2}, v{vT+2}, v{vT+3}
v_lshlrev_b32 v{vT+2}, 4, v{vT+2}
s_movk_i32 s13, 896
v_mad_u32_u24 v{vWD}, v{vT+1}, s13, v{vT+2}""")
        for i in range(1, 4): p(f"v_add_u32 v{vWD+i}, {i*(8*896-1024)}, v{vWD}")
    CHECK = (0, 1, 3, 5)
    PR = OPT["prio"]; GT = OPT["gate"]
    WOI = 0
    for i in range(32):
        s, j = divmod(i, 4)
        Sc, Sn = S[i & 1], S[(i + 1) & 1]
        e = lambda n: p(f"v_exp_f32 v{Sc+n}, v{Sc+n}")
        c = lambda n: p(f"v_cvt_pk_bf16_f32 v{P+n}, v{Sc+2*n}, v{Sc+2*n+1}")
        e(0); e(1)
        p("s_waitcnt lgkmcnt(0)")
        if i > 0: p(f"{MFMA} {vr(O,16)}, {vr(V1,4)}, {vr(P+4,4)}, {vr(O,16)}")
        rd(V1, i, 3)
        e(2); e(3); c(0); e(4); c(1); e(5)
        if i < 31: p(f"{MFMA} {vr(Sn,16)}, {vr(K,4)}, {vr(Q,4)}, 0")
        if PR: p("s_setprio 0")
        e(6); e(7); c(2); e(8); c(3); e(9)
        if i < 31: p(f"{MFMA} {vr(Sn,16)}, {vr(K+4,4)}, {vr(Q+4,4)}, {vr(Sn,16)}")
        if j == 2 and s < 7:
            if s + 3 <= 7: dma_stage(s + 3)
            p(f"s_waitcnt vmcnt({4 if s < 6 else 0})\ns_barrier")
        if i + 2 < 32: rd(K, i + 2, 0); rd(K + 4, i + 2, 1)
        if PR: p("s_setprio 1")
        if i + 1 < 32: rd(V0[(i + 1) & 1], i + 1, 2)
        T = sr(sTAG, 2)
        if j == 2 and s <= 6:
            lo, hi = Prog(), Prog()
            w0 = Prog()
            if s == 0:
                lo(f"s_cmp_eq_u32 s{sBR}, 0\ns_cbranch_scc1 k2_x0")
                publish(lo, sFLB, vT, vT + 2)
                hi(f"""s_lshl_b32 s8, s{sPAIR}, 6
s_add_u32 s8, s8, s{sTILE}
s_lshl_b32 s{sFBO}, s8, 3
s_add_u32 s{sFBO}, s{sFBO}, {FQB}
s_add_u32 s{sQO}, s{sQO}, {PQ_OFF}
v_bfe_u32 v{vT}, v{vL16}, 4, 5
v_lshrrev_b32 v{vT+1}, 9, v{vL16}
v_mov_b32 v{vPO}, 0""")
                srd(hi, OUT, 26, WPHI_BYTES)
                wphi_loads(hi, WPq, sH2, vT, vT + 1, vT + 2, OUT)
                hi(f"buffer_load_dwordx2 {vr(vFD,2)}, v{vPO}, {W4}, s{sFBO} offen sc1")
            if s == 1:
                for k in range(8): hi(f"v_lshl_or_b32 v{WPq+k}, v{WPq+2*k+1}, 16, v{WPq+2*k}")
                hi(f"s_cmp_lg_u32 s{sBR}, 0\ns_cbranch_scc1 k2_x1\nv_cmp_ne_u64 vcc, {T}, {vr(vFD,2)}\ns_cbranch_vccz k2_qbok")
                poll(hi, "k2_pqb", sFBO, vPO, vFD)
                hi.label("k2_qbok")
                for t in range(2): hi(f"buffer_load_dwordx4 {vr(QB+4*t,4)}, v{vL16}, {W4}, s{sQO} offen offset:{t*1024}{LD}")
            if s == 2:
                hi(f"{MFMA} {vr(PS,16)}, {vr(WPq,4)}, {vr(QB,4)}, 0\n{MFMA} {vr(PS,16)}, {vr(WPq+4,4)}, {vr(QB+4,4)}, {vr(PS,16)}")
                hi(f"s_lshl_b32 s{sFBO}, s{sH2}, 7\ns_add_u32 s{sFBO}, s{sFBO}, {FR}\nv_bfe_u32 v{vPO}, v{vL16}, 4, 4\nv_lshlrev_b32 v{vPO}, 3, v{vPO}\ns_nop 7")
                softmax_pm(hi, PS, PH, PH + 8, TM)
            if s == 5: hi(f"buffer_load_dwordx2 {vr(vFD,2)}, v{vPO}, {W4}, s{sFBO} offen sc1")
            if s == 6:
                hi(f"v_cmp_ne_u64 vcc, {T}, {vr(vFD,2)}\ns_cbranch_vccz k2_frok")
                poll(hi, "k2_pfr", sFBO, vPO, vFD)
                hi.label("k2_frok")
                hi(f"s_lshl_b32 s8, s{sH2}, 12\ns_add_u32 s8, s8, {KR_OFF}")
                for f in range(4): hi(f"buffer_load_dwordx4 {vr(KF+4*f,4)}, v{vL16}, {W4}, s8 offen offset:{f*1024}{LD}")
            if s == GT - 1:
                w0(f"""s_lshl_b32 s{sFBO}, s{sPAIR}, 9
s_add_u32 s{sFBO}, s{sFBO}, {FB}
v_lshrrev_b32 v{vPO}, 1, v{vL16}
buffer_load_dwordx2 {vr(vFD,2)}, v{vPO}, {W4}, s{sFBO} offen sc1
s_lshl_b32 s{sPO}, s{sH2}, 17
s_lshr_b32 s8, s{sRB}, 2
s_lshl_b32 s9, s8, 11
s_add_u32 s{sPO}, s{sPO}, s9
s_and_b32 s9, s{sRB}, 3
s_lshl_b32 s9, s9, 8
s_add_u32 s{sPO}, s{sPO}, s9
s_add_u32 s{sPO}, s{sPO}, {KP_OFF}
s_lshl_b32 s12, s8, 10
s_add_u32 s12, s12, s9
s_lshl_b32 s9, s{sH2}, 12
s_add_u32 s12, s12, s9
s_add_u32 s12, s12, {KR_OFF}
v_lshrrev_b32 v{vT}, 9, v{vL16}
v_and_b32 v{vPO+1}, 0xf8, v{vPO}
v_lshl_add_u32 v{vPO+1}, v{vT}, 10, v{vPO+1}
v_and_b32 v{vPO+2}, 0xf0, v{vPO}
v_lshl_add_u32 v{vPO+2}, v{vT}, 3, v{vPO+2}
v_bfe_u32 v{vT}, v{vL16}, 4, 1
v_lshl_add_u32 v{vPO+2}, v{vT}, 2, v{vPO+2}""")
            if s == GT:
                w0(f"v_cmp_ne_u64 vcc, {T}, {vr(vFD,2)}\ns_cbranch_vccz k2_fbok")
                poll(w0, "k2_pb", sFBO, vPO, vFD)
                w0.label("k2_fbok")
                for k in range(16): w0(f"buffer_load_dwordx2 {vr(PL+2*k,2)}, v{vPO+1}, {W4}, s{sPO} offen{LD}\ns_add_u32 s{sPO}, s{sPO}, 8192")
            if s == GT + 1:
                for st_ in (16, 8, 4, 2):
                    for k in range(st_): w0(f"v_add_f32 v{PL+k}, v{PL+k}, v{PL+st_+k}")
                w0(f"v_cvt_pk_bf16_f32 v{PL}, v{PL}, v{PL+1}\nbuffer_store_dword v{PL}, v{vPO+2}, {W4}, s12 offen{ST}")
                w0(f"s_lshl_b32 s12, s{sH2}, 4\ns_add_u32 s12, s12, s{sRB}\ns_lshl_b32 s12, s12, 3\ns_add_u32 s12, s12, {FR}")
            if s == GT + 2: publish(w0, 12, vT, vT + 2)
            if hi.L:
                p(f"s_cmp_eq_u32 s{sHALF}, 0\ns_cbranch_scc1 k2_l{s}")
                p.L += hi.L
                if lo.L or w0.L: p(f"s_branch k2_x{s}")
                p.label(f"k2_l{s}")
            elif lo.L or w0.L: p(f"s_cmp_lg_u32 s{sHALF}, 0\ns_cbranch_scc1 k2_x{s}")
            p.L += lo.L
            if w0.L:
                p(f"s_cmp_lg_u32 s{sWAVE}, 0\ns_cbranch_scc1 k2_x{s}")
                p.L += w0.L
            p.label(f"k2_x{s}")
        if i == 25: wo_setup()
        e(10); e(11); c(4); e(12); c(5); e(13)
        if j == 3 and s in CHECK: p(f"v_cmp_gt_f32 vcc, v{O+12}, v{vTHR}")
        p(f"{MFMA} {vr(O,16)}, {vr(V0[i&1],4)}, {vr(P,4)}, {vr(O,16)}")
        ds = s + 3 if j >= 2 else s + 2
        if ds <= 7: dma_piece((j + 2) % 4)
        if i >= 26 and WOI < 8:
            for _ in range(2):
                if WOI % 4 == 0: p(f"s_lshl_b32 s8, s{sWAVE}, 13\ns_add_u32 m0, s8, {SLOT + WOI*1024}\ns_nop 0")
                p(f"buffer_load_dwordx4 v{vWD+WOI%4}, s[{WO}:{WO+3}], s{sWOO} offen offset:{(WOI%4)*1024} lds")
                if WOI % 4 == 3: p(f"s_add_u32 s{sWOO}, s{sWOO}, {32*896}")
                WOI += 1
        e(14); e(15); c(6); c(7)
        if j == 3 and s in CHECK:
            p(f"s_cbranch_vccnz k2_rs{s}")
            p.label(f"k2_cont{s}")
    stamp(p, 2)
    p("s_setprio 0\ns_waitcnt lgkmcnt(0)")
    p(f"{MFMA} {vr(O,16)}, {vr(V1,4)}, {vr(P+4,4)}, {vr(O,16)}")
    p(f"""s_lshl_b32 s8, s{sTILE}, 4
s_add_u32 s{sFLB}, s8, s{sH2}
s_lshl_b32 s8, s{sFLB}, 11
s_add_u32 s8, s8, {O_OFF}
s_lshl_b32 s{sFLB}, s{sFLB}, 3
s_add_u32 s{sFLB}, s{sFLB}, {FO}
s_and_b32 s9, s{sWAVE}, 3
s_mul_i32 s9, s9, 5120
s_add_u32 s9, s9, {XA + 8192}
v_add_u32 v{vT+2}, s9, v{vL16}
s_cmp_eq_u32 s{sHALF}, 0
s_cbranch_scc1 k2_fin""")
    p(f"ds_write_b32 v{vT+2}, v{vNM} offset:4096")
    for q in range(4): p(f"ds_write_b128 v{vT+2}, {vr(O+4*q,4)} offset:{q*1024}")
    p("s_waitcnt vmcnt(0) lgkmcnt(0)\ns_barrier")
    stamp(p, 3)
    p(f"s_add_u32 s8, s8, {2*MB}\ns_add_u32 s{sFLB}, s{sFLB}, {64*128}")
    for f in range(4): p(f"{MFMA} v[32:47], {vr(KF+4*f,4)}, {vr(PH+4*f,4)}, {'0' if f == 0 else 'v[32:47]'}")
    p(f"s_nop 11\nv_mov_b32 v{vT+2}, v44\nv_mov_b32 v{vT+3}, v44\ns_nop 1\nv_permlane32_swap_b32 v{vT+2}, v{vT+3}\ns_nop 0")
    p(f"v_add_f32 v{vT+2}, {f32(1e-6)}, v{vT+3}\nv_rcp_f32 v{vT+2}, v{vT+2}\ns_nop 0")
    for j in range(0, 16, 2): p(pk("v_pk_mul_f32", O + j, vr(32 + j, 2), vr(vT + 2, 2), "op_sel_hi:[1,0]"))
    p("s_branch k2_out")
    p.label("k2_fin")
    p("s_waitcnt vmcnt(0)\ns_barrier")
    stamp(p, 3)
    p(f"ds_read_b32 v{vT+7}, v{vT+2} offset:4096")
    for q in range(4): p(f"ds_read_b128 {vr(16+4*q,4)}, v{vT+2} offset:{q*1024}")
    p(f"""v_mov_b32 v{vT}, {f32(2.0**-120)}
v_mov_b32 v{vT+1}, {f32(2.0**120)}
s_waitcnt lgkmcnt(4)
v_min_f32 v{vT+3}, v{vNM}, v{vT+7}
v_sub_f32 v{vT+4}, v{vT+3}, v{vNM}
v_sub_f32 v{vT+6}, v{vT+3}, v{vT+7}
v_exp_f32 v{vT+4}, v{vT+4}
v_exp_f32 v{vT+6}, v{vT+6}""")
    for j in range(0, 16, 2): p(pk("v_pk_mul_f32", O + j, vr(O + j, 2), vr(vT + 4, 2), "op_sel_hi:[1,0]"))
    for q in (3, 0, 1, 2):
        if q == 3: p("s_waitcnt lgkmcnt(0)")
        for j in range(4 * q, 4 * q + 4, 2):
            p(f"v_pk_fma_f32 {vr(O+j,2)}, {vr(16+j,2)}, {vr(vT+6,2)}, {vr(O+j,2)} op_sel_hi:[1,0,1]")
        if q == 3: p(f"v_mov_b32 v{vT+4}, v{O+12}\nv_mov_b32 v{vT+5}, v{O+12}")
    p(f"v_permlane32_swap_b32 v{vT+4}, v{vT+5}\ns_nop 0\nv_rcp_f32 v{vT+4}, v{vT+5}")
    p(f"v_cmp_nlt_f32 vcc, v{vT}, v{vT+5}\nv_cmp_nlt_f32 s[10:11], v{vT+5}, v{vT+1}")
    p(f"v_maximum3_f32 v{vT+2}, abs(v{O}), abs(v{O+1}), abs(v{O+2})")
    for j in range(3, 15, 2): p(f"v_maximum3_f32 v{vT+2}, v{vT+2}, abs(v{O+j}), abs(v{O+j+1})")
    p(f"v_maximum3_f32 v{vT+2}, v{vT+2}, abs(v{O+15}), abs(v{O+15})\ns_or_b64 s[10:11], vcc, s[10:11]")
    p(f"v_cmp_nlt_f32 vcc, v{vT+2}, v{vT+1}")
    for j in range(0, 16, 2): p(pk("v_pk_mul_f32", O + j, vr(O + j, 2), vr(vT + 4, 2), "op_sel_hi:[1,0]"))
    p("s_or_b64 vcc, vcc, s[10:11]\ns_cbranch_vccnz k2_slow")
    p.label("k2_out")
    def o_store(src, dst, so):
        for j in range(8): p(f"v_cvt_pk_bf16_f32 v{dst+j}, v{src+2*j}, v{src+2*j+1}")
        p(f"v_cndmask_b32 v{dst+6}, v{dst+6}, 0, {sr(sUP,2)}\nv_cndmask_b32 v{dst+7}, v{dst+7}, 0, {sr(sUP,2)}")
        for t in range(2): p(f"buffer_store_dwordx4 {vr(dst+4*t,4)}, v{vL16}, {W4}, s{so} offen offset:{t*1024}{ST}")
    o_store(O, 16, 8)
    stamp(p, 4)
    vWA, vST = 8, 9
    WF = [12, 28]; AC = 44; OF = 76; NR = 9
    p(f"""v_lshrrev_b32 v2, 4, v{vL16}
v_lshrrev_b32 v4, 5, v2
v_bfe_u32 v5, v2, 2, 2
v_lshl_add_u32 v6, v4, 2, v5
v_lshlrev_b32 v6, 7, v6
v_bfe_u32 v7, v2, 4, 1
v_lshl_add_u32 v6, v7, 5, v6
v_and_b32 v7, 3, v2
v_lshl_add_u32 v6, v7, 3, v6
v_lshlrev_b32 v5, 5, v5
v_and_b32 v5, 64, v5
v_add_u32 v{vWA}, v6, v5
s_lshl_b32 s12, s{sRB3}, 2
s_add_u32 s12, s12, s{sWAVE}
s_lshl_b32 s13, s12, 15
s_lshl_b32 s14, s{sB3}, 21
s_add_u32 s13, s13, s14
s_lshr_b32 s11, s13, 8
s_add_u32 s11, s11, {FO}
s_add_u32 s13, s13, {O_OFF}
v_and_b32 v5, 31, v2
s_lshl_b32 s12, s12, 5
v_add_u32 v5, s12, v5
s_movk_i32 s9, 1792
v_mul_u32_u24 v5, s9, v5
v_lshl_add_u32 v{vST}, v4, 4, v5
s_mul_i32 s12, s{sB3}, 896
s_lshl_b32 s14, s{sCB3}, 7
s_add_u32 s12, s12, s14
v_and_b32 v3, 15, v2
v_lshlrev_b32 v3, 3, v3
v_add_u32 v{vWA}, {SLOT}, v{vWA}
v_xor_b32 v{vWA+2}, 64, v{vWA}""")
    srd(p, OUT, 30, OUT_BYTES)
    p("s_waitcnt vmcnt(0)")
    publish(p, sFLB, 4, 6)
    stamp(p, 5)
    stamp_out(p, 1)
    stamp(p, 0)
    p(f"s_cmp_ge_u32 s{sWAVE}, 4\ns_cbranch_scc1 k_end\ns_cmp_ge_u32 s2, 224\ns_cbranch_scc1 k_end")
    def reads(h):
        st = WF[h & 1]
        for t in range(2):
            for ct in range(2):
                for x in range(2):
                    p(f"ds_read_b64_tr_b16 {vr(st+8*t+4*ct+2*x,2)}, v{vWA+2*ct} offset:{(28*h+16*t+8*x)*128}")
    reads(0)
    poll(p, "k3_poll", 11, 3, 6)
    stamp(p, 1)
    def oload(h):
        for t in range(2):
            p(f"buffer_load_dwordx4 {vr(OF+8*(h%NR)+4*t,4)}, v{vL16}, {W4}, s13 offen offset:{(h&1)*2048+t*1024}{LD}")
        if h & 1: p("s_add_u32 s13, s13, 4096")
    for h in range(8): oload(h)
    stamp(p, 2)
    for h in range(16):
        if h < 15: reads(h + 1)
        if h < 8: oload(h + 8)
        p(f"s_waitcnt vmcnt({16 if h < 8 else 30-2*h}) lgkmcnt({8 if h < 15 else 0})")
        st = WF[h & 1]
        for t in range(2):
            for ct in range(2):
                c = "0" if (h == 0 and t == 0) else vr(AC + 16 * ct, 16)
                p(f"{MFMA} {vr(AC+16*ct,16)}, {vr(st+8*t+4*ct,4)}, {vr(OF+8*(h%NR)+4*t,4)}, {c}")
    stamp(p, 3)
    p("s_nop 10")
    for ct in range(2):
        for j in range(8): p(f"v_cvt_pk_bf16_f32 v{WF[0]+8*ct+j}, v{AC+16*ct+2*j}, v{AC+16*ct+2*j+1}")
        if ct == 1: p("s_nop 0")
    for ct in range(2):
        for gp in range(2):
            b = WF[0] + 8 * ct + 4 * gp
            p(f"v_permlane32_swap_b32 v{b}, v{b+2}\nv_permlane32_swap_b32 v{b+1}, v{b+3}")
            p(f"buffer_store_dwordx4 {vr(b,4)}, v{vST}, s[{OUT}:{OUT+3}], s12 offen offset:{ct*64+gp*32}{OST}")
    stamp(p, 4)
    if STAMP: p("s_waitcnt vmcnt(0)")
    stamp(p, 5); stamp_out(p, 2)
    p.label("k_end")
    p("s_endpgm")
    for s in CHECK:
        p.label(f"k2_rs{s}")
        p(f"s_mov_b32 s{sRET}, {s}\ns_branch k2_rescale")
    p.label("k2_rescale")
    p("s_waitcnt lgkmcnt(0)")
    p(f"{MFMA} {vr(O,16)}, {vr(V1,4)}, {vr(P+4,4)}, {vr(O,16)}\ns_nop 11")
    p(f"v_mov_b32 v{vT}, v{O+12}\nv_mov_b32 v{vT+1}, v{O+12}")
    for j in range(4): p(f"v_mov_b32 v{P+4+j}, 0")
    p(f"""v_permlane32_swap_b32 v{vT}, v{vT+1}
s_nop 0
v_frexp_exp_i32_f32 v{vT}, v{vT+1}
v_max_i32 v{vT}, 0, v{vT}
v_cvt_f32_i32 v{vT}, v{vT}
v_sub_f32 v{vT}, v{vNM}, v{vT}
v_cvt_pk_bf16_f32 v{vT}, v{vT}, 0
v_lshlrev_b32 v{vT+1}, 16, v{vT}
v_cndmask_b32 v{Q+6}, v{Q+6}, v{vT}, {sr(sUP,2)}
v_sub_f32 v{vT}, v{vT+1}, v{vNM}
v_mov_b32 v{vNM}, v{vT+1}
v_exp_f32 v{vT+1}, v{vT}""")
    for j in range(16): p(f"v_add_f32 v{S[0]+j}, v{S[0]+j}, v{vT}")
    for j in range(16): p(f"v_mul_f32 v{O+j}, v{O+j}, v{vT+1}")
    for s in CHECK[:-1]: p(f"s_cmp_eq_u32 s{sRET}, {s}\ns_cbranch_scc1 k2_cont{s}")
    p(f"s_branch k2_cont{CHECK[-1]}")
    p.label("k2_slow")
    p(f"s_lshl_b32 s{sKO}, s{sH2}, 18\ns_add_u32 s{sKO}, s{sKO}, {KV_OFF}\ns_mov_b32 s{sCNT}, 0\nv_cndmask_b32 v{Q+6}, v{Q+6}, 0, {sr(sUP,2)}\nv_mov_b32 v{vNM}, 0xff7fffff")
    for j in range(16): p(f"v_mov_b32 v{O+j}, 0")
    p.label("k2_sloop")
    for f in range(4): p(f"buffer_load_dwordx4 {vr(K+4*f,4)}, v{vL16}, {W4}, s{sKO} offen offset:{f*1024}{LD}")
    p(f"s_add_u32 s{sKO}, s{sKO}, 4096\ns_add_u32 s{sCNT}, s{sCNT}, 1\ns_waitcnt vmcnt(0)")
    p(f"{MFMA} {vr(S[0],16)}, {vr(K,4)}, {vr(Q,4)}, 0\n{MFMA} {vr(S[0],16)}, {vr(K+4,4)}, {vr(Q+4,4)}, {vr(S[0],16)}\ns_nop 11")
    p(f"v_max3_f32 v{vT}, v{S[0]}, v{S[0]+1}, v{vNM}")
    for j in range(2, 16, 2): p(f"v_max3_f32 v{vT}, v{vT}, v{S[0]+j}, v{S[0]+j+1}")
    xhalf(p, "v_max_f32", vT, vT + 1)
    p(f"v_sub_f32 v{vT+1}, v{vNM}, v{vT}\nv_mov_b32 v{vNM}, v{vT}\nv_exp_f32 v{vT+1}, v{vT+1}")
    for j in range(16): p(f"v_sub_f32 v{S[0]+j}, v{S[0]+j}, v{vT}")
    for j in range(16): p(f"v_exp_f32 v{S[0]+j}, v{S[0]+j}")
    for j in range(16): p(f"v_mul_f32 v{O+j}, v{O+j}, v{vT+1}")
    for j in range(8): p(f"v_cvt_pk_bf16_f32 v{P+j}, v{S[0]+2*j}, v{S[0]+2*j+1}")
    p("s_nop 1")
    p(f"{MFMA} {vr(O,16)}, {vr(K+8,4)}, {vr(P,4)}, {vr(O,16)}\n{MFMA} {vr(O,16)}, {vr(K+12,4)}, {vr(P+4,4)}, {vr(O,16)}")
    p(f"s_cmp_lt_u32 s{sCNT}, 64\ns_cbranch_scc1 k2_sloop")
    p(f"s_nop 11\nv_mov_b32 v{vT}, v{O+12}\nv_mov_b32 v{vT+1}, v{O+12}\ns_nop 1\nv_permlane32_swap_b32 v{vT}, v{vT+1}\ns_nop 0\nv_rcp_f32 v{vT+1}, v{vT+1}\ns_nop 0")
    for j in range(16): p(f"v_mul_f32 v{O+j}, v{O+j}, v{vT+1}")
    p("s_branch k2_out")

def main(out):
    p = Prog()
    phase23(p, phase1(p))
    hdr = open(f"cdna_kernels/{NAME}.s.ref").read().split("\n")
    lines = [l for l in hdr if l.startswith("; Kernarg") or l.startswith(";   offset")]
    s = "\n".join(lines) + "\n; @launch grid=(256,1,1) block=(512,1,1) lds=163840\n"
    s += '.amdgcn_target "amdgcn-amd-amdhsa--gfx950"\n.text\n'
    bad = len(p.check())
    s += f".globl {KNAME}\n.p2align 8\n.type {KNAME},@function\n{KNAME}:\n" + p.text()
    nv, ns = p.max_regs()
    s += f"""code_end:
.section .rodata,"a"
.p2align 6
.amdhsa_kernel {KNAME}
  .amdhsa_next_free_vgpr {nv}
  .amdhsa_next_free_sgpr {ns}
  .amdhsa_accum_offset {(nv + 3) // 4 * 4}
  .amdhsa_group_segment_fixed_size 0
  .amdhsa_kernarg_size 80
  .amdhsa_user_sgpr_count 2
  .amdhsa_user_sgpr_kernarg_segment_ptr 1
  .amdhsa_system_sgpr_workgroup_id_x 1
.end_amdhsa_kernel
"""
    open(out, "w").write(s)
    print("vgpr", nv, "sgpr", ns, "instr", len(p.L), "hazards:", bad)

if __name__ == "__main__":
    main(sys.argv[1] if len(sys.argv) > 1 else f"cdna_kernels/{NAME}.s")
```

```python
import sys, math, struct
sys.path.insert(0, "gen")
from asmlib import Prog, vr, sr

NAME = "concat_heads__mha_block__linear_kernel_hedgehog__prompt"
KNAME = NAME + "_kernel"
MB = 1 << 20
Q_OFF, KV_OFF, PQ_OFF, FL_OFF, KP_OFF, O_OFF, WS_USED = 0, 2 * MB, 6 * MB, 9 * MB, 10 * MB, 12 * MB, 16 * MB
FKV, FQ, FB, FQB, FR, FO = [FL_OFF + 4096 * i for i in range(6)]
KR_OFF = 8 * MB
X_BYTES, W_BYTES, WO_BYTES, WPHI_BYTES, OUT_BYTES = 2048 * 896, 448 * 2688, 448 * 896, 16 * 1568, 2048 * 1792
LOG2E = 1.4426950408889634
MFMA = "v_mfma_f32_32x32x16_bf16"
def f32(x): return "0x%08x" % struct.unpack("<I", struct.pack("<f", x))[0]

OPT = dict(prio=1, rot=1, hw=2, pfc=1, b8=200, ost="", eprio=1, gate=2, zpad=1, prog=1, d3=3, pmask=1, slp3=12, fs3=7)
for _a in sys.argv[2:]:
    if "=" in _a:
        _k, _v = _a.split("=", 1); OPT[_k] = _v.replace("+", " ") if _k == "ost" else int(_v)
ST = LD = " sc1"
FS3 = OPT['fs3']
OST = (" " + OPT["ost"]) if OPT["ost"] else ""
STAMP = "stamp" in sys.argv[2:]

sBR, sRB, sPAIR = 3, 4, 5
WS, sUP, sWAVE, sTAG, DBG = 44, 60, 96, 98, 92
W4 = f"s[{WS}:{WS+3}]"

def srd(p, d, base, nbytes):
    p(f"s_mov_b32 s{d}, s{base}\ns_mov_b32 s{d+1}, s{base+1}\ns_mov_b32 s{d+2}, {hex(nbytes)}\ns_mov_b32 s{d+3}, 0x20000")
def stamp(p, i):
    if STAMP: p(f"{'s_memrealtime' if 'rt' in sys.argv[2:] else 's_memtime'} s[{64+2*i}:{65+2*i}]")
def stamp_out(p, kidx, n=10):
    if not STAMP: return
    p(f"s_waitcnt lgkmcnt(0)\ns_mov_b32 s88, s34\ns_mov_b32 s89, s35\ns_mov_b32 s90, 0x4000000\ns_mov_b32 s91, 0x20000")
    p(f"s_lshl_b32 s86, s2, 4\ns_add_u32 s86, s86, s{sWAVE}\ns_lshl_b32 s86, s86, 6\ns_add_u32 s86, s86, {32*MB + kidx*MB}\nv_mov_b32 v254, 0")
    for i in range(n): p(f"v_mov_b32 v255, s{64+2*i}\nbuffer_store_dword v255, v254, s[88:91], s86 offen offset:{4*i}")
def xhalf(p, op, x, t):
    p(f"v_mov_b32 v{t}, v{x}\ns_nop 1\nv_permlane32_swap_b32 v{x}, v{t}\ns_nop 0\n{op} v{x}, v{x}, v{t}")
def pk(op, d, a, b, mods=""): return f"{op} {vr(d,2)}, {a}, {b} {mods}".rstrip()

def softmax_pm(p, P, OP, OM, T):
    E = T
    mx, mn, a0, a1, b0, b1, c0, c1, rp, rp2, rm, rm2 = [T + 16 + i for i in range(12)]
    U = sr(sUP, 2)
    p(f"v_max3_f32 v{mx}, v{P}, v{P+1}, v{P+2}\nv_min3_f32 v{mn}, v{P}, v{P+1}, v{P+2}")
    for j in range(3, 15, 2):
        p(f"v_max3_f32 v{mx}, v{mx}, v{P+j}, v{P+j+1}\nv_min3_f32 v{mn}, v{mn}, v{P+j}, v{P+j+1}")
    p(f"v_max_f32 v{mx}, v{mx}, v{P+15}\nv_min_f32 v{mn}, v{mn}, v{P+15}")
    p(f"v_mov_b32 v{a0}, v{mx}\nv_mov_b32 v{a1}, v{mn}\ns_nop 0")
    p(f"v_permlane32_swap_b32 v{mx}, v{a0}\nv_permlane32_swap_b32 v{mn}, v{a1}\ns_nop 0")
    p(f"v_max_f32 v{mx}, v{mx}, v{a0}\nv_min_f32 v{mn}, v{mn}, v{a1}")
    for j in range(16): p(f"v_sub_f32 v{E+j}, v{mn}, v{P+j}\nv_sub_f32 v{P+j}, v{P+j}, v{mx}")
    for j in range(16): p(f"v_exp_f32 v{E+j}, v{E+j}\nv_exp_f32 v{P+j}, v{P+j}")
    for (B, s, t) in ((E, b0, c0), (P, a0, c0)):
        p(f"v_add_f32 v{t}, v{B+12}, v{B+13}\nv_add_f32 v{s}, v{B}, v{B+1}\nv_add_f32 v{s+1}, v{B+2}, v{B+3}\nv_add_f32 v{t}, v{t}, v{B+14}")
        p(f"v_add_f32 v{s}, v{s}, v{B+4}\nv_add_f32 v{s+1}, v{s+1}, v{B+5}\nv_add_f32 v{t}, v{t}, v{B+15}")
        for j in range(6, 12, 2): p(f"v_add_f32 v{s}, v{s}, v{B+j}\nv_add_f32 v{s+1}, v{s+1}, v{B+j+1}")
        p(f"v_cndmask_b32 v{t}, v{t}, 0, {U}\nv_add_f32 v{s}, v{s}, v{s+1}\nv_add_f32 v{s}, v{s}, v{t}")
    p(f"v_mov_b32 v{a1}, v{a0}\nv_mov_b32 v{b1}, v{b0}\ns_nop 0")
    p(f"v_permlane32_swap_b32 v{a0}, v{a1}\nv_permlane32_swap_b32 v{b0}, v{b1}\ns_nop 0")
    p(f"v_add_f32 v{a0}, v{a0}, v{a1}\nv_add_f32 v{b0}, v{b0}, v{b1}")
    p(f"v_rcp_f32 v{rp}, v{a0}\nv_rcp_f32 v{rm}, v{b0}\ns_nop 0")
    p(f"v_cndmask_b32 v{rp2}, v{rp}, 0, {U}\nv_cndmask_b32 v{rm2}, v{rm}, 0, {U}")
    for j in range(16): p(f"v_mul_f32 v{P+j}, v{P+j}, v{rp if j < 12 else rp2}\nv_mul_f32 v{E+j}, v{E+j}, v{rm if j < 12 else rm2}")
    for j in range(8): p(f"v_cvt_pk_bf16_f32 v{OP+j}, v{P+2*j}, v{P+2*j+1}\nv_cvt_pk_bf16_f32 v{OM+j}, v{E+2*j}, v{E+2*j+1}")

class Tr:
    def __init__(self): self.L = []
    def __call__(self, text):
        for line in text.strip("\n").split("\n"):
            if line.strip(): self.L.append(line.strip())
    def ds(self, text, tag=None): self.L.append(("ds", text, tag))
    def wait(self, tag): self.L.append(("wait", tag))
def emit(p, L):
    seq = []
    for it in L:
        if isinstance(it, str):
            if it.startswith("ds_"): seq.append(None)
            p(it)
        elif it[0] == "ds":
            seq.append(it[2]); p(it[1])
        else:
            idx = max(i for i, t in enumerate(seq) if t == it[1])
            p(f"s_waitcnt lgkmcnt({min(15, len(seq) - 1 - idx)})")

def wphi_loads(p, dst, sHD, vLo, vHi, vt, WP):
    p(f"""v_add_u32 v{vt}, -4, v{vLo}
v_cmp_gt_u32 vcc, 28, v{vLo}
s_movk_i32 s9, 224
s_mul_i32 s14, s{sHD}, 1568
v_cndmask_b32 v{vt}, v{vt}, v{vLo}, vcc
v_lshlrev_b32 v{vt}, 1, v{vt}
v_mad_u32_u24 v{vt}, v{vHi}, s9, v{vt}
v_lshlrev_b32 v{vt+1}, 20, v{vHi}
v_add_u32 v{vt+1}, v{vt+1}, v{vt}""")
    for t in range(2):
        for jj in range(8):
            d = 16 * t + 8 * (jj >> 2) + (jj & 3)
            p(f"buffer_load_ushort v{dst+8*t+jj}, v{vt + 1 if (t == 1 and jj >= 4) else vt}, s[{WP}:{WP+3}], s14 offen offset:{d*56}")

def tag_load(p, vD, vZ): p(f"v_mov_b32 v{vZ}, 0\nbuffer_load_dwordx2 {vr(vD,2)}, v{vZ}, s[{DBG}:{DBG+3}], 0 offen sc1")
def tag_get(p, name, vD, vZ):
    p(f"""s_mov_b32 s62, 0x40000
{name}:
v_readfirstlane_b32 s{sTAG}, v{vD}
v_readfirstlane_b32 s{sTAG+1}, v{vD+1}
s_sub_u32 s62, s62, 1
s_cbranch_scc1 {name}_x
s_cmp_lg_u32 s{sTAG}, 0
s_cbranch_scc1 {name}_x
s_sleep 2
v_mov_b32 v{vZ}, 0
buffer_load_dwordx2 {vr(vD,2)}, v{vZ}, s[{DBG}:{DBG+3}], 0 offen sc1
s_waitcnt vmcnt(0)
s_branch {name}
{name}_x:""")
def poll(p, name, sOFF, vA, vD, wide=False):
    T = sr(sTAG, 2)
    ld = f"buffer_load_dwordx4 {vr(vD,4)}" if wide else f"buffer_load_dwordx2 {vr(vD,2)}"
    p(f"s_mov_b32 s62, 0x40000\n{name}:\n{ld}, v{vA}, {W4}, s{sOFF} offen sc1\ns_sub_u32 s62, s62, 1\ns_waitcnt vmcnt(0)")
    p(f"v_cmp_ne_u64 vcc, {T}, {vr(vD,2)}")
    if wide: p(f"v_cmp_ne_u64 s[14:15], {T}, {vr(vD+2,2)}\ns_or_b64 vcc, vcc, s[14:15]")
    p(f"s_cmp_eq_u32 s62, 0\ns_cbranch_scc1 {name}_x\ns_cbranch_vccz {name}_x\ns_sleep 1\ns_branch {name}\n{name}_x:")
def publish(p, sOFF, vZ, vD):
    p(f"""v_mov_b32 v{vD}, s{sTAG}
v_mov_b32 v{vD+1}, s{sTAG+1}
v_mov_b32 v{vZ}, 0
s_mov_b64 exec, 1
buffer_store_dwordx2 {vr(vD,2)}, v{vZ}, {W4}, s{sOFF} offen sc1
s_mov_b64 exec, -1""")

RING = 7 * 16384
SLOT = 32768
SL = (1, 2, 0, 3)
XA = 131072
vL16, vRA, vRB, vFA, vTHR, vNM = 1, 2, 3, 4, 5, 6
Q2 = 84
QB2 = 128
QLDS = 6 * 16384
sKO, sH2 = 40, 41

def early(p, st):
    for hf in range(2):
        p(f"s_add_u32 m0, s63, {SL[st] * SLOT + hf * 16384}\ns_add_u32 s8, s13, {st * 16384 + hf * 131072}")
        for f in range(4): p(f"buffer_load_dwordx4 v{vL16}, {W4}, s8 offen offset:{f*1024}{LD} lds")

def phase1(p):
    sWV = 6
    X, W, WP = 36, 40, 48
    sXO, sWO, sRS, sCNT, sT, sH = 52, 53, 55, 56, 57, 59
    sM0X, sST, sXB, sWB, sM0Q, sFL = 63, 54, 58, 51, 50, 97
    vL, vXD, vWD, vQD = 21, 2, 6, 10
    vXA0, vWA0, vXA, vWA, vRD2 = 2, 10, 12, 16, 19
    vT = 22
    XF = [28, 36]; WF = [44, 52]
    AK, AV = 100, 132
    WPH = 164
    QPOS = [RING + 16384, RING + 24576, RING + 32768, RING + 40960]
    def wslot(t): return RING + (t % 3) * 16384 if t < 7 else QPOS[t - 7]
    p("s_cmp_ge_u32 s2, 256\ns_cbranch_scc1 k_end")
    stamp(p, 0)
    p("s_load_dwordx16 s[16:31], s[0:1], 0\ns_load_dwordx4 s[32:35], s[0:1], 64")
    p(f"""v_lshrrev_b32 v{vT}, 6, v0
v_and_b32 v{vL}, 63, v0
s_and_b32 s7, s2, 7
s_lshr_b32 s8, s2, 3
v_readfirstlane_b32 s{sWAVE}, v{vT}
s_lshr_b32 s{sBR}, s7, 2
s_bfe_u32 s9, s7, 0x10001
s_lshl_b32 s9, s9, 3
s_lshr_b32 s10, s8, 2
s_add_u32 s{sRB}, s10, s9
s_and_b32 s9, s7, 1
s_lshl_b32 s9, s9, 2
s_and_b32 s11, s8, 3
s_add_u32 s{sPAIR}, s11, s9
s_and_b32 s{sWV}, s{sWAVE}, 3
s_mov_b32 s{sUP}, 0
s_mov_b32 s{sUP+1}, -1
v_lshlrev_b32 v{vL16}, 4, v{vL}
s_cmp_lt_u32 s{sWAVE}, 4
s_cbranch_scc1 k1_compute""")
    p(f"""s_lshl_b32 s11, s11, 1
s_add_u32 s{sST}, s10, s11
s_cmp_ge_u32 s{sST}, 7
s_cselect_b32 s9, 7, 0
s_sub_u32 s{sST}, s{sST}, s9
s_cmp_ge_u32 s{sST}, 7
s_cselect_b32 s9, 7, 0
s_sub_u32 s{sST}, s{sST}, s9""")
    if not OPT["rot"]: p(f"s_mov_b32 s{sST}, 0")
    p(f"v_lshrrev_b32 v{vT}, 3, v{vL}\nv_and_b32 v{vT+1}, 7, v{vL}\nv_lshrrev_b32 v{vT+2}, 4, v{vL}")
    p(f"s_mul_i32 s7, s{sWV}, {32*896}\ns_movk_i32 s8, 896\nv_mul_u32_u24 v{vT+4}, s8, v{vT}\nv_add_u32 v{vT+4}, s7, v{vT+4}")
    for i in range(2):
        p(f"""v_xor_b32 v{vT+3}, {4*i}, v{vT+2}
v_xor_b32 v{vT+3}, v{vT+3}, v{vT+1}
v_lshl_add_u32 v{vT+3}, v{vT+3}, 4, v{vT+4}
v_add_u32 v{vXD+i}, {8*i*896 - i*1024}, v{vT+3}
v_add_u32 v{vXD+i+2}, {8*(i+2)*896 - (i+2)*1024}, v{vT+3}""")
    p(f"""s_mul_i32 s{sXB}, s{sRB}, {128*896}
s_mul_i32 s{sWB}, s{sPAIR}, 112
s_lshl_b32 s{sM0X}, s{sWV}, 12
s_lshl_b32 s{sM0Q}, s{sWV}, 11
s_cmp_eq_u32 s{sBR}, 0
s_waitcnt lgkmcnt(0)
s_cselect_b64 s[8:9], s[16:17], s[22:23]
s_cselect_b64 s[10:11], s[18:19], s[24:25]""")
    stamp(p, 1)
    srd(p, X, 8, X_BYTES); srd(p, W, 10, W_BYTES)
    def stage_off(q, x=True):
        if x: q(f"s_lshl_b32 s{sXO}, s{sST}, 7\ns_add_u32 s{sXO}, s{sXO}, s{sXB}")
        q(f"s_mul_i32 s{sWO}, s{sST}, {64*2688}\ns_add_u32 s{sWO}, s{sWO}, s{sWB}\ns_add_u32 s{sST}, s{sST}, 1\ns_cmp_ge_u32 s{sST}, 7\ns_cselect_b32 s{sST}, 0, s{sST}")
    def dma_x(t):
        p(f"s_add_u32 m0, s{sM0X}, {t * 16384}")
        stage_off(p)
        for i in range(4): p(f"buffer_load_dwordx4 v{vXD+i}, s[{X}:{X+3}], s{sXO} offen offset:{i*1024} lds")
    def dma_w(t, i0, i1):
        if i0 < i1: p(f"s_add_u32 m0, s{sM0X}, {wslot(t)}\ns_nop 0")
        for i in range(i0, i1): p(f"buffer_load_dwordx4 v{vWD+i}, s[{W}:{W+3}], s{sWO} offen offset:{i*1024} lds")
    def dma_q(q, m0expr):
        q(m0expr)
        stage_off(q, False)
        for i in range(2): q(f"buffer_load_dwordx4 v{vQD+i}, s[{W}:{W+3}], s{sWO} offen offset:{i*1024} lds")
    dma_x(0)
    p(f"""s_movk_i32 s9, 2688
s_movk_i32 s10, 896
s_mul_i32 s7, s{sWV}, {16*2688}
v_lshlrev_b32 v{vT+4}, 2, v{vT+2}
v_xor_b32 v{vT+4}, v{vT+4}, v{vL}
v_bfe_u32 v{vT+3}, v{vT+4}, 3, 1
v_and_b32 v{vT+4}, 7, v{vT+4}
v_mul_u32_u24 v{vT+3}, s10, v{vT+3}
v_mad_u32_u24 v{vT+3}, v{vT+2}, s9, v{vT+3}
v_lshl_add_u32 v{vT+3}, v{vT+4}, 4, v{vT+3}
v_cmp_eq_u32 vcc, 7, v{vT+4}
v_add_u32 v{vT+3}, s7, v{vT+3}
v_mov_b32 v{vT+5}, 0x40000000""")
    if OPT["zpad"]: p(f"v_cndmask_b32 v{vT+3}, v{vT+3}, v{vT+5}, vcc")
    for i in range(4): p(f"v_add_u32 v{vWD+i}, {896 + 4*i*2688 - i*1024}, v{vT+3}")
    dma_w(0, 0, 4)
    p(f"""v_lshlrev_b32 v{vT+4}, 1, v{vT}
v_and_b32 v{vT+4}, 4, v{vT+4}
v_xor_b32 v{vT+4}, v{vT+4}, v{vT+1}
v_cmp_eq_u32 vcc, 7, v{vT+4}
v_lshlrev_b32 v{vT+4}, 4, v{vT+4}
v_mad_u32_u24 v{vT+3}, v{vT}, s9, v{vT+4}
v_add_u32 v{vQD}, s7, v{vT+3}""")
    if OPT["zpad"]: p(f"v_cndmask_b32 v{vQD}, v{vQD}, v{vT+5}, vcc")
    p(f"v_add_u32 v{vQD+1}, {8*2688 - 1024}, v{vQD}")
    HW = OPT["hw"]
    issued = []
    def note(t, n): issued.extend([t] * n)
    note(0, 8)
    qXA0, qXA1, qWA, qWB = 28, 32, 36, 38
    QF = [40, 44, 48]
    QA = 52
    XR = 136
    vTG = 92
    def tr_col(hd, dst, g1, c):
        p(f"v_lshlrev_b32 v{dst}, 5, v{g1}\nv_lshl_add_u32 v{dst}, v{c}, 3, v{dst}")
        p(f"v_cmp_eq_u32 vcc, 56, v{dst}\nv_add_u32 v{dst}, s{hd}, v{dst}\ns_nop 0")
        if OPT["zpad"]: p(f"v_cndmask_b32 v{dst}, v{dst}, v{vT}, vcc")
    def q_setup():
        p(f"""v_and_b32 v{vT}, 31, v{vL}
v_lshrrev_b32 v{vT+1}, 5, v{vL}
v_bfe_u32 v{vT+2}, v{vL}, 1, 3
v_xor_b32 v{vT+2}, v{vT+2}, v{vT+1}
v_lshlrev_b32 v{vT+2}, 4, v{vT+2}
v_lshl_add_u32 v{vT+3}, v{vT}, 7, s{sM0X}""")
        for kk in range(4):
            p(f"v_xor_b32 v{vT+4}, {32*kk}, v{vT+2}\nv_add_u32 v{qXA0+kk}, v{vT+3}, v{vT+4}\nv_add_u32 v{qXA1+kk}, 0x10000, v{qXA0+kk}")
        p(f"""v_bfe_u32 v{vT+2}, v{vL}, 2, 2
v_lshl_add_u32 v{vT+3}, v{vT+1}, 3, v{vT+2}
v_lshlrev_b32 v{vT+5}, 5, v{vT+2}
v_and_b32 v{vT+5}, 64, v{vT+5}
v_bfe_u32 v{vT+4}, v{vL}, 4, 1
v_and_b32 v{vT+1}, 3, v{vL}
v_mov_b32 v{vT}, 112
s_mul_i32 s9, s{sBR}, 56
s_sub_u32 s8, 56, s9""")
        for hd in range(2):
            tr_col(8 + hd, vT + 2, vT + 4, vT + 1)
            p(f"v_xor_b32 v{vT+2}, v{vT+2}, v{vT+5}\nv_lshl_add_u32 v{qWB+hd}, v{vT+3}, 7, v{vT+2}\nv_add_u32 v{qWA+hd}, {RING}, v{qWB+hd}")
        cA, cB = f32(LOG2E / math.sqrt(28.0)), f32(LOG2E)
        p(f"""s_lshl_b32 s8, s{sRB}, 2
s_add_u32 s8, s8, s{sWV}
s_lshl_b32 s9, s{sPAIR}, 7
s_add_u32 s9, s9, s8
s_lshl_b32 s10, s9, 11
s_add_u32 s11, s10, {Q_OFF + 64*2048}
s_add_u32 s10, s10, {PQ_OFF}
s_lshl_b32 s9, s{sPAIR}, 6
s_add_u32 s9, s9, s8
s_lshl_b32 s9, s9, 3
s_add_u32 s7, s9, {FQ}
s_add_u32 s{sFL}, s9, {FQB}
s_mov_b32 s15, {cB}
s_cmp_eq_u32 s{sBR}, 0
s_cselect_b32 s12, {cA}, s15
s_cselect_b32 s10, s11, s10
s_cselect_b32 s{sFL}, s7, s{sFL}
s_lshl_b32 s8, s{sPAIR}, 1
s_add_u32 s8, s8, s{sBR}
s_lshl_b32 s8, s8, 6
s_add_u32 s8, s8, s{sWV}
s_lshl_b32 s8, s8, 12
s_add_u32 s13, s8, {KV_OFF}
s_lshl_b32 s14, s{sPAIR}, 9
s_add_u32 s14, s14, {FKV}
v_lshlrev_b32 v{vTG+3}, 3, v{vL}
v_add_u32 v{vTG+4}, s{sM0X}, v{vL16}
v_add_u32 v{vTG+4}, {QLDS}, v{vTG+4}""")
        srd(p, WS, 34, WS_USED); srd(p, DBG, 32, 256)
    for t in range(8):
        if t + 1 < 7:
            dma_x(t + 1); dma_w(t + 1, 0, HW); note(t + 1, 4 + HW)
        last = max(i for i, x in enumerate(issued) if x == (10 if t == 7 else t))
        p(f"s_waitcnt vmcnt({len(issued) - 1 - last})\ns_barrier")
        if t + 1 < 7:
            dma_w(t + 1, HW, 4); note(t + 1, 4 - HW)
        for tq in {5: (7, 8), 6: (9, 10)}.get(t, ()):
            dma_q(p, f"s_add_u32 m0, s{sM0Q}, {wslot(tq)}"); note(tq, 2)
        if t == 0: stamp(p, 2)
        if t == 2: q_setup()
    stamp(p, 3)
    tag_load(p, vTG, vTG + 2)
    G = Tr()
    QX = (0, 2048, 16384)
    def rd(n):
        hd, m = divmod(n, 28); t, kk = divmod(m, 4); st = QF[n % 3]
        if hd == 0: G.ds(f"ds_read_b128 {vr(XR+4*m,4)}, v{(qXA0 if t < 4 else qXA1) + kk} offset:{(t & 3) * 16384}")
        for x in range(2):
            if t < 4: a, o = qWA + hd, 16384 + t * 8192 + (16 * kk + 4 * x) * 128
            else: a, o = qWB + hd, QX[t - 4] + kk * 4096 + 4 * x * 128
            G.ds(f"ds_read_b64_tr_b16 {vr(st+2*x,2)}, v{a} offset:{o}", f"g{n}")
    def qpack(acc, d):
        L = [f"v_mul_f32 v{acc+j}, s12, v{acc+j}" for j in range(16)] + [f"v_cvt_pk_bf16_f32 v{d+j}, v{acc+2*j}, v{acc+2*j+1}" for j in range(8)]
        return L + [f"v_cndmask_b32 v{d+6}, v{d+6}, 0, {sr(sUP,2)}", f"v_cndmask_b32 v{d+7}, v{d+7}, 0, {sr(sUP,2)}"]
    F1 = qpack(QA, 100) + [f"buffer_store_dwordx4 {vr(100+4*t,4)}, v{vL16}, {W4}, s10 offen offset:{t*1024}{ST}" for t in range(2)]
    rd(0); rd(1)
    for n in range(56):
        hd, m = divmod(n, 28); st = QF[n % 3]
        if n == 14: G("s_waitcnt vmcnt(0)"); G("s_barrier")
        if n + 2 < 56: rd(n + 2)
        G.wait(f"g{n}")
        G(f"{MFMA} {vr(QA+16*hd,16)}, {vr(st,4)}, {vr(XR+4*m,4)}, {'0' if m == 0 else vr(QA+16*hd,16)}")
        if n in (3, 7):
            for tq in ((0, 1) if n == 3 else (2,)): dma_q(G, f"s_add_u32 m0, s{sM0X}, {QX[tq]}")
        if n >= 31:
            for x in F1[:4]: G(x)
            F1 = F1[4:]
        if n == 44: G(f"buffer_load_dwordx2 {vr(vTG+6,2)}, v{vTG+3}, {W4}, s14 offen sc1")
    emit(p, G.L)
    stamp(p, 4)
    p("s_waitcnt vmcnt(0)")
    tag_get(p, "k1_tagq", vTG, vTG + 2)
    publish(p, sFL, vTG + 2, vTG)
    p(f"v_cmp_ne_u64 vcc, {sr(sTAG,2)}, {vr(vTG+6,2)}\ns_cbranch_vccz k1_kvok")
    poll(p, "k1_pkv", 14, vTG + 3, vTG + 6)
    p.label("k1_kvok")
    stamp(p, 5)
    early(p, 0)
    p(f"s_cmp_eq_u32 s{sBR}, 0\ns_cbranch_scc1 k1_qA")
    for x in qpack(QA + 16, QB2): p(x)
    p(f"v_mov_b32 v{vTG+2}, 0")
    poll(p, "k1_pq", 7, vTG + 2, vTG + 6)
    for t in range(2): p(f"buffer_load_dwordx4 {vr(Q2+4*t,4)}, v{vL16}, {W4}, s11 offen offset:{t*1024}{LD}")
    early(p, 1)
    p("s_waitcnt vmcnt(8)\ns_branch k1_q2")
    p.label("k1_qA")
    for x in qpack(QA + 16, Q2): p(x)
    early(p, 1)
    p.label("k1_q2")
    for t in range(2): p(f"ds_write_b128 v{vTG+4}, {vr(Q2+4*t,4)} offset:{t*1024}")
    p("s_branch p1_join")
    p.label("k1_compute")
    if OPT["pfc"]:
        p(f"""s_lshr_b32 s8, s2, 3
s_lshl_b32 s9, s{sWV}, 5
s_add_u32 s9, s9, s8
s_cmp_ge_u32 s9, 4
s_cbranch_scc1 k1_nopf
s_getpc_b64 s[10:11]
k1_pc:
s_lshl_b32 s9, s9, 13
s_sub_u32 s10, s10, k1_pc-{KNAME}
s_subb_u32 s11, s11, 0
v_lshlrev_b32 v{vT}, 7, v{vL}
v_add_u32 v{vT}, s9, v{vT}
v_min_u32 v{vT}, code_end-{KNAME}-4, v{vT}
global_load_dword v247, v{vT}, s[10:11]
k1_nopf:""")
    vWR, vRD, vPR, vEX, vFX = 190, 191, 192, 193, 194
    p(f"""s_and_b32 s7, s{sWV}, 1
s_lshr_b32 s8, s{sWV}, 1
s_lshl_b32 s{sH}, s{sPAIR}, 1
s_add_u32 s{sH}, s{sH}, s8
s_lshl_b32 s9, s7, 13
s_mul_i32 s8, s8, 56
v_and_b32 v{vT}, 31, v{vL}
v_lshrrev_b32 v{vT+1}, 5, v{vL}
v_bfe_u32 v{vT+2}, v{vL}, 1, 3
v_xor_b32 v{vT+2}, v{vT+2}, v{vT+1}
v_lshlrev_b32 v{vT+2}, 4, v{vT+2}
v_lshl_add_u32 v{vT+3}, v{vT}, 7, s9""")
    for kk in range(4):
        p(f"v_xor_b32 v{vT+4}, {32*kk}, v{vT+2}\nv_add_u32 v{vXA0+kk}, v{vT+3}, v{vT+4}\nv_mov_b32 v{vXA+kk}, v{vXA0+kk}")
    p(f"""v_bfe_u32 v{vT+2}, v{vL}, 2, 2
v_lshl_add_u32 v{vT+3}, v{vT+1}, 3, v{vT+2}
v_bfe_u32 v{vT+4}, v{vL}, 4, 1
v_lshlrev_b32 v{vT+4}, 5, v{vT+4}
v_and_b32 v{vT+5}, 3, v{vL}
v_lshl_add_u32 v{vT+4}, v{vT+5}, 3, v{vT+4}
v_cmp_eq_u32 vcc, 56, v{vT+4}
v_add_u32 v{vT+4}, s8, v{vT+4}
v_mov_b32 v{vT+5}, 112""")
    if OPT["zpad"]: p(f"v_cndmask_b32 v{vT+4}, v{vT+4}, v{vT+5}, vcc")
    p(f"""v_lshlrev_b32 v{vT+5}, 6, v{vT+2}
v_xor_b32 v{vT+5}, v{vT+4}, v{vT+5}
v_lshl_add_u32 v{vT+5}, v{vT+3}, 8, v{vT+5}
v_add_u32 v{vWA0}, {RING}, v{vT+5}
v_xor_b32 v{vWA0+1}, 128, v{vWA0}
v_mov_b32 v{vWA}, v{vWA0}
v_mov_b32 v{vWA+1}, v{vWA0+1}""")
    for r in range(AK, AK + 64): p(f"v_mov_b32 v{r}, 0")
    p(f"""s_mov_b32 s{sRS}, 0
s_mov_b32 s{sCNT}, 0
s_mov_b32 s{sT}, 0
s_lshl_b32 s8, s{sRB}, 2
s_add_u32 s{sFL}, s8, s{sWV}
s_lshl_b32 s9, s7, 1
s_add_u32 s8, s8, s9
s_lshl_b32 s9, s{sH}, 6
s_add_u32 s8, s8, s9
s_lshl_b32 s11, s8, 12
s_add_u32 s11, s11, {KV_OFF}
s_lshl_b32 s9, s{sPAIR}, 6
s_add_u32 s{sFL}, s{sFL}, s9
s_cmp_eq_u32 s{sBR}, 0
s_cselect_b32 s9, 0, {FB // 8 - FKV // 8}
s_add_u32 s{sFL}, s{sFL}, s9
s_add_u32 s{sFL}, s{sFL}, {FKV // 8}
s_lshl_b32 s{sFL}, s{sFL}, 3
s_lshl_b32 s10, s{sH}, 4
s_add_u32 s10, s10, s{sRB}
s_lshl_b32 s10, s10, 1
s_add_u32 s10, s10, s7
s_lshl_b32 s10, s10, 12
s_add_u32 s10, s10, {KP_OFF}
s_mov_b32 s12, 0xf0000000
s_mov_b32 s13, 0xf0000000
s_lshl_b32 s8, s{sWV}, 12
s_add_u32 s8, s8, {RING}
v_and_b32 v{vWR}, 15, v{vL}
v_xor_b32 v{vWR}, v{vWR}, v{vT+1}
v_lshlrev_b32 v{vWR}, 3, v{vWR}
v_lshl_add_u32 v{vWR}, v{vT}, 7, v{vWR}
v_add_u32 v{vWR}, s8, v{vWR}
v_lshl_add_u32 v{vRD}, v{vT+1}, 2, v{vT+2}
v_bfe_u32 v{vPR}, v{vL}, 4, 1
v_lshlrev_b32 v{vPR}, 2, v{vPR}
v_and_b32 v{vRD2}, 3, v{vL}
v_or_b32 v{vPR}, v{vPR}, v{vRD2}
v_xor_b32 v{vPR}, v{vPR}, v{vRD}
v_lshlrev_b32 v{vPR}, 3, v{vPR}
v_lshl_add_u32 v{vRD}, v{vRD}, 7, v{vPR}
v_add_u32 v{vRD}, s8, v{vRD}
s_lshl_b32 s9, s7, 6
v_add_u32 v{vRD2}, s9, v{vRD}
v_xor_b32 v{vRD}, 64, v{vRD2}
v_add_u32 v{vEX}, s8, v{vL16}
v_xor_b32 v{vPR}, 4096, v{vEX}
v_cmp_eq_u32 vcc, 28, v{vT}
v_mov_b32 v{vFX}, 0x3f803f80
s_waitcnt lgkmcnt(0)
v_cndmask_b32 v{vFX}, 0, v{vFX}, vcc""")
    srd(p, WS, 34, WS_USED); srd(p, WP, 26, WPHI_BYTES); srd(p, DBG, 32, 256)
    p(f"""s_or_b32 s14, s2, s{sWV}
s_cmp_lg_u32 s14, 0
s_cbranch_scc1 k1_notag
s_memrealtime s[14:15]
v_mov_b32 v70, 0
s_waitcnt lgkmcnt(0)
s_or_b32 s14, s14, 1
v_mov_b32 v68, s14
v_mov_b32 v69, s15
s_mov_b64 exec, 1
buffer_store_dwordx2 v[68:69], v70, s[{DBG}:{DBG+3}], 0 offen sc1
s_mov_b64 exec, -1
k1_notag:
s_cmp_eq_u32 s{sBR}, 0
s_cbranch_scc1 k1_go""")
    wphi_loads(p, WPH, sH, vT, vT + 1, vT + 2, WP)
    p.label("k1_go")
    stamp(p, 1)
    p("s_barrier")
    stamp(p, 2)
    def reads(kk, st):
        for a in range(2): p(f"ds_read_b128 {vr(XF[st]+4*a,4)}, v{vXA+kk} offset:{4096*a}")
        for seg in range(2):
            for x in range(2): p(f"ds_read_b64_tr_b16 {vr(WF[st]+4*seg+2*x,2)}, v{vWA+seg} offset:{(16*kk+4*x)*256}")
    def mfmas(st):
        for a in range(2):
            xf = vr(XF[st] + 4 * a, 4)
            p(f"{MFMA} {vr(AK+16*a,16)}, {vr(WF[st],4)}, {xf}, {vr(AK+16*a,16)}")
            p(f"{MFMA} {vr(AV+16*a,16)}, {xf}, {vr(WF[st]+4,4)}, {vr(AV+16*a,16)}")
    reads(0, 0)
    p(".p2align 4")
    p.label("k1_loop")
    for kk in range(3):
        reads(kk + 1, (kk + 1) & 1)
        p("s_waitcnt lgkmcnt(6)")
        mfmas(kk & 1)
    p(f"s_add_u32 s{sRS}, s{sRS}, 16384\ns_cmp_ge_u32 s{sRS}, {3*16384}\ns_cselect_b32 s{sRS}, 0, s{sRS}\ns_add_u32 s{sT}, s{sT}, 16384\ns_add_u32 s{sCNT}, s{sCNT}, 1")
    for kk in range(4): p(f"v_add_u32 v{vXA+kk}, s{sT}, v{vXA0+kk}")
    p(f"v_add_u32 v{vWA}, s{sRS}, v{vWA0}\nv_add_u32 v{vWA+1}, s{sRS}, v{vWA0+1}")
    p(f"s_cmp_eq_u32 s{sCNT}, 7\ns_waitcnt lgkmcnt(0)\ns_barrier\ns_cbranch_scc1 k1_pass2")
    reads(0, 0)
    mfmas(1)
    p("s_branch k1_loop")
    p.label("k1_pass2")
    stamp(p, 3)
    PKK, PKV = 200, 172
    def pack(E, dst, acc, scale):
        if scale is not None:
            for j in range(16): E(f"v_mul_f32 v{acc+j}, s{scale}, v{acc+j}")
        for j in range(8): E(f"v_cvt_pk_bf16_f32 v{dst+j}, v{acc+2*j}, v{acc+2*j+1}")
    def fixV(E, a):
        for j in range(8): E(f"v_cndmask_b32 v{PKV+8*a+j}, v{PKV+8*a+j}, v{vFX}, s[12:13]")
    mfmas(1)
    if OPT["eprio"]: p("s_setprio 2")
    p("s_waitcnt vmcnt(0)")
    tag_load(p, 68, 70)
    p(f"s_cmp_eq_u32 s{sBR}, 0\ns_cbranch_scc0 k1_epiB")
    p(f"v_mov_b32 v{vT+3}, 0x3f80\ns_nop 4")
    for a in range(2):
        pack(p, PKK + 8 * a, AK + 16 * a, None)
        p(f"v_cndmask_b32 v{PKK+8*a+6}, v{PKK+8*a+6}, v{vT+3}, {sr(sUP,2)}\nv_cndmask_b32 v{PKK+8*a+7}, v{PKK+8*a+7}, 0, {sr(sUP,2)}")
        for t in range(2): p(f"buffer_store_dwordx4 {vr(PKK+8*a+4*t,4)}, v{vL16}, {W4}, s11 offen offset:{t*1024}{ST}")
        pack(p, PKV + 8 * a, AV + 16 * a, None)
        fixV(p, a)
        for t in range(2): p(f"buffer_store_dwordx4 {vr(PKV+8*a+4*t,4)}, v{vL16}, {W4}, s11 offen offset:{2048+t*1024}{ST}")
        if a == 0: p("s_add_u32 s11, s11, 4096")
    stamp(p, 4)
    p("s_waitcnt vmcnt(0)")
    tag_get(p, "k1_taga", 68, 70)
    publish(p, sFL, 70, 68)
    stamp(p, 5)
    p("s_setprio 0\ns_barrier\ns_branch p1_join")
    p.label("k1_epiB")
    p(f"s_mov_b32 s14, {f32(LOG2E)}")
    for j in range(8): p(f"v_lshl_or_b32 v{WPH+j}, v{WPH+2*j+1}, 16, v{WPH+2*j}")
    TMP = [212, 28]; KVA = AV
    keep, send = KVA + 16, KVA
    E = Tr()
    KB = [248, 240]
    for a in range(2): pack(E, KB[a], AK + 16 * a, 14)
    E("s_nop 0")
    for a in range(2):
        E(f"{MFMA} {vr(AK+16*a,16)}, {vr(WPH,4)}, {vr(KB[a],4)}, 0")
        E(f"{MFMA} {vr(AK+16*a,16)}, {vr(WPH+4,4)}, {vr(KB[a]+4,4)}, {vr(AK+16*a,16)}")
    for a in range(2):
        pack(E, PKV + 8 * a, AV + 16 * a, None); fixV(E, a)
    stamp(E, 7)
    OP = [240, AK]
    q = [Prog(), Prog()]
    for a in range(2): softmax_pm(q[a], AK + 16 * a, OP[a], OP[a] + 8, TMP[a])
    for x, y in zip(q[0].L[:-16], q[1].L[:-16]):
        if not x.startswith("s_nop"): E(x); E(y)
    stamp(E, 8)
    PF = TMP
    AD = (16, 17, 10, 11)
    for a in range(2):
        for x in q[a].L[-16:]: E(x)
        if a == 1: E.wait("r0")
        for sg in range(2):
            for g in range(4):
                E(f"v_xor_b32 v{AD[(g&1)*2+sg]}, {sg*64+g*16}, v{vWR}")
                E.ds(f"ds_write_b64 v{AD[(g&1)*2+sg]}, {vr(OP[a]+8*sg+2*g,2)}", f"w{a}")
        E.wait(f"w{a}")
        for sg in range(2):
            for u in range(2):
                for x in range(2): E.ds(f"ds_read_b64_tr_b16 {vr(PF[a]+8*sg+4*u+2*x,2)}, v{(vRD, vRD2)[sg ^ x]} offset:{(16*u+8*x)*128}", f"r{a}")
        if a == 0:
            pass
    E.wait("r1")
    stamp(E, 9)
    for sg in (0, 1):
        for a in range(2):
            for u in range(2):
                c = "0" if (a == 0 and u == 0) else vr(KVA + 16 * sg, 16)
                E(f"{MFMA} {vr(KVA+16*sg,16)}, {vr(PF[a]+8*sg+4*u,4)}, {vr(PKV+8*a+4*u,4)}, {c}")
    E("s_nop 7")
    for q4 in range(4): E.ds(f"ds_write_b128 v{vEX}, {vr(send+4*q4,4)} offset:{q4*1024}", "x")
    E.L.insert(OPT["b8"], "s_barrier")
    emit(p, E.L)
    p("s_waitcnt vmcnt(0)")
    tag_get(p, "k1_tagb", 68, 70)
    stamp(p, 5)
    p.label("p1_join")
    return dict(vPR=vPR, keep=keep, sFL=sFL, sKP=10)

def phase23(p, c1):
    sTILE, sHALF, sRET, sCNT, sPO, sM0, sWOO, sFLB = 6, 7, 42, 43, 13, 48, 50, c1["sFL"]
    sB3, sRB3, sCB3, sQO, sFBO = 51, 52, 53, 54, 55
    WO, OUT = 36, 56
    vT = 8
    S = [16, 32]; O = 48; K = 64; V0 = [72, 76]; V1 = 80; Q = Q2; P = 92; PH = 100; PA = 116
    PL = 168; vPO = 120; vWD = 124; QB = QB2; PS = 200; TM = 216; vFD = 244; WPq = 136; KF = 152
    p(f"""s_lshl_b32 s{sH2}, s{sPAIR}, 1
s_add_u32 s{sH2}, s{sH2}, s{sBR}
s_and_b32 s8, s{sWAVE}, 3
s_lshr_b32 s{sHALF}, s{sWAVE}, 2
s_lshl_b32 s{sTILE}, s{sRB}, 2
s_add_u32 s{sTILE}, s{sTILE}, s8
s_lshl_b32 s9, s{sH2}, 6
s_lshl_b32 s11, s{sHALF}, 5
s_add_u32 s11, s11, s8
s_add_u32 s11, s11, s9
s_lshl_b32 s{sKO}, s11, 12
s_add_u32 s{sKO}, s{sKO}, {KV_OFF + 16384}
s_lshl_b32 s{sM0}, s{sWAVE}, 12
s_add_u32 s9, s9, s{sTILE}
s_lshl_b32 s{sQO}, s9, 11
s_lshl_b32 s8, s{sHALF}, 14
v_add_u32 v{vRA}, s8, v{vL16}
v_add_u32 v{vRB}, 0x10000, v{vRA}
v_mov_b32 v{vTHR}, 0x7f800000
v_mov_b32 v{vT+2}, {f32(2.0**60)}
v_cndmask_b32 v{vTHR}, v{vTHR}, v{vT+2}, {sr(sUP,2)}
s_and_b32 s8, s{sWAVE}, 3
s_lshl_b32 s8, s8, 12
v_add_u32 v{vT}, s8, v{vL16}
v_add_u32 v{vT}, {QLDS}, v{vT}""")
    for j in range(3): p(f"v_mov_b32 v{vPO+j}, 0")
    for j in range(16): p(f"v_mov_b32 v{O+j}, 0")
    p("s_setprio 0\ns_waitcnt vmcnt(8) lgkmcnt(0)\ns_barrier")
    stamp(p, 6)
    stamp_out(p, 0)
    stamp(p, 0)
    SLO = lambda st: SL[st % 4] * SLOT
    def dma_piece(f): p(f"buffer_load_dwordx4 v{vL16}, {W4}, s{sKO} offen offset:{f*1024}{LD} lds")
    def dma_stage(st): p(f"s_add_u32 m0, s{sM0}, {SLO(st)}\ns_add_u32 s{sKO}, s{sKO}, 16384")
    def rd(dst, i, frag):
        st, tl = divmod(i, 4)
        base = vRA if SL[st % 4] < 2 else vRB
        p(f"ds_read_b128 {vr(dst,4)}, v{base} offset:{(SL[st % 4] & 1) * SLOT + tl * 4096 + frag * 1024}")
    rd(K, 0, 0); rd(K + 4, 0, 1); rd(V0[0], 0, 2)
    p(f"s_cmp_ge_u32 s{sWAVE}, 4\ns_cbranch_scc1 p2_go")
    for t in range(2): p(f"ds_read_b128 {vr(Q+4*t,4)}, v{vT} offset:{t*1024}")
    p(f"s_cmp_eq_u32 s{sBR}, 0\ns_cbranch_scc1 p2_go")
    keep, vPR = c1["keep"], c1["vPR"]
    for q4 in range(4): p(f"ds_read_b128 {vr(212+4*q4,4)}, v{vPR} offset:{q4*1024}")
    for q4 in range(4):
        p(f"s_waitcnt lgkmcnt({3-q4})")
        for i in range(4): p(f"v_add_f32 v{keep+4*q4+i}, v{keep+4*q4+i}, v{212+4*q4+i}")
        p(f"buffer_store_dwordx4 {vr(keep+4*q4,4)}, v{vL16}, {W4}, s{c1['sKP']} offen offset:{q4*1024}{ST}")
    p.label("p2_go")
    dma_stage(2)
    for f in range(2): dma_piece(f)
    p("s_waitcnt lgkmcnt(0)")
    p(f"{MFMA} {vr(S[0],16)}, {vr(K,4)}, {vr(Q,4)}, 0\n{MFMA} {vr(S[0],16)}, {vr(K+4,4)}, {vr(Q+4,4)}, {vr(S[0],16)}")
    rd(K, 1, 0); rd(K + 4, 1, 1)
    p(f"""v_lshrrev_b32 v{vT}, 4, v{vL16}
s_min_u32 s13, s2, 223
s_and_b32 s8, s13, 7
s_lshr_b32 s9, s13, 3
s_lshr_b32 s{sB3}, s8, 2
s_mul_i32 s13, s9, 37
s_lshr_b32 s13, s13, 8
s_mul_i32 s14, s13, 7
s_sub_u32 s{sCB3}, s9, s14
s_and_b32 s8, s8, 3
s_lshl_b32 s8, s8, 2
s_add_u32 s{sRB3}, s8, s13
s_cmp_eq_u32 s{sB3}, 0
s_cselect_b64 s[8:9], s[20:21], s[28:29]
s_mul_i32 s{sWOO}, s{sWAVE}, {64*896}
s_lshl_b32 s13, s{sCB3}, 7
s_add_u32 s{sWOO}, s{sWOO}, s13""")
    srd(p, WO, 8, WO_BYTES)
    p(f"v_max3_f32 v{vT+4}, v{S[0]}, v{S[0]+1}, v{S[0]+2}\nv_max3_f32 v{vT+5}, v{S[0]+3}, v{S[0]+4}, v{S[0]+5}")
    for j in range(6, 14, 4): p(f"v_max3_f32 v{vT+4}, v{vT+4}, v{S[0]+j}, v{S[0]+j+1}\nv_max3_f32 v{vT+5}, v{vT+5}, v{S[0]+j+2}, v{S[0]+j+3}")
    p(f"v_max3_f32 v{vT+4}, v{vT+4}, v{S[0]+14}, v{S[0]+15}\nv_max_f32 v{vT+4}, v{vT+4}, v{vT+5}")
    xhalf(p, "v_max_f32", vT + 4, vT + 5)
    p(f"v_cvt_pk_bf16_f32 v{vT+4}, -v{vT+4}, 0\nv_lshlrev_b32 v{vNM}, 16, v{vT+4}\nv_cndmask_b32 v{Q+6}, v{Q+6}, v{vT+4}, {sr(sUP,2)}")
    for j in range(16): p(f"v_add_f32 v{S[0]+j}, v{S[0]+j}, v{vNM}")
    stamp(p, 1)
    def wo_setup():
        p(f"""v_lshrrev_b32 v{vT+1}, 7, v{vL16}
v_bfe_u32 v{vT+2}, v{vL16}, 4, 3
v_lshlrev_b32 v{vT+3}, 1, v{vT+1}
v_and_b32 v{vT+3}, 4, v{vT+3}
v_xor_b32 v{vT+2}, v{vT+2}, v{vT+3}
v_lshlrev_b32 v{vT+2}, 4, v{vT+2}
s_movk_i32 s13, 896
v_mad_u32_u24 v{vWD}, v{vT+1}, s13, v{vT+2}""")
        for i in range(1, 4): p(f"v_add_u32 v{vWD+i}, {i*(8*896-1024)}, v{vWD}")
    CHECK = (0, 1, 3, 5)
    PR = OPT["prio"]; GT = OPT["gate"]
    WOI = 0
    for i in range(32):
        s, j = divmod(i, 4)
        Sc, Sn = S[i & 1], S[(i + 1) & 1]
        e = lambda n: p(f"v_exp_f32 v{Sc+n}, v{Sc+n}")
        c = lambda n: p(f"v_cvt_pk_bf16_f32 v{P+n}, v{Sc+2*n}, v{Sc+2*n+1}")
        e(0); e(1)
        p("s_waitcnt lgkmcnt(0)")
        if i > 0: p(f"{MFMA} {vr(O,16)}, {vr(V1,4)}, {vr(P+4,4)}, {vr(O,16)}")
        rd(V1, i, 3)
        e(2); e(3); c(0); e(4); c(1); e(5)
        if i < 31: p(f"{MFMA} {vr(Sn,16)}, {vr(K,4)}, {vr(Q,4)}, 0")
        if PR: p("s_setprio 0")
        e(6); e(7); c(2); e(8); c(3); e(9)
        if i < 31: p(f"{MFMA} {vr(Sn,16)}, {vr(K+4,4)}, {vr(Q+4,4)}, {vr(Sn,16)}")
        if j == 2 and s < 7:
            if s + 3 <= 7: dma_stage(s + 3)
            p(f"s_waitcnt vmcnt({4 if s < 6 else 0})\ns_barrier")
        if i + 2 < 32: rd(K, i + 2, 0); rd(K + 4, i + 2, 1)
        if PR: p("s_setprio 1")
        if i + 1 < 32: rd(V0[(i + 1) & 1], i + 1, 2)
        T = sr(sTAG, 2)
        if j == 2 and s <= 6:
            lo, hi = Prog(), Prog()
            w0 = Prog()
            if s == 0:
                lo(f"s_cmp_eq_u32 s{sBR}, 0\ns_cbranch_scc1 k2_x0")
                publish(lo, sFLB, vT, vT + 2)
                hi(f"""s_lshl_b32 s8, s{sPAIR}, 6
s_add_u32 s8, s8, s{sTILE}
s_lshl_b32 s{sFBO}, s8, 3
s_add_u32 s{sFBO}, s{sFBO}, {FQB}
s_add_u32 s{sQO}, s{sQO}, {PQ_OFF}
v_bfe_u32 v{vT}, v{vL16}, 4, 5
v_lshrrev_b32 v{vT+1}, 9, v{vL16}
v_mov_b32 v{vPO}, 0""")
                srd(hi, OUT, 26, WPHI_BYTES)
                wphi_loads(hi, WPq, sH2, vT, vT + 1, vT + 2, OUT)
                hi(f"buffer_load_dwordx2 {vr(vFD,2)}, v{vPO}, {W4}, s{sFBO} offen sc1")
            if s == 1:
                for k in range(8): hi(f"v_lshl_or_b32 v{WPq+k}, v{WPq+2*k+1}, 16, v{WPq+2*k}")
                hi(f"s_cmp_lg_u32 s{sBR}, 0\ns_cbranch_scc1 k2_x1\nv_cmp_ne_u64 vcc, {T}, {vr(vFD,2)}\ns_cbranch_vccz k2_qbok")
                poll(hi, "k2_pqb", sFBO, vPO, vFD)
                hi.label("k2_qbok")
                for t in range(2): hi(f"buffer_load_dwordx4 {vr(QB+4*t,4)}, v{vL16}, {W4}, s{sQO} offen offset:{t*1024}{LD}")
            if s == 2:
                hi(f"{MFMA} {vr(PS,16)}, {vr(WPq,4)}, {vr(QB,4)}, 0\n{MFMA} {vr(PS,16)}, {vr(WPq+4,4)}, {vr(QB+4,4)}, {vr(PS,16)}")
                hi(f"s_lshl_b32 s{sFBO}, s{sH2}, 7\ns_add_u32 s{sFBO}, s{sFBO}, {FR}\nv_bfe_u32 v{vPO}, v{vL16}, 4, 4\nv_lshlrev_b32 v{vPO}, 3, v{vPO}\ns_nop 7")
                softmax_pm(hi, PS, PH, PH + 8, TM)
            if s == 5: hi(f"buffer_load_dwordx2 {vr(vFD,2)}, v{vPO}, {W4}, s{sFBO} offen sc1")
            if s == 6:
                hi(f"v_cmp_ne_u64 vcc, {T}, {vr(vFD,2)}\ns_cbranch_vccz k2_frok")
                poll(hi, "k2_pfr", sFBO, vPO, vFD)
                hi.label("k2_frok")
                hi(f"s_lshl_b32 s8, s{sH2}, 12\ns_add_u32 s8, s8, {KR_OFF}")
                for f in range(4): hi(f"buffer_load_dwordx4 {vr(KF+4*f,4)}, v{vL16}, {W4}, s8 offen offset:{f*1024}{LD}")
            if s == GT - 1:
                w0(f"""s_lshl_b32 s{sFBO}, s{sPAIR}, 9
s_add_u32 s{sFBO}, s{sFBO}, {FB}
v_lshrrev_b32 v{vPO}, 1, v{vL16}
buffer_load_dwordx2 {vr(vFD,2)}, v{vPO}, {W4}, s{sFBO} offen sc1
s_lshl_b32 s{sPO}, s{sH2}, 17
s_lshr_b32 s8, s{sRB}, 2
s_lshl_b32 s9, s8, 11
s_add_u32 s{sPO}, s{sPO}, s9
s_and_b32 s9, s{sRB}, 3
s_lshl_b32 s9, s9, 8
s_add_u32 s{sPO}, s{sPO}, s9
s_add_u32 s{sPO}, s{sPO}, {KP_OFF}
s_lshl_b32 s12, s8, 10
s_add_u32 s12, s12, s9
s_lshl_b32 s9, s{sH2}, 12
s_add_u32 s12, s12, s9
s_add_u32 s12, s12, {KR_OFF}
v_lshrrev_b32 v{vT}, 9, v{vL16}
v_and_b32 v{vPO+1}, 0xf8, v{vPO}
v_lshl_add_u32 v{vPO+1}, v{vT}, 10, v{vPO+1}
v_and_b32 v{vPO+2}, 0xf0, v{vPO}
v_lshl_add_u32 v{vPO+2}, v{vT}, 3, v{vPO+2}
v_bfe_u32 v{vT}, v{vL16}, 4, 1
v_lshl_add_u32 v{vPO+2}, v{vT}, 2, v{vPO+2}""")
            if s == GT:
                w0(f"v_cmp_ne_u64 vcc, {T}, {vr(vFD,2)}\ns_cbranch_vccz k2_fbok")
                poll(w0, "k2_pb", sFBO, vPO, vFD)
                w0.label("k2_fbok")
                for k in range(16): w0(f"buffer_load_dwordx2 {vr(PL+2*k,2)}, v{vPO+1}, {W4}, s{sPO} offen{LD}\ns_add_u32 s{sPO}, s{sPO}, 8192")
            if s == GT + 1:
                for st_ in (16, 8, 4, 2):
                    for k in range(st_): w0(f"v_add_f32 v{PL+k}, v{PL+k}, v{PL+st_+k}")
                w0(f"v_cvt_pk_bf16_f32 v{PL}, v{PL}, v{PL+1}\nbuffer_store_dword v{PL}, v{vPO+2}, {W4}, s12 offen{ST}")
                w0(f"s_lshl_b32 s12, s{sH2}, 4\ns_add_u32 s12, s12, s{sRB}\ns_lshl_b32 s12, s12, 3\ns_add_u32 s12, s12, {FR}")
            if s == GT + 2: publish(w0, 12, vT, vT + 2)
            if hi.L:
                p(f"s_cmp_eq_u32 s{sHALF}, 0\ns_cbranch_scc1 k2_l{s}")
                p.L += hi.L
                if lo.L or w0.L: p(f"s_branch k2_x{s}")
                p.label(f"k2_l{s}")
            elif lo.L or w0.L: p(f"s_cmp_lg_u32 s{sHALF}, 0\ns_cbranch_scc1 k2_x{s}")
            p.L += lo.L
            if w0.L:
                p(f"s_cmp_lg_u32 s{sWAVE}, 0\ns_cbranch_scc1 k2_x{s}")
                p.L += w0.L
            p.label(f"k2_x{s}")
        if i == 25: wo_setup()
        e(10); e(11); c(4); e(12); c(5); e(13)
        if j == 3 and s in CHECK: p(f"v_cmp_gt_f32 vcc, v{O+12}, v{vTHR}")
        p(f"{MFMA} {vr(O,16)}, {vr(V0[i&1],4)}, {vr(P,4)}, {vr(O,16)}")
        ds = s + 3 if j >= 2 else s + 2
        if ds <= 7: dma_piece((j + 2) % 4)
        if i >= 26 and WOI < 8:
            for _ in range(2):
                if WOI % 4 == 0: p(f"s_lshl_b32 s8, s{sWAVE}, 13\ns_add_u32 m0, s8, {SLOT + WOI*1024}\ns_nop 0")
                p(f"buffer_load_dwordx4 v{vWD+WOI%4}, s[{WO}:{WO+3}], s{sWOO} offen offset:{(WOI%4)*1024} lds")
                if WOI % 4 == 3: p(f"s_add_u32 s{sWOO}, s{sWOO}, {32*896}")
                WOI += 1
        e(14); e(15); c(6); c(7)
        if j == 3 and s in CHECK:
            p(f"s_cbranch_vccnz k2_rs{s}")
            p.label(f"k2_cont{s}")
    stamp(p, 2)
    p("s_setprio 0\ns_waitcnt lgkmcnt(0)")
    p(f"{MFMA} {vr(O,16)}, {vr(V1,4)}, {vr(P+4,4)}, {vr(O,16)}")
    p(f"""s_lshl_b32 s8, s{sTILE}, 4
s_add_u32 s{sFLB}, s8, s{sH2}
s_lshl_b32 s8, s{sFLB}, 11
s_add_u32 s8, s8, {O_OFF}
s_lshl_b32 s{sFLB}, s{sFLB}, {FS3}
s_add_u32 s{sFLB}, s{sFLB}, {FO}
s_and_b32 s9, s{sWAVE}, 3
s_mul_i32 s9, s9, 5120
s_add_u32 s9, s9, {XA + 8192}
v_add_u32 v{vT+2}, s9, v{vL16}
s_cmp_eq_u32 s{sHALF}, 0
s_cbranch_scc1 k2_fin""")
    p(f"ds_write_b32 v{vT+2}, v{vNM} offset:4096")
    for q in range(4): p(f"ds_write_b128 v{vT+2}, {vr(O+4*q,4)} offset:{q*1024}")
    p("s_waitcnt vmcnt(0) lgkmcnt(0)\ns_barrier")
    stamp(p, 3)
    p(f"s_add_u32 s8, s8, {2*MB}\ns_add_u32 s{sFLB}, s{sFLB}, {1024 << FS3}")
    for f in range(4): p(f"{MFMA} v[32:47], {vr(KF+4*f,4)}, {vr(PH+4*f,4)}, {'0' if f == 0 else 'v[32:47]'}")
    p(f"s_nop 11\nv_mov_b32 v{vT+2}, v44\nv_mov_b32 v{vT+3}, v44\ns_nop 1\nv_permlane32_swap_b32 v{vT+2}, v{vT+3}\ns_nop 0")
    p(f"v_add_f32 v{vT+2}, {f32(1e-6)}, v{vT+3}\nv_rcp_f32 v{vT+2}, v{vT+2}\ns_nop 0")
    for j in range(0, 16, 2): p(pk("v_pk_mul_f32", O + j, vr(32 + j, 2), vr(vT + 2, 2), "op_sel_hi:[1,0]"))
    p("s_branch k2_out")
    p.label("k2_fin")
    p("s_waitcnt vmcnt(0)\ns_barrier")
    stamp(p, 3)
    p(f"ds_read_b32 v{vT+7}, v{vT+2} offset:4096")
    for q in range(4): p(f"ds_read_b128 {vr(16+4*q,4)}, v{vT+2} offset:{q*1024}")
    p(f"""v_mov_b32 v{vT}, {f32(2.0**-120)}
v_mov_b32 v{vT+1}, {f32(2.0**120)}
s_waitcnt lgkmcnt(4)
v_min_f32 v{vT+3}, v{vNM}, v{vT+7}
v_sub_f32 v{vT+4}, v{vT+3}, v{vNM}
v_sub_f32 v{vT+6}, v{vT+3}, v{vT+7}
v_exp_f32 v{vT+4}, v{vT+4}
v_exp_f32 v{vT+6}, v{vT+6}""")
    for j in range(0, 16, 2): p(pk("v_pk_mul_f32", O + j, vr(O + j, 2), vr(vT + 4, 2), "op_sel_hi:[1,0]"))
    for q in (3, 0, 1, 2):
        if q == 3: p("s_waitcnt lgkmcnt(0)")
        for j in range(4 * q, 4 * q + 4, 2):
            p(f"v_pk_fma_f32 {vr(O+j,2)}, {vr(16+j,2)}, {vr(vT+6,2)}, {vr(O+j,2)} op_sel_hi:[1,0,1]")
        if q == 3: p(f"v_mov_b32 v{vT+4}, v{O+12}\nv_mov_b32 v{vT+5}, v{O+12}")
    p(f"v_permlane32_swap_b32 v{vT+4}, v{vT+5}\ns_nop 0\nv_rcp_f32 v{vT+4}, v{vT+5}")
    p(f"v_cmp_nlt_f32 vcc, v{vT}, v{vT+5}\nv_cmp_nlt_f32 s[10:11], v{vT+5}, v{vT+1}")
    p(f"v_maximum3_f32 v{vT+2}, abs(v{O}), abs(v{O+1}), abs(v{O+2})")
    for j in range(3, 15, 2): p(f"v_maximum3_f32 v{vT+2}, v{vT+2}, abs(v{O+j}), abs(v{O+j+1})")
    p(f"v_maximum3_f32 v{vT+2}, v{vT+2}, abs(v{O+15}), abs(v{O+15})\ns_or_b64 s[10:11], vcc, s[10:11]")
    p(f"v_cmp_nlt_f32 vcc, v{vT+2}, v{vT+1}")
    for j in range(0, 16, 2): p(pk("v_pk_mul_f32", O + j, vr(O + j, 2), vr(vT + 4, 2), "op_sel_hi:[1,0]"))
    p("s_or_b64 vcc, vcc, s[10:11]\ns_cbranch_vccnz k2_slow")
    p.label("k2_out")
    def o_store(src, dst, so):
        for j in range(8): p(f"v_cvt_pk_bf16_f32 v{dst+j}, v{src+2*j}, v{src+2*j+1}")
        p(f"v_cndmask_b32 v{dst+6}, v{dst+6}, 0, {sr(sUP,2)}\nv_cndmask_b32 v{dst+7}, v{dst+7}, 0, {sr(sUP,2)}")
        for t in range(2): p(f"buffer_store_dwordx4 {vr(dst+4*t,4)}, v{vL16}, {W4}, s{so} offen offset:{t*1024}{ST}")
    o_store(O, 16, 8)
    stamp(p, 4)
    vWA, vST = 8, 9
    WF = [12, 28]; AC = 44; OF = 76; NR = 9
    p(f"""v_lshrrev_b32 v2, 4, v{vL16}
v_lshrrev_b32 v4, 5, v2
v_bfe_u32 v5, v2, 2, 2
v_lshl_add_u32 v6, v4, 2, v5
v_lshlrev_b32 v6, 7, v6
v_bfe_u32 v7, v2, 4, 1
v_lshl_add_u32 v6, v7, 5, v6
v_and_b32 v7, 3, v2
v_lshl_add_u32 v6, v7, 3, v6
v_lshlrev_b32 v5, 5, v5
v_and_b32 v5, 64, v5
v_add_u32 v{vWA}, v6, v5
s_lshl_b32 s12, s{sRB3}, 2
s_add_u32 s12, s12, s{sWAVE}
s_lshl_b32 s13, s12, 15
s_lshl_b32 s14, s{sB3}, 21
s_add_u32 s13, s13, s14
s_lshr_b32 s11, s13, {11 - FS3}
s_add_u32 s11, s11, {FO}
s_add_u32 s13, s13, {O_OFF}
v_and_b32 v5, 31, v2
s_lshl_b32 s12, s12, 5
v_add_u32 v5, s12, v5
s_movk_i32 s9, 1792
v_mul_u32_u24 v5, s9, v5
v_lshl_add_u32 v{vST}, v4, 4, v5
s_mul_i32 s12, s{sB3}, 896
s_lshl_b32 s14, s{sCB3}, 7
s_add_u32 s12, s12, s14
v_and_b32 v3, 15, v2
v_lshlrev_b32 v3, {FS3}, v3
v_add_u32 v{vWA}, {SLOT}, v{vWA}
v_xor_b32 v{vWA+2}, 64, v{vWA}""")
    srd(p, OUT, 30, OUT_BYTES)
    p("s_waitcnt vmcnt(0)")
    publish(p, sFLB, 4, 6)
    stamp(p, 5)
    stamp_out(p, 1)
    stamp(p, 0)
    p(f"s_cmp_ge_u32 s{sWAVE}, 4\ns_cbranch_scc1 k_end\ns_cmp_ge_u32 s2, 224\ns_cbranch_scc1 k_end")
    if OPT['prog']:
        D = OPT["d3"]
        WR = [76 + 16 * i for i in range(D + 1)]; OR = [76 + 16 * (D + 1) + 8 * i for i in range(D + 1)]
        sTODO, sRDY, sHH = 40, 41, 42
        p(f"s_mov_b32 s{sTODO}, 0xffff\ns_mov_b32 s{sRDY}, 0\ns_mov_b32 s62, 0x200000")
        def mm(i):
            st, of = WR[i % (D + 1)], OR[i % (D + 1)]
            for t in range(2):
                for ct in range(2):
                    c = "0" if (i == 0 and t == 0) else vr(AC + 16 * ct, 16)
                    p(f"{MFMA} {vr(AC+16*ct,16)}, {vr(st+8*t+4*ct,4)}, {vr(of+4*t,4)}, {c}")
        for i in range(16):
            st, of = WR[i % (D + 1)], OR[i % (D + 1)]
            p(f"""s_and_b32 s8, s{sRDY}, s{sTODO}
s_cbranch_scc1 k3_go{i}
k3_p{i}:
{"s_mov_b32 exec_lo, s" + str(sTODO) + chr(10) + "s_mov_b32 exec_hi, 0" if OPT["pmask"] else ""}
buffer_load_dwordx2 v[6:7], v3, {W4}, s11 offen sc1
s_sub_u32 s62, s62, 1
s_cselect_b32 s9, -1, 0
s_waitcnt vmcnt(0)
v_cmp_eq_u64 vcc, {sr(sTAG,2)}, v[6:7]
s_mov_b64 exec, -1
s_or_b32 s{sRDY}, vcc_lo, s9
s_and_b32 s8, s{sRDY}, s{sTODO}
s_cbranch_scc1 k3_go{i}
s_sleep {OPT['slp3']}
s_branch k3_p{i}
k3_go{i}:
s_ff1_i32_b32 s{sHH}, s8
s_bitset0_b32 s{sTODO}, s{sHH}
s_lshl_b32 s8, s{sHH}, 11
s_add_u32 s8, s8, s13
s_mul_i32 s9, s{sHH}, {28*128}""")
            for t in range(2): p(f"buffer_load_dwordx4 {vr(of+4*t,4)}, v{vL16}, {W4}, s8 offen offset:{t*1024}{LD}")
            p(f"v_add_u32 v4, s9, v{vWA}\nv_add_u32 v5, s9, v{vWA+2}")
            for t in range(2):
                for ct in range(2):
                    for x in range(2): p(f"ds_read_b64_tr_b16 {vr(st+8*t+4*ct+2*x,2)}, v{4+ct} offset:{(16*t+8*x)*128}")
            if i == 0: stamp(p, 1)
            if i >= D:
                p(f"s_waitcnt vmcnt({2*D}) lgkmcnt(8)"); mm(i - D)
        stamp(p, 2)
        for i in range(16 - D, 16):
            p(f"s_waitcnt vmcnt({2*(15-i)}) lgkmcnt(0)"); mm(i)
    else:
        def reads(h):
            st = WF[h & 1]
            for t in range(2):
                for ct in range(2):
                    for x in range(2):
                        p(f"ds_read_b64_tr_b16 {vr(st+8*t+4*ct+2*x,2)}, v{vWA+2*ct} offset:{(28*h+16*t+8*x)*128}")
        reads(0)
        poll(p, "k3_poll", 11, 3, 6)
        stamp(p, 1)
        def oload(h):
            for t in range(2):
                p(f"buffer_load_dwordx4 {vr(OF+8*(h%NR)+4*t,4)}, v{vL16}, {W4}, s13 offen offset:{(h&1)*2048+t*1024}{LD}")
            if h & 1: p("s_add_u32 s13, s13, 4096")
        for h in range(8): oload(h)
        stamp(p, 2)
        for h in range(16):
            if h < 15: reads(h + 1)
            if h < 8: oload(h + 8)
            p(f"s_waitcnt vmcnt({16 if h < 8 else 30-2*h}) lgkmcnt({8 if h < 15 else 0})")
            st = WF[h & 1]
            for t in range(2):
                for ct in range(2):
                    c = "0" if (h == 0 and t == 0) else vr(AC + 16 * ct, 16)
                    p(f"{MFMA} {vr(AC+16*ct,16)}, {vr(st+8*t+4*ct,4)}, {vr(OF+8*(h%NR)+4*t,4)}, {c}")
    stamp(p, 3)
    p("s_nop 10")
    for ct in range(2):
        for j in range(8): p(f"v_cvt_pk_bf16_f32 v{WF[0]+8*ct+j}, v{AC+16*ct+2*j}, v{AC+16*ct+2*j+1}")
        if ct == 1: p("s_nop 0")
    for ct in range(2):
        for gp in range(2):
            b = WF[0] + 8 * ct + 4 * gp
            p(f"v_permlane32_swap_b32 v{b}, v{b+2}\nv_permlane32_swap_b32 v{b+1}, v{b+3}")
            p(f"buffer_store_dwordx4 {vr(b,4)}, v{vST}, s[{OUT}:{OUT+3}], s12 offen offset:{ct*64+gp*32}{OST}")
    stamp(p, 4)
    if STAMP: p("s_waitcnt vmcnt(0)")
    stamp(p, 5); stamp_out(p, 2)
    p.label("k_end")
    p("s_endpgm")
    for s in CHECK:
        p.label(f"k2_rs{s}")
        p(f"s_mov_b32 s{sRET}, {s}\ns_branch k2_rescale")
    p.label("k2_rescale")
    p("s_waitcnt lgkmcnt(0)")
    p(f"{MFMA} {vr(O,16)}, {vr(V1,4)}, {vr(P+4,4)}, {vr(O,16)}\ns_nop 11")
    p(f"v_mov_b32 v{vT}, v{O+12}\nv_mov_b32 v{vT+1}, v{O+12}")
    for j in range(4): p(f"v_mov_b32 v{P+4+j}, 0")
    p(f"""v_permlane32_swap_b32 v{vT}, v{vT+1}
s_nop 0
v_frexp_exp_i32_f32 v{vT}, v{vT+1}
v_max_i32 v{vT}, 0, v{vT}
v_cvt_f32_i32 v{vT}, v{vT}
v_sub_f32 v{vT}, v{vNM}, v{vT}
v_cvt_pk_bf16_f32 v{vT}, v{vT}, 0
v_lshlrev_b32 v{vT+1}, 16, v{vT}
v_cndmask_b32 v{Q+6}, v{Q+6}, v{vT}, {sr(sUP,2)}
v_sub_f32 v{vT}, v{vT+1}, v{vNM}
v_mov_b32 v{vNM}, v{vT+1}
v_exp_f32 v{vT+1}, v{vT}""")
    for j in range(16): p(f"v_add_f32 v{S[0]+j}, v{S[0]+j}, v{vT}")
    for j in range(16): p(f"v_mul_f32 v{O+j}, v{O+j}, v{vT+1}")
    for s in CHECK[:-1]: p(f"s_cmp_eq_u32 s{sRET}, {s}\ns_cbranch_scc1 k2_cont{s}")
    p(f"s_branch k2_cont{CHECK[-1]}")
    p.label("k2_slow")
    p(f"s_lshl_b32 s{sKO}, s{sH2}, 18\ns_add_u32 s{sKO}, s{sKO}, {KV_OFF}\ns_mov_b32 s{sCNT}, 0\nv_cndmask_b32 v{Q+6}, v{Q+6}, 0, {sr(sUP,2)}\nv_mov_b32 v{vNM}, 0xff7fffff")
    for j in range(16): p(f"v_mov_b32 v{O+j}, 0")
    p.label("k2_sloop")
    for f in range(4): p(f"buffer_load_dwordx4 {vr(K+4*f,4)}, v{vL16}, {W4}, s{sKO} offen offset:{f*1024}{LD}")
    p(f"s_add_u32 s{sKO}, s{sKO}, 4096\ns_add_u32 s{sCNT}, s{sCNT}, 1\ns_waitcnt vmcnt(0)")
    p(f"{MFMA} {vr(S[0],16)}, {vr(K,4)}, {vr(Q,4)}, 0\n{MFMA} {vr(S[0],16)}, {vr(K+4,4)}, {vr(Q+4,4)}, {vr(S[0],16)}\ns_nop 11")
    p(f"v_max3_f32 v{vT}, v{S[0]}, v{S[0]+1}, v{vNM}")
    for j in range(2, 16, 2): p(f"v_max3_f32 v{vT}, v{vT}, v{S[0]+j}, v{S[0]+j+1}")
    xhalf(p, "v_max_f32", vT, vT + 1)
    p(f"v_sub_f32 v{vT+1}, v{vNM}, v{vT}\nv_mov_b32 v{vNM}, v{vT}\nv_exp_f32 v{vT+1}, v{vT+1}")
    for j in range(16): p(f"v_sub_f32 v{S[0]+j}, v{S[0]+j}, v{vT}")
    for j in range(16): p(f"v_exp_f32 v{S[0]+j}, v{S[0]+j}")
    for j in range(16): p(f"v_mul_f32 v{O+j}, v{O+j}, v{vT+1}")
    for j in range(8): p(f"v_cvt_pk_bf16_f32 v{P+j}, v{S[0]+2*j}, v{S[0]+2*j+1}")
    p("s_nop 1")
    p(f"{MFMA} {vr(O,16)}, {vr(K+8,4)}, {vr(P,4)}, {vr(O,16)}\n{MFMA} {vr(O,16)}, {vr(K+12,4)}, {vr(P+4,4)}, {vr(O,16)}")
    p(f"s_cmp_lt_u32 s{sCNT}, 64\ns_cbranch_scc1 k2_sloop")
    p(f"s_nop 11\nv_mov_b32 v{vT}, v{O+12}\nv_mov_b32 v{vT+1}, v{O+12}\ns_nop 1\nv_permlane32_swap_b32 v{vT}, v{vT+1}\ns_nop 0\nv_rcp_f32 v{vT+1}, v{vT+1}\ns_nop 0")
    for j in range(16): p(f"v_mul_f32 v{O+j}, v{O+j}, v{vT+1}")
    p("s_branch k2_out")

def main(out):
    p = Prog()
    phase23(p, phase1(p))
    hdr = open(f"cdna_kernels/{NAME}.s.ref").read().split("\n")
    lines = [l for l in hdr if l.startswith("; Kernarg") or l.startswith(";   offset")]
    s = "\n".join(lines) + "\n; @launch grid=(256,1,1) block=(512,1,1) lds=163840\n"
    s += '.amdgcn_target "amdgcn-amd-amdhsa--gfx950"\n.text\n'
    bad = len(p.check())
    s += f".globl {KNAME}\n.p2align 8\n.type {KNAME},@function\n{KNAME}:\n" + p.text()
    nv, ns = p.max_regs()
    s += f"""code_end:
.section .rodata,"a"
.p2align 6
.amdhsa_kernel {KNAME}
  .amdhsa_next_free_vgpr {nv}
  .amdhsa_next_free_sgpr {ns}
  .amdhsa_accum_offset {(nv + 3) // 4 * 4}
  .amdhsa_group_segment_fixed_size 0
  .amdhsa_kernarg_size 80
  .amdhsa_user_sgpr_count 2
  .amdhsa_user_sgpr_kernarg_segment_ptr 1
  .amdhsa_system_sgpr_workgroup_id_x 1
.end_amdhsa_kernel
"""
    open(out, "w").write(s)
    print("vgpr", nv, "sgpr", ns, "instr", len(p.L), "hazards:", bad)

if __name__ == "__main__":
    main(sys.argv[1] if len(sys.argv) > 1 else f"cdna_kernels/{NAME}.s")
```

```python
import sys, math, struct
sys.path.insert(0, "gen")
from asmlib import Prog, vr, sr

NAME = "concat_heads__mha_block__linear_kernel_hedgehog__prompt"
KNAME = NAME + "_kernel"
MB = 1 << 20
Q_OFF, KV_OFF, PQ_OFF, FL_OFF, KP_OFF, O_OFF, WS_USED = 0, 2 * MB, 6 * MB, 9 * MB, 10 * MB, 12 * MB, 16 * MB
FKV, FQ, FB, FQB, FR, FO = [FL_OFF + 4096 * i for i in range(6)]
FQ2 = FL_OFF + 512 * 1024
MO = FL_OFF + 768 * 1024
CKV = MO + 128 * 128
KR_OFF = 8 * MB
X_BYTES, W_BYTES, WO_BYTES, WPHI_BYTES, OUT_BYTES = 2048 * 896, 448 * 2688, 448 * 896, 16 * 1568, 2048 * 1792
LOG2E = 1.4426950408889634
MFMA = "v_mfma_f32_32x32x16_bf16"
def f32(x): return "0x%08x" % struct.unpack("<I", struct.pack("<f", x))[0]

OPT = dict(prio=1, rot=1, hw=2, pfc=1, b8=200, ost="", eprio=1, gate=2, zpad=1, prog=1, d3=3, pmask=1, slp3=4, fs3=7, fkn=54, la=4, askn=46, tryn=55, slp=6, qprio=1, abar=1, fsq=7)
for _a in sys.argv[2:]:
    if "=" in _a:
        _k, _v = _a.split("=", 1); OPT[_k] = _v.replace("+", " ") if _k == "ost" else int(_v)
ST = LD = " sc1"
FS3 = OPT['fs3']
OST = (" " + OPT["ost"]) if OPT["ost"] else ""
STAMP = "stamp" in sys.argv[2:]

sBR, sRB, sPAIR = 3, 4, 5
WS, sUP, sWAVE, sTAG, DBG = 44, 60, 96, 98, 92
W4 = f"s[{WS}:{WS+3}]"

def srd(p, d, base, nbytes):
    p(f"s_mov_b32 s{d}, s{base}\ns_mov_b32 s{d+1}, s{base+1}\ns_mov_b32 s{d+2}, {hex(nbytes)}\ns_mov_b32 s{d+3}, 0x20000")
def stamp(p, i):
    if STAMP: p(f"{'s_memrealtime' if 'rt' in sys.argv[2:] else 's_memtime'} s[{64+2*i}:{65+2*i}]")
def stamp_out(p, kidx, n=10):
    if not STAMP: return
    p(f"s_waitcnt lgkmcnt(0)\ns_mov_b32 s88, s34\ns_mov_b32 s89, s35\ns_mov_b32 s90, 0x4000000\ns_mov_b32 s91, 0x20000")
    p(f"s_lshl_b32 s62, s2, 4\ns_add_u32 s62, s62, s{sWAVE}\ns_lshl_b32 s62, s62, 6\ns_add_u32 s62, s62, {32*MB + kidx*MB}\nv_mov_b32 v254, 0")
    for i in range(n): p(f"v_mov_b32 v255, s{64+2*i}\nbuffer_store_dword v255, v254, s[88:91], s62 offen offset:{4*i}")
def xhalf(p, op, x, t):
    p(f"v_mov_b32 v{t}, v{x}\ns_nop 1\nv_permlane32_swap_b32 v{x}, v{t}\ns_nop 0\n{op} v{x}, v{x}, v{t}")
def pk(op, d, a, b, mods=""): return f"{op} {vr(d,2)}, {a}, {b} {mods}".rstrip()

def softmax_pm(p, P, OP, OM, T):
    E = T
    mx, mn, a0, a1, b0, b1, c0, c1, rp, rp2, rm, rm2 = [T + 16 + i for i in range(12)]
    U = sr(sUP, 2)
    p(f"v_max3_f32 v{mx}, v{P}, v{P+1}, v{P+2}\nv_min3_f32 v{mn}, v{P}, v{P+1}, v{P+2}")
    for j in range(3, 15, 2):
        p(f"v_max3_f32 v{mx}, v{mx}, v{P+j}, v{P+j+1}\nv_min3_f32 v{mn}, v{mn}, v{P+j}, v{P+j+1}")
    p(f"v_max_f32 v{mx}, v{mx}, v{P+15}\nv_min_f32 v{mn}, v{mn}, v{P+15}")
    p(f"v_mov_b32 v{a0}, v{mx}\nv_mov_b32 v{a1}, v{mn}\ns_nop 0")
    p(f"v_permlane32_swap_b32 v{mx}, v{a0}\nv_permlane32_swap_b32 v{mn}, v{a1}\ns_nop 0")
    p(f"v_max_f32 v{mx}, v{mx}, v{a0}\nv_min_f32 v{mn}, v{mn}, v{a1}")
    for j in range(16): p(f"v_sub_f32 v{E+j}, v{mn}, v{P+j}\nv_sub_f32 v{P+j}, v{P+j}, v{mx}")
    for j in range(16): p(f"v_exp_f32 v{E+j}, v{E+j}\nv_exp_f32 v{P+j}, v{P+j}")
    for (B, s, t) in ((E, b0, c0), (P, a0, c0)):
        p(f"v_add_f32 v{t}, v{B+12}, v{B+13}\nv_add_f32 v{s}, v{B}, v{B+1}\nv_add_f32 v{s+1}, v{B+2}, v{B+3}\nv_add_f32 v{t}, v{t}, v{B+14}")
        p(f"v_add_f32 v{s}, v{s}, v{B+4}\nv_add_f32 v{s+1}, v{s+1}, v{B+5}\nv_add_f32 v{t}, v{t}, v{B+15}")
        for j in range(6, 12, 2): p(f"v_add_f32 v{s}, v{s}, v{B+j}\nv_add_f32 v{s+1}, v{s+1}, v{B+j+1}")
        p(f"v_cndmask_b32 v{t}, v{t}, 0, {U}\nv_add_f32 v{s}, v{s}, v{s+1}\nv_add_f32 v{s}, v{s}, v{t}")
    p(f"v_mov_b32 v{a1}, v{a0}\nv_mov_b32 v{b1}, v{b0}\ns_nop 0")
    p(f"v_permlane32_swap_b32 v{a0}, v{a1}\nv_permlane32_swap_b32 v{b0}, v{b1}\ns_nop 0")
    p(f"v_add_f32 v{a0}, v{a0}, v{a1}\nv_add_f32 v{b0}, v{b0}, v{b1}")
    p(f"v_rcp_f32 v{rp}, v{a0}\nv_rcp_f32 v{rm}, v{b0}\ns_nop 0")
    p(f"v_cndmask_b32 v{rp2}, v{rp}, 0, {U}\nv_cndmask_b32 v{rm2}, v{rm}, 0, {U}")
    for j in range(16): p(f"v_mul_f32 v{P+j}, v{P+j}, v{rp if j < 12 else rp2}\nv_mul_f32 v{E+j}, v{E+j}, v{rm if j < 12 else rm2}")
    for j in range(8): p(f"v_cvt_pk_bf16_f32 v{OP+j}, v{P+2*j}, v{P+2*j+1}\nv_cvt_pk_bf16_f32 v{OM+j}, v{E+2*j}, v{E+2*j+1}")

class Tr:
    def __init__(self): self.L = []
    def __call__(self, text):
        for line in text.strip("\n").split("\n"):
            if line.strip(): self.L.append(line.strip())
    def ds(self, text, tag=None): self.L.append(("ds", text, tag))
    def wait(self, tag): self.L.append(("wait", tag))
def emit(p, L):
    seq = []
    for it in L:
        if isinstance(it, str):
            if it.startswith("ds_"): seq.append(None)
            p(it)
        elif it[0] == "ds":
            seq.append(it[2]); p(it[1])
        else:
            idx = max(i for i, t in enumerate(seq) if t == it[1])
            p(f"s_waitcnt lgkmcnt({min(15, len(seq) - 1 - idx)})")

def wphi_loads(p, dst, sHD, vLo, vHi, vt, WP):
    p(f"""v_add_u32 v{vt}, -4, v{vLo}
v_cmp_gt_u32 vcc, 28, v{vLo}
s_movk_i32 s9, 224
s_mul_i32 s14, s{sHD}, 1568
v_cndmask_b32 v{vt}, v{vt}, v{vLo}, vcc
v_lshlrev_b32 v{vt}, 1, v{vt}
v_mad_u32_u24 v{vt}, v{vHi}, s9, v{vt}
v_lshlrev_b32 v{vt+1}, 20, v{vHi}
v_add_u32 v{vt+1}, v{vt+1}, v{vt}""")
    for t in range(2):
        for jj in range(8):
            d = 16 * t + 8 * (jj >> 2) + (jj & 3)
            p(f"buffer_load_ushort v{dst+8*t+jj}, v{vt + 1 if (t == 1 and jj >= 4) else vt}, s[{WP}:{WP+3}], s14 offen offset:{d*56}")

def tag_load(p, vD, vZ): p(f"v_mov_b32 v{vZ}, 0\nbuffer_load_dwordx2 {vr(vD,2)}, v{vZ}, s[{DBG}:{DBG+3}], 0 offen sc1")
def tag_get(p, name, vD, vZ):
    p(f"""s_mov_b32 s62, 0x40000
{name}:
v_readfirstlane_b32 s{sTAG}, v{vD}
v_readfirstlane_b32 s{sTAG+1}, v{vD+1}
s_sub_u32 s62, s62, 1
s_cbranch_scc1 {name}_x
s_cmp_lg_u32 s{sTAG}, 0
s_cbranch_scc1 {name}_x
s_sleep 2
v_mov_b32 v{vZ}, 0
buffer_load_dwordx2 {vr(vD,2)}, v{vZ}, s[{DBG}:{DBG+3}], 0 offen sc1
s_waitcnt vmcnt(0)
s_branch {name}
{name}_x:""")
def poll(p, name, sOFF, vA, vD, wide=False):
    T = sr(sTAG, 2)
    ld = f"buffer_load_dwordx4 {vr(vD,4)}" if wide else f"buffer_load_dwordx2 {vr(vD,2)}"
    p(f"s_mov_b32 s62, 0x40000\n{name}:\n{ld}, v{vA}, {W4}, s{sOFF} offen sc1\ns_sub_u32 s62, s62, 1\ns_waitcnt vmcnt(0)")
    p(f"v_cmp_ne_u64 vcc, {T}, {vr(vD,2)}")
    if wide: p(f"v_cmp_ne_u64 s[14:15], {T}, {vr(vD+2,2)}\ns_or_b64 vcc, vcc, s[14:15]")
    p(f"s_cmp_eq_u32 s62, 0\ns_cbranch_scc1 {name}_x\ns_cbranch_vccz {name}_x\ns_sleep {OPT['slp']}\ns_branch {name}\n{name}_x:")
def atom(p, op, vD, vZ, sOFF, ret=False):
    p(f"s_mov_b64 exec, 1\n{op} {vD}, v{vZ}, {W4}, s{sOFF} offen {'sc0 ' if ret else ''}sc1\ns_mov_b64 exec, -1")
def publish(p, sOFF, vZ, vD):
    p(f"""v_mov_b32 v{vD}, s{sTAG}
v_mov_b32 v{vD+1}, s{sTAG+1}
v_mov_b32 v{vZ}, 0
s_mov_b64 exec, 1
buffer_store_dwordx2 {vr(vD,2)}, v{vZ}, {W4}, s{sOFF} offen sc1
s_mov_b64 exec, -1""")

RING = 7 * 16384
SLOT = 32768
SL = (1, 2, 0, 3)
XA = 131072
vL16, vRA, vRB, vFA, vTHR, vNM = 1, 2, 3, 4, 5, 6
Q2 = 84
QB2 = 128
QLDS = 6 * 16384
sKO, sH2 = 40, 41

sRD0, sTD0, sSH, sCK = 84, 86, 100, 101
def ask_kv(q, vM, vZ):
    q(f"v_mov_b32 v{vM}, 0\nv_mov_b32 v{vM+1}, 0\ns_mov_b64 exec, 1\nbuffer_atomic_or_x2 {vr(vM,2)}, v{vZ}, {W4}, s{sCK} offen sc0 sc1\ns_mov_b64 exec, -1")
def masks(q, vM):
    q(f"""v_readfirstlane_b32 s{sRD0}, v{vM}
v_readfirstlane_b32 s{sRD0+1}, v{vM+1}
s_lshr_b64 s[{sRD0}:{sRD0+1}], s[{sRD0}:{sRD0+1}], s{sSH}
s_lshr_b64 s[8:9], s[{sRD0}:{sRD0+1}], 2
s_and_b64 s[{sRD0}:{sRD0+1}], s[{sRD0}:{sRD0+1}], s[8:9]
s_and_b32 s{sRD0}, s{sRD0}, 0x11111111
s_and_b32 s{sRD0+1}, s{sRD0+1}, 0x11111111""")
def pick(q, name, hf, dst, base, vM, vZ):
    q(f"s_and_b32 s8, s{sRD0+hf}, s{sTD0+hf}\ns_cbranch_scc1 {name}_g\ns_mov_b32 s62, 0x40000\n{name}_p:")
    ask_kv(q, vM, vZ)
    q("s_waitcnt vmcnt(0)")
    masks(q, vM)
    q(f"""s_sub_u32 s62, s62, 1
s_cselect_b32 s8, -1, s{sRD0+hf}
s_and_b32 s8, s8, s{sTD0+hf}
s_cbranch_scc1 {name}_g
s_sleep {OPT['slp']}
s_branch {name}_p
{name}_g:
s_ff1_i32_b32 s8, s8
s_bitset0_b32 s{sTD0+hf}, s8
s_lshl_b32 s8, s8, 12
s_add_u32 s{dst}, s8, s{base}""")
def early(q, st, vM, vZ, tag):
    for hf in range(2):
        pick(q, f"k1_e{tag}{hf}", hf, 9, (13, 14)[hf], vM, vZ)
        q(f"s_add_u32 m0, s63, {SL[st] * SLOT + hf * 16384}\ns_nop 0")
        for f in range(4): q(f"buffer_load_dwordx4 v{vL16}, {W4}, s9 offen offset:{f*1024}{LD} lds")

def phase1(p):
    sWV = 6
    X, W, WP = 36, 40, 48
    sXO, sWO, sRS, sCNT, sT, sH = 52, 53, 55, 56, 57, 59
    sM0X, sST, sXB, sWB, sM0Q, sFL = 63, 54, 58, 51, 50, 97
    vL, vXD, vWD, vQD = 21, 2, 6, 10
    vXA0, vWA0, vXA, vWA, vRD2 = 2, 10, 12, 16, 19
    vT = 22
    XF = [28, 36]; WF = [44, 52]
    AK, AV = 100, 132
    WPH = 164
    QPOS = [RING + 16384, RING + 24576, RING + 32768, RING + 40960, 0, 8192, 16384]
    def wslot(t): return RING + (t % 3) * 16384 if t < 7 else QPOS[t - 7]
    p("s_cmp_ge_u32 s2, 256\ns_cbranch_scc1 k_end")
    stamp(p, 0)
    p("s_load_dwordx16 s[16:31], s[0:1], 0\ns_load_dwordx4 s[32:35], s[0:1], 64")
    p(f"""v_lshrrev_b32 v{vT}, 6, v0
v_and_b32 v{vL}, 63, v0
s_and_b32 s7, s2, 7
s_lshr_b32 s8, s2, 3
v_readfirstlane_b32 s{sWAVE}, v{vT}
s_lshr_b32 s{sBR}, s7, 2
s_bfe_u32 s9, s7, 0x10001
s_lshl_b32 s9, s9, 3
s_lshr_b32 s10, s8, 2
s_add_u32 s{sRB}, s10, s9
s_and_b32 s9, s7, 1
s_lshl_b32 s9, s9, 2
s_and_b32 s11, s8, 3
s_add_u32 s{sPAIR}, s11, s9
s_and_b32 s{sWV}, s{sWAVE}, 3
s_mov_b32 s{sUP}, 0
s_mov_b32 s{sUP+1}, -1
v_lshlrev_b32 v{vL16}, 4, v{vL}
s_cmp_lt_u32 s{sWAVE}, 4
s_cbranch_scc1 k1_compute""")
    p(f"""s_lshl_b32 s11, s11, 1
s_add_u32 s{sST}, s10, s11
s_cmp_ge_u32 s{sST}, 7
s_cselect_b32 s9, 7, 0
s_sub_u32 s{sST}, s{sST}, s9
s_cmp_ge_u32 s{sST}, 7
s_cselect_b32 s9, 7, 0
s_sub_u32 s{sST}, s{sST}, s9""")
    if not OPT["rot"]: p(f"s_mov_b32 s{sST}, 0")
    p(f"v_lshrrev_b32 v{vT}, 3, v{vL}\nv_and_b32 v{vT+1}, 7, v{vL}\nv_lshrrev_b32 v{vT+2}, 4, v{vL}")
    p(f"s_mul_i32 s7, s{sWV}, {32*896}\ns_movk_i32 s8, 896\nv_mul_u32_u24 v{vT+4}, s8, v{vT}\nv_add_u32 v{vT+4}, s7, v{vT+4}")
    for i in range(2):
        p(f"""v_xor_b32 v{vT+3}, {4*i}, v{vT+2}
v_xor_b32 v{vT+3}, v{vT+3}, v{vT+1}
v_lshl_add_u32 v{vT+3}, v{vT+3}, 4, v{vT+4}
v_add_u32 v{vXD+i}, {8*i*896 - i*1024}, v{vT+3}
v_add_u32 v{vXD+i+2}, {8*(i+2)*896 - (i+2)*1024}, v{vT+3}""")
    p(f"""s_mul_i32 s{sXB}, s{sRB}, {128*896}
s_mul_i32 s{sWB}, s{sPAIR}, 112
s_lshl_b32 s{sM0X}, s{sWV}, 12
s_lshl_b32 s{sM0Q}, s{sWV}, 11
s_cmp_eq_u32 s{sBR}, 0
s_waitcnt lgkmcnt(0)
s_cselect_b64 s[8:9], s[16:17], s[22:23]
s_cselect_b64 s[10:11], s[18:19], s[24:25]""")
    stamp(p, 1)
    srd(p, X, 8, X_BYTES); srd(p, W, 10, W_BYTES)
    def stage_off(q, x=True):
        if x: q(f"s_lshl_b32 s{sXO}, s{sST}, 7\ns_add_u32 s{sXO}, s{sXO}, s{sXB}")
        q(f"s_mul_i32 s{sWO}, s{sST}, {64*2688}\ns_add_u32 s{sWO}, s{sWO}, s{sWB}\ns_add_u32 s{sST}, s{sST}, 1\ns_cmp_ge_u32 s{sST}, 7\ns_cselect_b32 s{sST}, 0, s{sST}")
    def dma_x(t):
        p(f"s_add_u32 m0, s{sM0X}, {t * 16384}")
        stage_off(p)
        for i in range(4): p(f"buffer_load_dwordx4 v{vXD+i}, s[{X}:{X+3}], s{sXO} offen offset:{i*1024} lds")
    def dma_w(t, i0, i1):
        if i0 < i1: p(f"s_add_u32 m0, s{sM0X}, {wslot(t)}\ns_nop 0")
        for i in range(i0, i1): p(f"buffer_load_dwordx4 v{vWD+i}, s[{W}:{W+3}], s{sWO} offen offset:{i*1024} lds")
    def dma_q(q, m0expr):
        q(m0expr)
        stage_off(q, False)
        for i in range(2): q(f"buffer_load_dwordx4 v{vQD+i}, s[{W}:{W+3}], s{sWO} offen offset:{i*1024} lds")
    dma_x(0)
    p(f"""s_movk_i32 s9, 2688
s_lshr_b32 s8, s{sPAIR}, 2
s_mul_i32 s8, s8, 448
s_and_b32 s7, s{sPAIR}, 3
s_mul_i32 s7, s7, 112
s_add_u32 s8, s8, s7
s_cmp_eq_u32 s{sBR}, 0
s_cselect_b32 s8, s8, 0
s_movk_i32 s10, 896
s_cselect_b32 s10, 112, s10
s_mul_i32 s7, s{sWV}, {16*2688}
v_lshlrev_b32 v{vT+4}, 2, v{vT+2}
v_xor_b32 v{vT+4}, v{vT+4}, v{vL}
v_bfe_u32 v{vT+3}, v{vT+4}, 3, 1
v_and_b32 v{vT+4}, 7, v{vT+4}
v_mul_u32_u24 v{vT+3}, s10, v{vT+3}
v_mad_u32_u24 v{vT+3}, v{vT+2}, s9, v{vT+3}
v_lshl_add_u32 v{vT+3}, v{vT+4}, 4, v{vT+3}
v_cmp_eq_u32 vcc, 7, v{vT+4}
v_add_u32 v{vT+3}, s7, v{vT+3}
v_add_u32 v{vT+3}, s8, v{vT+3}
v_mov_b32 v{vT+5}, 0x40000000""")
    if OPT["zpad"]: p(f"v_cndmask_b32 v{vT+3}, v{vT+3}, v{vT+5}, vcc")
    for i in range(4): p(f"v_add_u32 v{vWD+i}, {896 + 4*i*2688 - i*1024}, v{vT+3}")
    dma_w(0, 0, 4)
    p(f"""v_lshlrev_b32 v{vT+4}, 1, v{vT}
v_and_b32 v{vT+4}, 4, v{vT+4}
v_xor_b32 v{vT+4}, v{vT+4}, v{vT+1}
v_cmp_eq_u32 vcc, 7, v{vT+4}
v_lshlrev_b32 v{vT+4}, 4, v{vT+4}
v_mad_u32_u24 v{vT+3}, v{vT}, s9, v{vT+4}
v_add_u32 v{vQD}, s7, v{vT+3}""")
    if OPT["zpad"]: p(f"v_cndmask_b32 v{vQD}, v{vQD}, v{vT+5}, vcc")
    p(f"v_add_u32 v{vQD+1}, {8*2688 - 1024}, v{vQD}")
    HW = OPT["hw"]
    issued = []
    def note(t, n): issued.extend([t] * n)
    note(0, 8)
    qXA0, qXA1, qWA, qWB = 28, 32, 36, 38
    LA = OPT['la']
    QF = ([40, 44, 48] + [108 + 4 * i for i in range(5)])[:LA + 1]
    QA = 52
    XR = 136
    vTG = 92
    def tr_col(hd, dst, g1, c):
        p(f"v_lshlrev_b32 v{dst}, 5, v{g1}\nv_lshl_add_u32 v{dst}, v{c}, 3, v{dst}")
        p(f"v_cmp_eq_u32 vcc, 56, v{dst}\nv_add_u32 v{dst}, s{hd}, v{dst}\ns_nop 0")
        if OPT["zpad"]: p(f"v_cndmask_b32 v{dst}, v{dst}, v{vT}, vcc")
    def q_setup():
        p(f"""v_and_b32 v{vT}, 31, v{vL}
v_lshrrev_b32 v{vT+1}, 5, v{vL}
v_bfe_u32 v{vT+2}, v{vL}, 1, 3
v_xor_b32 v{vT+2}, v{vT+2}, v{vT+1}
v_lshlrev_b32 v{vT+2}, 4, v{vT+2}
v_lshl_add_u32 v{vT+3}, v{vT}, 7, s{sM0X}""")
        for kk in range(4):
            p(f"v_xor_b32 v{vT+4}, {32*kk}, v{vT+2}\nv_add_u32 v{qXA0+kk}, v{vT+3}, v{vT+4}\nv_add_u32 v{qXA1+kk}, 0x10000, v{qXA0+kk}")
        p(f"""v_bfe_u32 v{vT+2}, v{vL}, 2, 2
v_lshl_add_u32 v{vT+3}, v{vT+1}, 3, v{vT+2}
v_lshlrev_b32 v{vT+5}, 5, v{vT+2}
v_and_b32 v{vT+5}, 64, v{vT+5}
v_bfe_u32 v{vT+4}, v{vL}, 4, 1
v_and_b32 v{vT+1}, 3, v{vL}
v_mov_b32 v{vT}, 112
s_mul_i32 s9, s{sBR}, 56
s_sub_u32 s8, 56, s9""")
        for hd in range(2):
            tr_col(8 + hd, vT + 2, vT + 4, vT + 1)
            p(f"v_xor_b32 v{vT+2}, v{vT+2}, v{vT+5}\nv_lshl_add_u32 v{qWB+hd}, v{vT+3}, 7, v{vT+2}\nv_add_u32 v{qWA+hd}, {RING}, v{qWB+hd}")
        cA, cB = f32(LOG2E / math.sqrt(28.0)), f32(LOG2E)
        p(f"""s_lshl_b32 s8, s{sRB}, 2
s_add_u32 s8, s8, s{sWV}
s_lshl_b32 s9, s{sPAIR}, 7
s_add_u32 s9, s9, s8
s_lshl_b32 s10, s9, 11
s_add_u32 s11, s10, {Q_OFF + 64*2048}
s_add_u32 s10, s10, {PQ_OFF}
s_lshl_b32 s9, s{sPAIR}, 6
s_add_u32 s9, s9, s8
s_lshl_b32 s7, s9, {OPT['fsq']}
s_add_u32 s7, s7, {FQ2}
s_lshl_b32 s9, s9, 3
s_add_u32 s{sFL}, s9, {FQB}
s_mov_b32 s15, {cB}
s_cmp_eq_u32 s{sBR}, 0
s_cselect_b32 s12, {cA}, s15
s_cselect_b32 s10, s11, s10
s_cselect_b32 s{sFL}, s7, s{sFL}
s_lshl_b32 s8, s{sPAIR}, 1
s_add_u32 s8, s8, s{sBR}
s_lshl_b32 s8, s8, 6
s_add_u32 s8, s8, s{sWV}
s_lshl_b32 s8, s8, 12
s_add_u32 s13, s8, {KV_OFF}
s_add_u32 s14, s13, 131072
s_lshl_b32 s{sCK}, s{sPAIR}, 2
s_add_u32 s{sCK}, s{sCK}, s{sWV}
s_lshl_b32 s{sCK}, s{sCK}, 7
s_add_u32 s{sCK}, s{sCK}, {CKV}
s_lshr_b32 s{sSH}, s{sWV}, 1
s_mov_b32 s{sTD0}, 0x11111111
s_mov_b32 s{sTD0+1}, 0x11111111
v_lshlrev_b32 v{vTG+3}, 3, v{vL}
v_add_u32 v{vTG+4}, s{sM0X}, v{vL16}
v_add_u32 v{vTG+4}, {QLDS}, v{vTG+4}""")
        srd(p, WS, 34, WS_USED); srd(p, DBG, 32, 256)
    q_setup_at = 0
    for t in range(8):
        if t + 1 < 7:
            dma_x(t + 1); dma_w(t + 1, 0, HW); note(t + 1, 4 + HW)
        last = max(i for i, x in enumerate(issued) if x == (10 if t == 7 else t))
        p(f"s_waitcnt vmcnt({len(issued) - 1 - last}) lgkmcnt(0)\ns_barrier")
        if t == 5: tag_load(p, vTG, vTG + 2); note(99, 1)
        if t + 1 < 7:
            dma_w(t + 1, HW, 4); note(t + 1, 4 - HW)
        for tq in {5: (7, 8), 6: (9, 10, 11, 12, 13)}.get(t, ()):
            dma_q(p, f"s_add_u32 m0, s{sM0Q}, {wslot(tq)}"); note(tq, 2)
        if t == 0: stamp(p, 2); q_setup()
        if t < 7:
            for kk in range(4): p(f"ds_read_b128 {vr(XR+16*t+4*kk,4)}, v{(qXA0 if t < 4 else qXA1) + kk} offset:{(t & 3) * 16384}")
    stamp(p, 3)
    if OPT["qprio"]: p("s_setprio 3")
    G = Tr()
    def rd(n):
        hd, m = divmod(n, 28); t, kk = divmod(m, 4); st = QF[n % (LA + 1)]
        for x in range(2):
            a, o = (qWA + hd, 16384 + t * 8192) if t < 4 else (qWB + hd, (t - 4) * 8192)
            o += (16 * kk + 4 * x) * 128
            G.ds(f"ds_read_b64_tr_b16 {vr(st+2*x,2)}, v{a} offset:{o}", f"g{n}")
    def qpack(acc, d):
        L = [f"v_mul_f32 v{acc+j}, s12, v{acc+j}" for j in range(16)] + [f"v_cvt_pk_bf16_f32 v{d+j}, v{acc+2*j}, v{acc+2*j+1}" for j in range(8)]
        return L + [f"v_cndmask_b32 v{d+6}, v{d+6}, 0, {sr(sUP,2)}", f"v_cndmask_b32 v{d+7}, v{d+7}, 0, {sr(sUP,2)}"]
    F1 = qpack(QA, 100) + [f"buffer_store_dwordx4 {vr(100+4*t,4)}, v{vL16}, {W4}, s10 offen offset:{t*1024}{ST}" for t in range(2)]
    FKL = f"buffer_load_dwordx2 {vr(vTG+6,2)}, v{vTG+3}, {W4}, s14 offen sc1"
    T = sr(sTAG, 2)
    TG = Prog(); tag_get(TG, "k1_tagq", vTG, vTG + 2)
    vM, vQF, vZ = vTG + 6, 108 + 4 * 5, vTG + 2
    def ask(q):
        ask_kv(q, vM, vZ)
        q(f"v_mov_b32 v{vQF}, 0\nv_mov_b32 v{vQF+1}, 0\ns_mov_b64 exec, 1\nbuffer_atomic_or_x2 {vr(vQF,2)}, v{vZ}, {W4}, s7 offen sc0 sc1\ns_mov_b64 exec, -1")
    QL = "\n".join(f"buffer_load_dwordx4 {vr(Q2+4*t,4)}, v{vL16}, {W4}, s11 offen offset:{t*1024}{LD}" for t in range(2))
    QCK = f"v_readfirstlane_b32 s36, v{vQF}\nv_readfirstlane_b32 s37, v{vQF+1}\ns_cmp_eq_u64 s[36:37], {T}"
    ASK = Prog(); ask(ASK)
    TRY = Prog()
    TRY(f"s_cmp_eq_u32 s{sBR}, 0\ns_cbranch_scc1 k1_try\ns_waitcnt vmcnt(2)")
    publish(TRY, sFL, vZ, vTG)
    TRY(f"s_waitcnt vmcnt(1)\n{QCK}\ns_cbranch_scc0 k1_try1\n{QL}\ns_mov_b32 s15, 2\nk1_try1:")
    masks(TRY, vM)
    TRY(f"s_cmp_eq_u32 s{sRD0}, 0\ns_cbranch_scc1 k1_try\ns_cmp_eq_u32 s{sRD0+1}, 0\ns_cbranch_scc1 k1_try")
    early(TRY, 0, vM, vZ, "a")
    TRY("s_or_b32 s15, s15, 1\nk1_try:")
    for n in range(LA): rd(n)
    for n in range(56):
        hd, m = divmod(n, 28); st = QF[n % (LA + 1)]
        if n == 16 - LA:
            stamp(G, 7)
            G("s_waitcnt vmcnt(0)"); stamp(G, 1); G("s_barrier"); stamp(G, 8)
            for x in TG.L: G(x)
            G("s_mov_b32 s15, 0")
        if n + LA < 56: rd(n + LA)
        G.wait(f"g{n}")
        G(f"{MFMA} {vr(QA+16*hd,16)}, {vr(st,4)}, {vr(XR+4*m,4)}, {'0' if m == 0 else vr(QA+16*hd,16)}")
        if n == OPT['askn']:
            for x in ASK.L: G(x)
        if n == OPT['tryn']:
            for x in TRY.L: G(x)
        if n == 28: stamp(G, 9)
        if n == 40: stamp(G, 2)
        if n >= 31:
            for x in F1[:4]: G(x)
            F1 = F1[4:]
    emit(p, G.L)
    stamp(p, 4)
    p(f"s_cmp_lg_u32 s{sBR}, 0\ns_cbranch_scc1 k1_qB\ns_waitcnt vmcnt(2)")
    publish(p, sFL, vZ, vTG)
    p("s_waitcnt vmcnt(1)")
    masks(p, vM)
    early(p, 0, vM, vZ, "b")
    stamp(p, 5)
    early(p, 1, vM, vZ, "c")
    for x in qpack(QA + 16, Q2): p(x)
    p("s_branch k1_q2")
    p.label("k1_qB")
    p("s_bitcmp1_b32 s15, 0\ns_cbranch_scc1 k1_b1")
    early(p, 0, vM, vZ, "d")
    p.label("k1_b1")
    p("s_bitcmp1_b32 s15, 1\ns_cbranch_scc1 k1_b2\ns_mov_b32 s62, 0x40000\nk1_pq:")
    ask(p)
    p(f"s_waitcnt vmcnt(0)")
    masks(p, vM)
    p(f"{QCK}\ns_cbranch_scc1 k1_pqx\ns_sub_u32 s62, s62, 1\ns_cbranch_scc1 k1_pqx\ns_sleep {OPT['slp']}\ns_branch k1_pq\nk1_pqx:\n{QL}")
    p.label("k1_b2")
    stamp(p, 5)
    early(p, 1, vM, vZ, "e")
    for x in qpack(QA + 16, QB2): p(x)
    p("s_waitcnt vmcnt(8)")
    p.label("k1_q2")
    for t in range(2): p(f"ds_write_b128 v{vTG+4}, {vr(Q2+4*t,4)} offset:{t*1024}")
    p(f"v_mov_b32 v{vTG}, s{sRD0}\nv_mov_b32 v{vTG+1}, s{sTD0}\nds_write_b64 v{vTG+4}, {vr(vTG,2)} offset:2048")
    p(f"s_mov_b32 s{sRD0}, s{sRD0+1}\ns_mov_b32 s{sTD0}, s{sTD0+1}")
    p("s_branch p1_join")
    p.label("k1_compute")
    if OPT["pfc"]:
        p(f"""s_lshr_b32 s8, s2, 3
s_lshl_b32 s9, s{sWV}, 5
s_add_u32 s9, s9, s8
s_cmp_ge_u32 s9, 4
s_cbranch_scc1 k1_nopf
s_getpc_b64 s[10:11]
k1_pc:
s_lshl_b32 s9, s9, 13
s_sub_u32 s10, s10, k1_pc-{KNAME}
s_subb_u32 s11, s11, 0
v_lshlrev_b32 v{vT}, 7, v{vL}
v_add_u32 v{vT}, s9, v{vT}
v_min_u32 v{vT}, code_end-{KNAME}-4, v{vT}
global_load_dword v247, v{vT}, s[10:11]
k1_nopf:""")
    vWR, vRD, vPR, vEX, vFX = 190, 191, 192, 193, 194
    p(f"""s_and_b32 s7, s{sWV}, 1
s_lshr_b32 s8, s{sWV}, 1
s_lshl_b32 s{sH}, s{sPAIR}, 1
s_add_u32 s{sH}, s{sH}, s8
s_lshl_b32 s9, s7, 13
s_mul_i32 s8, s8, 56
v_and_b32 v{vT}, 31, v{vL}
v_lshrrev_b32 v{vT+1}, 5, v{vL}
v_bfe_u32 v{vT+2}, v{vL}, 1, 3
v_xor_b32 v{vT+2}, v{vT+2}, v{vT+1}
v_lshlrev_b32 v{vT+2}, 4, v{vT+2}
v_lshl_add_u32 v{vT+3}, v{vT}, 7, s9""")
    for kk in range(4):
        p(f"v_xor_b32 v{vT+4}, {32*kk}, v{vT+2}\nv_add_u32 v{vXA0+kk}, v{vT+3}, v{vT+4}\nv_mov_b32 v{vXA+kk}, v{vXA0+kk}")
    p(f"""v_bfe_u32 v{vT+2}, v{vL}, 2, 2
v_lshl_add_u32 v{vT+3}, v{vT+1}, 3, v{vT+2}
v_bfe_u32 v{vT+4}, v{vL}, 4, 1
v_lshlrev_b32 v{vT+4}, 5, v{vT+4}
v_and_b32 v{vT+5}, 3, v{vL}
v_lshl_add_u32 v{vT+4}, v{vT+5}, 3, v{vT+4}
v_cmp_eq_u32 vcc, 56, v{vT+4}
s_lshr_b32 s9, s{sWV}, 1
s_lshl_b32 s9, s9, 7
s_cmp_eq_u32 s{sBR}, 0
s_cselect_b32 s10, 0, s8
s_cselect_b32 s11, 56, s8
s_cselect_b32 s12, s9, 0
s_cselect_b32 s13, s9, 128
v_lshlrev_b32 v{vT+5}, 6, v{vT+2}
v_mov_b32 v{vWA}, 112""")
    for i in range(2):
        p(f"v_add_u32 v{vWA0+i}, s{10+i}, v{vT+4}")
        if OPT["zpad"]: p(f"v_cndmask_b32 v{vWA0+i}, v{vWA0+i}, v{vWA}, vcc")
        p(f"v_add_u32 v{vWA0+i}, s{12+i}, v{vWA0+i}\nv_xor_b32 v{vWA0+i}, v{vWA0+i}, v{vT+5}\nv_lshl_add_u32 v{vWA0+i}, v{vT+3}, 8, v{vWA0+i}\nv_add_u32 v{vWA0+i}, {RING}, v{vWA0+i}")
    p(f"v_mov_b32 v{vWA}, v{vWA0}\nv_mov_b32 v{vWA+1}, v{vWA0+1}")
    for r in range(AK, AK + 64): p(f"v_mov_b32 v{r}, 0")
    p(f"""s_mov_b32 s{sRS}, 0
s_mov_b32 s{sCNT}, 0
s_mov_b32 s{sT}, 0
s_lshl_b32 s8, s{sRB}, 2
s_lshl_b32 s9, s{sPAIR}, 6
s_add_u32 s{sFL}, s8, s{sWV}
s_add_u32 s{sFL}, s{sFL}, s9
s_add_u32 s{sFL}, s{sFL}, {FB // 8}
s_and_b32 s9, s{sPAIR}, 3
s_lshl_b32 s9, s9, 1
s_lshr_b32 s10, s{sWV}, 1
s_add_u32 s9, s9, s10
s_lshr_b32 s12, s{sPAIR}, 2
s_lshl_b32 s{sFL}, s{sFL}, 3
s_lshl_b32 s10, s9, 9
s_add_u32 s10, s10, {CKV}
s_cmp_eq_u32 s{sBR}, 0
s_cselect_b32 s{sFL}, s10, s{sFL}
s_lshl_b32 s9, s9, 7
s_add_u32 s9, s9, s8
s_lshl_b32 s10, s7, 1
s_add_u32 s9, s9, s10
s_lshl_b32 s11, s9, 12
s_lshl_b32 s12, s12, 11
s_add_u32 s11, s11, s12
s_add_u32 s11, s11, {KV_OFF}
s_lshl_b32 s10, s{sH}, 4
s_add_u32 s10, s10, s{sRB}
s_lshl_b32 s10, s10, 1
s_add_u32 s10, s10, s7
s_lshl_b32 s10, s10, 12
s_add_u32 s10, s10, {KP_OFF}
s_mov_b32 s12, 0xf0000000
s_mov_b32 s13, 0xf0000000
s_lshl_b32 s8, s{sWV}, 12
s_add_u32 s8, s8, {RING}
v_and_b32 v{vWR}, 15, v{vL}
v_xor_b32 v{vWR}, v{vWR}, v{vT+1}
v_lshlrev_b32 v{vWR}, 3, v{vWR}
v_lshl_add_u32 v{vWR}, v{vT}, 7, v{vWR}
v_add_u32 v{vWR}, s8, v{vWR}
v_lshl_add_u32 v{vRD}, v{vT+1}, 2, v{vT+2}
v_bfe_u32 v{vPR}, v{vL}, 4, 1
v_lshlrev_b32 v{vPR}, 2, v{vPR}
v_and_b32 v{vRD2}, 3, v{vL}
v_or_b32 v{vPR}, v{vPR}, v{vRD2}
v_xor_b32 v{vPR}, v{vPR}, v{vRD}
v_lshlrev_b32 v{vPR}, 3, v{vPR}
v_lshl_add_u32 v{vRD}, v{vRD}, 7, v{vPR}
v_add_u32 v{vRD}, s8, v{vRD}
s_lshl_b32 s9, s7, 6
v_add_u32 v{vRD2}, s9, v{vRD}
v_xor_b32 v{vRD}, 64, v{vRD2}
v_add_u32 v{vEX}, s8, v{vL16}
v_xor_b32 v{vPR}, 4096, v{vEX}
v_cmp_eq_u32 vcc, 28, v{vT}
v_mov_b32 v{vFX}, 0x3f803f80
s_waitcnt lgkmcnt(0)
v_cndmask_b32 v{vFX}, 0, v{vFX}, vcc""")
    srd(p, WS, 34, WS_USED); srd(p, WP, 26, WPHI_BYTES); srd(p, DBG, 32, 256)
    p(f"""s_or_b32 s14, s2, s{sWV}
s_cmp_lg_u32 s14, 0
s_cbranch_scc1 k1_notag
s_memrealtime s[14:15]
v_mov_b32 v70, 0
v_lshlrev_b32 v68, 7, v{vL}
s_mov_b32 s8, {MO}
buffer_store_dword v70, v68, {W4}, s8 offen sc1
s_add_u32 s8, s8, 8192
buffer_store_dword v70, v68, {W4}, s8 offen sc1
s_add_u32 s8, s8, 8192
v_mov_b32 v71, 0
buffer_store_dwordx2 v[70:71], v68, {W4}, s8 offen sc1
s_waitcnt vmcnt(0) lgkmcnt(0)
s_or_b32 s14, s14, 1
v_mov_b32 v68, s14
v_mov_b32 v69, s15
s_mov_b64 exec, 1
buffer_store_dwordx2 v[68:69], v70, s[{DBG}:{DBG+3}], 0 offen sc1
s_mov_b64 exec, -1
k1_notag:
s_cmp_eq_u32 s{sBR}, 0
s_cbranch_scc1 k1_go""")
    wphi_loads(p, WPH, sH, vT, vT + 1, vT + 2, WP)
    p.label("k1_go")
    stamp(p, 1)
    p("s_barrier")
    stamp(p, 2)
    def reads(kk, st):
        for a in range(2): p(f"ds_read_b128 {vr(XF[st]+4*a,4)}, v{vXA+kk} offset:{4096*a}")
        for seg in range(2):
            for x in range(2): p(f"ds_read_b64_tr_b16 {vr(WF[st]+4*seg+2*x,2)}, v{vWA+seg} offset:{(16*kk+4*x)*256}")
    def mfmas(st, tr):
        for a in range(2):
            xf = vr(XF[st] + 4 * a, 4)
            for i, acc in enumerate((AK, AV)):
                wf = vr(WF[st] + 4 * i, 4)
                p(f"{MFMA} {vr(acc+16*a,16)}, {wf if tr[i] else xf}, {xf if tr[i] else wf}, {vr(acc+16*a,16)}")
    PKK, PKV = 200, 172
    def pack(E, dst, acc, scale):
        if scale is not None:
            for j in range(16): E(f"v_mul_f32 v{acc+j}, s{scale}, v{acc+j}")
        for j in range(8): E(f"v_cvt_pk_bf16_f32 v{dst+j}, v{acc+2*j}, v{acc+2*j+1}")
    def fixV(E, a, base=PKV):
        for j in range(8): E(f"v_cndmask_b32 v{base+8*a+j}, v{base+8*a+j}, v{vFX}, s[12:13]")
    reads(0, 0)
    p(f"s_cmp_lg_u32 s{sBR}, 0\ns_cbranch_scc1 k1_loopB\ns_cmp_ge_u32 s{sPAIR}, 4\ns_cbranch_scc1 k1_loopV")
    for nm, tr in (("K", (1, 1)), ("V", (0, 0)), ("B", (1, 0))):
        p(".p2align 4")
        p.label(f"k1_loop{nm}")
        for kk in range(3):
            reads(kk + 1, (kk + 1) & 1)
            p("s_waitcnt lgkmcnt(6)")
            mfmas(kk & 1, tr)
        p(f"s_add_u32 s{sRS}, s{sRS}, 16384\ns_cmp_ge_u32 s{sRS}, {3*16384}\ns_cselect_b32 s{sRS}, 0, s{sRS}\ns_add_u32 s{sT}, s{sT}, 16384\ns_add_u32 s{sCNT}, s{sCNT}, 1")
        for kk in range(4): p(f"v_add_u32 v{vXA+kk}, s{sT}, v{vXA0+kk}")
        p(f"v_add_u32 v{vWA}, s{sRS}, v{vWA0}\nv_add_u32 v{vWA+1}, s{sRS}, v{vWA0+1}")
        p(f"s_cmp_eq_u32 s{sCNT}, 7\ns_waitcnt lgkmcnt(0)\ns_barrier\ns_cbranch_scc1 k1_done{nm}")
        reads(0, 0)
        mfmas(1, tr)
        p(f"s_branch k1_loop{nm}")
        p.label(f"k1_done{nm}")
        stamp(p, 3)
        mfmas(1, tr)
        if OPT["eprio"]: p("s_setprio 2")
        p("s_waitcnt vmcnt(0)")
        tag_load(p, 68, 70)
        if nm == "B": break
        p(f"v_mov_b32 v{vT+3}, 0x3f80\ns_add_u32 s10, s11, {64*4096}\ns_nop 4")
        for a in range(2):
            for i, acc in enumerate((AK, AV)):
                d = (PKK, PKV)[i]
                pack(p, d + 8 * a, acc + 16 * a, None)
                if nm == "K": p(f"v_cndmask_b32 v{d+8*a+6}, v{d+8*a+6}, v{vT+3}, {sr(sUP,2)}\nv_cndmask_b32 v{d+8*a+7}, v{d+8*a+7}, 0, {sr(sUP,2)}")
                else: fixV(p, a, d)
                for t in range(2): p(f"buffer_store_dwordx4 {vr(d+8*a+4*t,4)}, v{vL16}, {W4}, s{11-i} offen offset:{t*1024}{ST}")
            if a == 0: p("s_add_u32 s11, s11, 4096\ns_add_u32 s10, s10, 4096")
        if nm == "K": p("s_branch k1_pubA")
        else:
            p.label("k1_pubA")
            stamp(p, 4)
            p("s_barrier\ns_waitcnt vmcnt(0)")
            tag_get(p, "k1_taga", 68, 70)
            p(f"s_lshl_b32 s8, s{sRB}, 2\ns_lshr_b32 s9, s{sPAIR}, 2\ns_lshl_b32 s9, s9, 1\ns_add_u32 s8, s8, s9\ns_add_u32 s8, s8, s7\ns_lshl_b64 s[8:9], 1, s8\nv_mov_b32 v68, s8\nv_mov_b32 v69, s9\nv_lshlrev_b32 v70, 7, v{vL}\ns_mov_b64 exec, 15\nbuffer_atomic_or_x2 v[68:69], v70, {W4}, s{sFL} offen sc1\ns_mov_b64 exec, -1")
            stamp(p, 5)
            p("s_setprio 0\ns_branch p1_join")
    p(f"s_mov_b32 s14, {f32(LOG2E)}")
    for j in range(8): p(f"v_lshl_or_b32 v{WPH+j}, v{WPH+2*j+1}, 16, v{WPH+2*j}")
    TMP = [212, 28]; KVA = AV
    keep, send = KVA + 16, KVA
    E = Tr()
    KB = [248, 240]
    for a in range(2): pack(E, KB[a], AK + 16 * a, 14)
    E("s_nop 0")
    for a in range(2):
        E(f"{MFMA} {vr(AK+16*a,16)}, {vr(WPH,4)}, {vr(KB[a],4)}, 0")
        E(f"{MFMA} {vr(AK+16*a,16)}, {vr(WPH+4,4)}, {vr(KB[a]+4,4)}, {vr(AK+16*a,16)}")
    for a in range(2):
        pack(E, PKV + 8 * a, AV + 16 * a, None); fixV(E, a)
    stamp(E, 7)
    OP = [240, AK]
    q = [Prog(), Prog()]
    for a in range(2): softmax_pm(q[a], AK + 16 * a, OP[a], OP[a] + 8, TMP[a])
    for x, y in zip(q[0].L[:-16], q[1].L[:-16]):
        if not x.startswith("s_nop"): E(x); E(y)
    stamp(E, 8)
    PF = TMP
    AD = (16, 17, 10, 11)
    for a in range(2):
        for x in q[a].L[-16:]: E(x)
        if a == 1: E.wait("r0")
        for sg in range(2):
            for g in range(4):
                E(f"v_xor_b32 v{AD[(g&1)*2+sg]}, {sg*64+g*16}, v{vWR}")
                E.ds(f"ds_write_b64 v{AD[(g&1)*2+sg]}, {vr(OP[a]+8*sg+2*g,2)}", f"w{a}")
        E.wait(f"w{a}")
        for sg in range(2):
            for u in range(2):
                for x in range(2): E.ds(f"ds_read_b64_tr_b16 {vr(PF[a]+8*sg+4*u+2*x,2)}, v{(vRD, vRD2)[sg ^ x]} offset:{(16*u+8*x)*128}", f"r{a}")
        if a == 0:
            pass
    E.wait("r1")
    stamp(E, 9)
    for sg in (0, 1):
        for a in range(2):
            for u in range(2):
                c = "0" if (a == 0 and u == 0) else vr(KVA + 16 * sg, 16)
                E(f"{MFMA} {vr(KVA+16*sg,16)}, {vr(PF[a]+8*sg+4*u,4)}, {vr(PKV+8*a+4*u,4)}, {c}")
    E("s_nop 7")
    for q4 in range(4): E.ds(f"ds_write_b128 v{vEX}, {vr(send+4*q4,4)} offset:{q4*1024}", "x")
    E.L.insert(OPT["b8"], "s_barrier")
    emit(p, E.L)
    p("s_waitcnt vmcnt(0)")
    tag_get(p, "k1_tagb", 68, 70)
    stamp(p, 5)
    p.label("p1_join")
    return dict(vPR=vPR, keep=keep, sFL=sFL, sKP=10)

def phase23(p, c1):
    sTILE, sHALF, sRET, sCNT, sPO, sM0, sWOO, sFLB = 6, 7, 42, 43, 13, 48, 50, c1["sFL"]
    sB3, sRB3, sCB3, sQO, sFBO, sKB = 51, 52, 53, 54, 55, 49
    vFK = 252
    WO, OUT = 36, 56
    vT = 8
    S = [16, 32]; O = 48; K = 64; V0 = [72, 76]; V1 = 80; Q = Q2; P = 92; PH = 100; PA = 116
    PL = 168; vPO = 120; vWD = 124; QB = QB2; PS = 200; TM = 216; vFD = 244; WPq = 136; KF = 152
    p(f"""s_lshl_b32 s{sH2}, s{sPAIR}, 1
s_add_u32 s{sH2}, s{sH2}, s{sBR}
s_and_b32 s8, s{sWAVE}, 3
s_lshr_b32 s{sHALF}, s{sWAVE}, 2
s_lshl_b32 s{sTILE}, s{sRB}, 2
s_add_u32 s{sTILE}, s{sTILE}, s8
s_lshl_b32 s9, s{sH2}, 6
s_lshl_b32 s11, s{sHALF}, 5
s_add_u32 s11, s11, s8
s_add_u32 s11, s11, s9
s_lshl_b32 s{sKB}, s11, 12
s_add_u32 s{sKB}, s{sKB}, {KV_OFF}
s_lshl_b32 s{sCK}, s{sPAIR}, 2
s_add_u32 s{sCK}, s{sCK}, s8
s_lshl_b32 s{sCK}, s{sCK}, 7
s_add_u32 s{sCK}, s{sCK}, {CKV}
s_lshr_b32 s{sSH}, s8, 1
s_lshl_b32 s11, s{sHALF}, 5
s_add_u32 s{sSH}, s{sSH}, s11
v_mov_b32 v{vFA}, 0
s_lshl_b32 s{sM0}, s{sWAVE}, 12
s_add_u32 s9, s9, s{sTILE}
s_lshl_b32 s{sQO}, s9, 11
s_lshl_b32 s8, s{sHALF}, 14
v_add_u32 v{vRA}, s8, v{vL16}
v_add_u32 v{vRB}, 0x10000, v{vRA}
v_mov_b32 v{vTHR}, 0x7f800000
v_mov_b32 v{vT+2}, {f32(2.0**60)}
v_cndmask_b32 v{vTHR}, v{vTHR}, v{vT+2}, {sr(sUP,2)}
s_and_b32 s8, s{sWAVE}, 3
s_lshl_b32 s8, s8, 12
v_add_u32 v{vT}, s8, v{vL16}
v_add_u32 v{vT}, {QLDS}, v{vT}""")
    for j in range(3): p(f"v_mov_b32 v{vPO+j}, 0")
    for j in range(16): p(f"v_mov_b32 v{O+j}, 0")
    p("s_setprio 0\ns_waitcnt vmcnt(8) lgkmcnt(0)\ns_barrier")
    stamp(p, 6)
    stamp_out(p, 0)
    stamp(p, 0)
    SLO = lambda st: SL[st % 4] * SLOT
    def dma_piece(f): p(f"buffer_load_dwordx4 v{vL16}, {W4}, s{sKO} offen offset:{f*1024}{LD} lds")
    def dma_stage(st):
        pick(p, f"k2_k{st}", 0, sKO, sKB, vFK, vFA)
        p(f"s_add_u32 m0, s{sM0}, {SLO(st)}")
    def rd(dst, i, frag):
        st, tl = divmod(i, 4)
        base = vRA if SL[st % 4] < 2 else vRB
        p(f"ds_read_b128 {vr(dst,4)}, v{base} offset:{(SL[st % 4] & 1) * SLOT + tl * 4096 + frag * 1024}")
    rd(K, 0, 0); rd(K + 4, 0, 1); rd(V0[0], 0, 2)
    p(f"s_cmp_ge_u32 s{sWAVE}, 4\ns_cbranch_scc1 p2_go")
    for t in range(2): p(f"ds_read_b128 {vr(Q+4*t,4)}, v{vT} offset:{t*1024}")
    p(f"ds_read_b64 {vr(vFK,2)}, v{vT} offset:2048\ns_waitcnt lgkmcnt(0)\nv_readfirstlane_b32 s{sRD0}, v{vFK}\nv_readfirstlane_b32 s{sTD0}, v{vFK+1}")
    p(f"s_cmp_eq_u32 s{sBR}, 0\ns_cbranch_scc1 p2_go")
    keep, vPR = c1["keep"], c1["vPR"]
    for q4 in range(4): p(f"ds_read_b128 {vr(212+4*q4,4)}, v{vPR} offset:{q4*1024}")
    for q4 in range(4):
        p(f"s_waitcnt lgkmcnt({3-q4})")
        for i in range(4): p(f"v_add_f32 v{keep+4*q4+i}, v{keep+4*q4+i}, v{212+4*q4+i}")
        p(f"buffer_store_dwordx4 {vr(keep+4*q4,4)}, v{vL16}, {W4}, s{c1['sKP']} offen offset:{q4*1024}{ST}")
    p.label("p2_go")
    dma_stage(2)
    ask_kv(p, vFK, vFA)
    for f in range(2): dma_piece(f)
    p("s_waitcnt lgkmcnt(0)")
    p(f"{MFMA} {vr(S[0],16)}, {vr(K,4)}, {vr(Q,4)}, 0\n{MFMA} {vr(S[0],16)}, {vr(K+4,4)}, {vr(Q+4,4)}, {vr(S[0],16)}")
    rd(K, 1, 0); rd(K + 4, 1, 1)
    p(f"""v_lshrrev_b32 v{vT}, 4, v{vL16}
s_min_u32 s13, s2, 223
s_and_b32 s8, s13, 7
s_lshr_b32 s9, s13, 3
s_lshr_b32 s{sB3}, s8, 2
s_mul_i32 s13, s9, 37
s_lshr_b32 s13, s13, 8
s_mul_i32 s14, s13, 7
s_sub_u32 s{sCB3}, s9, s14
s_and_b32 s8, s8, 3
s_lshl_b32 s8, s8, 2
s_add_u32 s{sRB3}, s8, s13
s_cmp_eq_u32 s{sB3}, 0
s_cselect_b64 s[8:9], s[20:21], s[28:29]
s_mul_i32 s{sWOO}, s{sWAVE}, {64*896}
s_lshl_b32 s13, s{sCB3}, 7
s_add_u32 s{sWOO}, s{sWOO}, s13""")
    srd(p, WO, 8, WO_BYTES)
    p(f"v_max3_f32 v{vT+4}, v{S[0]}, v{S[0]+1}, v{S[0]+2}\nv_max3_f32 v{vT+5}, v{S[0]+3}, v{S[0]+4}, v{S[0]+5}")
    for j in range(6, 14, 4): p(f"v_max3_f32 v{vT+4}, v{vT+4}, v{S[0]+j}, v{S[0]+j+1}\nv_max3_f32 v{vT+5}, v{vT+5}, v{S[0]+j+2}, v{S[0]+j+3}")
    p(f"v_max3_f32 v{vT+4}, v{vT+4}, v{S[0]+14}, v{S[0]+15}\nv_max_f32 v{vT+4}, v{vT+4}, v{vT+5}")
    xhalf(p, "v_max_f32", vT + 4, vT + 5)
    p(f"v_cvt_pk_bf16_f32 v{vT+4}, -v{vT+4}, 0\nv_lshlrev_b32 v{vNM}, 16, v{vT+4}\nv_cndmask_b32 v{Q+6}, v{Q+6}, v{vT+4}, {sr(sUP,2)}")
    for j in range(16): p(f"v_add_f32 v{S[0]+j}, v{S[0]+j}, v{vNM}")
    stamp(p, 1)
    def wo_setup():
        p(f"""v_lshrrev_b32 v{vT+1}, 7, v{vL16}
v_bfe_u32 v{vT+2}, v{vL16}, 4, 3
v_lshlrev_b32 v{vT+3}, 1, v{vT+1}
v_and_b32 v{vT+3}, 4, v{vT+3}
v_xor_b32 v{vT+2}, v{vT+2}, v{vT+3}
v_lshlrev_b32 v{vT+2}, 4, v{vT+2}
s_movk_i32 s13, 896
v_mad_u32_u24 v{vWD}, v{vT+1}, s13, v{vT+2}""")
        for i in range(1, 4): p(f"v_add_u32 v{vWD+i}, {i*(8*896-1024)}, v{vWD}")
    CHECK = (0, 1, 3, 5)
    PR = OPT["prio"]; GT = OPT["gate"]
    WOI = 0
    for i in range(32):
        s, j = divmod(i, 4)
        Sc, Sn = S[i & 1], S[(i + 1) & 1]
        e = lambda n: p(f"v_exp_f32 v{Sc+n}, v{Sc+n}")
        c = lambda n: p(f"v_cvt_pk_bf16_f32 v{P+n}, v{Sc+2*n}, v{Sc+2*n+1}")
        e(0); e(1)
        p("s_waitcnt lgkmcnt(0)")
        if i > 0: p(f"{MFMA} {vr(O,16)}, {vr(V1,4)}, {vr(P+4,4)}, {vr(O,16)}")
        rd(V1, i, 3)
        e(2); e(3); c(0); e(4); c(1); e(5)
        if i < 31: p(f"{MFMA} {vr(Sn,16)}, {vr(K,4)}, {vr(Q,4)}, 0")
        if PR: p("s_setprio 0")
        e(6); e(7); c(2); e(8); c(3); e(9)
        if i < 31: p(f"{MFMA} {vr(Sn,16)}, {vr(K+4,4)}, {vr(Q+4,4)}, {vr(Sn,16)}")
        if j == 2 and s < 7:
            p(f"s_waitcnt vmcnt({4 if s < 6 else 0})")
            if s == 0: masks(p, vFK)
            if s + 3 <= 7: dma_stage(s + 3)
            p("s_barrier")
        if i + 2 < 32: rd(K, i + 2, 0); rd(K + 4, i + 2, 1)
        if PR: p("s_setprio 1")
        if i + 1 < 32: rd(V0[(i + 1) & 1], i + 1, 2)
        T = sr(sTAG, 2)
        if j == 2 and s <= 6:
            lo, hi = Prog(), Prog()
            w0 = Prog()
            if s == 0:
                lo(f"s_cmp_eq_u32 s{sBR}, 0\ns_cbranch_scc1 k2_x0")
                publish(lo, sFLB, vT, vT + 2)
                hi(f"""s_lshl_b32 s8, s{sPAIR}, 6
s_add_u32 s8, s8, s{sTILE}
s_lshl_b32 s{sFBO}, s8, 3
s_add_u32 s{sFBO}, s{sFBO}, {FQB}
s_add_u32 s{sQO}, s{sQO}, {PQ_OFF}
v_bfe_u32 v{vT}, v{vL16}, 4, 5
v_lshrrev_b32 v{vT+1}, 9, v{vL16}
v_mov_b32 v{vPO}, 0""")
                srd(hi, OUT, 26, WPHI_BYTES)
                wphi_loads(hi, WPq, sH2, vT, vT + 1, vT + 2, OUT)
                hi(f"buffer_load_dwordx2 {vr(vFD,2)}, v{vPO}, {W4}, s{sFBO} offen sc1")
            if s == 1:
                for k in range(8): hi(f"v_lshl_or_b32 v{WPq+k}, v{WPq+2*k+1}, 16, v{WPq+2*k}")
                hi(f"s_cmp_lg_u32 s{sBR}, 0\ns_cbranch_scc1 k2_x1\nv_cmp_ne_u64 vcc, {T}, {vr(vFD,2)}\ns_cbranch_vccz k2_qbok")
                poll(hi, "k2_pqb", sFBO, vPO, vFD)
                hi.label("k2_qbok")
                for t in range(2): hi(f"buffer_load_dwordx4 {vr(QB+4*t,4)}, v{vL16}, {W4}, s{sQO} offen offset:{t*1024}{LD}")
            if s == 2:
                hi(f"{MFMA} {vr(PS,16)}, {vr(WPq,4)}, {vr(QB,4)}, 0\n{MFMA} {vr(PS,16)}, {vr(WPq+4,4)}, {vr(QB+4,4)}, {vr(PS,16)}")
                hi(f"s_lshl_b32 s{sFBO}, s{sH2}, 7\ns_add_u32 s{sFBO}, s{sFBO}, {FR}\nv_bfe_u32 v{vPO}, v{vL16}, 4, 4\nv_lshlrev_b32 v{vPO}, 3, v{vPO}\ns_nop 7")
                softmax_pm(hi, PS, PH, PH + 8, TM)
            if s == 5: hi(f"buffer_load_dwordx2 {vr(vFD,2)}, v{vPO}, {W4}, s{sFBO} offen sc1")
            if s == 6:
                hi(f"v_cmp_ne_u64 vcc, {T}, {vr(vFD,2)}\ns_cbranch_vccz k2_frok")
                poll(hi, "k2_pfr", sFBO, vPO, vFD)
                hi.label("k2_frok")
                hi(f"s_lshl_b32 s8, s{sH2}, 12\ns_add_u32 s8, s8, {KR_OFF}")
                for f in range(4): hi(f"buffer_load_dwordx4 {vr(KF+4*f,4)}, v{vL16}, {W4}, s8 offen offset:{f*1024}{LD}")
            if s == GT - 1:
                w0(f"""s_lshl_b32 s{sFBO}, s{sPAIR}, 9
s_add_u32 s{sFBO}, s{sFBO}, {FB}
v_lshrrev_b32 v{vPO}, 1, v{vL16}
buffer_load_dwordx2 {vr(vFD,2)}, v{vPO}, {W4}, s{sFBO} offen sc1
s_lshl_b32 s{sPO}, s{sH2}, 17
s_lshr_b32 s8, s{sRB}, 2
s_lshl_b32 s9, s8, 11
s_add_u32 s{sPO}, s{sPO}, s9
s_and_b32 s9, s{sRB}, 3
s_lshl_b32 s9, s9, 8
s_add_u32 s{sPO}, s{sPO}, s9
s_add_u32 s{sPO}, s{sPO}, {KP_OFF}
s_lshl_b32 s12, s8, 10
s_add_u32 s12, s12, s9
s_lshl_b32 s9, s{sH2}, 12
s_add_u32 s12, s12, s9
s_add_u32 s12, s12, {KR_OFF}
v_lshrrev_b32 v{vT}, 9, v{vL16}
v_and_b32 v{vPO+1}, 0xf8, v{vPO}
v_lshl_add_u32 v{vPO+1}, v{vT}, 10, v{vPO+1}
v_and_b32 v{vPO+2}, 0xf0, v{vPO}
v_lshl_add_u32 v{vPO+2}, v{vT}, 3, v{vPO+2}
v_bfe_u32 v{vT}, v{vL16}, 4, 1
v_lshl_add_u32 v{vPO+2}, v{vT}, 2, v{vPO+2}""")
            if s == GT:
                w0(f"v_cmp_ne_u64 vcc, {T}, {vr(vFD,2)}\ns_cbranch_vccz k2_fbok")
                poll(w0, "k2_pb", sFBO, vPO, vFD)
                w0.label("k2_fbok")
                for k in range(16): w0(f"buffer_load_dwordx2 {vr(PL+2*k,2)}, v{vPO+1}, {W4}, s{sPO} offen{LD}\ns_add_u32 s{sPO}, s{sPO}, 8192")
            if s == GT + 1:
                for st_ in (16, 8, 4, 2):
                    for k in range(st_): w0(f"v_add_f32 v{PL+k}, v{PL+k}, v{PL+st_+k}")
                w0(f"v_cvt_pk_bf16_f32 v{PL}, v{PL}, v{PL+1}\nbuffer_store_dword v{PL}, v{vPO+2}, {W4}, s12 offen{ST}")
                w0(f"s_lshl_b32 s12, s{sH2}, 4\ns_add_u32 s12, s12, s{sRB}\ns_lshl_b32 s12, s12, 3\ns_add_u32 s12, s12, {FR}")
            if s == GT + 2: publish(w0, 12, vT, vT + 2)
            if hi.L:
                p(f"s_cmp_eq_u32 s{sHALF}, 0\ns_cbranch_scc1 k2_l{s}")
                p.L += hi.L
                if lo.L or w0.L: p(f"s_branch k2_x{s}")
                p.label(f"k2_l{s}")
            elif lo.L or w0.L: p(f"s_cmp_lg_u32 s{sHALF}, 0\ns_cbranch_scc1 k2_x{s}")
            p.L += lo.L
            if w0.L:
                p(f"s_cmp_lg_u32 s{sWAVE}, 0\ns_cbranch_scc1 k2_x{s}")
                p.L += w0.L
            p.label(f"k2_x{s}")
        if i == 25: wo_setup()
        e(10); e(11); c(4); e(12); c(5); e(13)
        if j == 3 and s in CHECK: p(f"v_cmp_gt_f32 vcc, v{O+12}, v{vTHR}")
        p(f"{MFMA} {vr(O,16)}, {vr(V0[i&1],4)}, {vr(P,4)}, {vr(O,16)}")
        ds = s + 3 if j >= 2 else s + 2
        if ds <= 7: dma_piece((j + 2) % 4)
        if i >= 26 and WOI < 8:
            for _ in range(2):
                if WOI % 4 == 0: p(f"s_lshl_b32 s8, s{sWAVE}, 13\ns_add_u32 m0, s8, {SLOT + WOI*1024}\ns_nop 0")
                p(f"buffer_load_dwordx4 v{vWD+WOI%4}, s[{WO}:{WO+3}], s{sWOO} offen offset:{(WOI%4)*1024} lds")
                if WOI % 4 == 3: p(f"s_add_u32 s{sWOO}, s{sWOO}, {32*896}")
                WOI += 1
        e(14); e(15); c(6); c(7)
        if j == 3 and s in CHECK:
            p(f"s_cbranch_vccnz k2_rs{s}")
            p.label(f"k2_cont{s}")
    stamp(p, 2)
    p("s_setprio 0\ns_waitcnt lgkmcnt(0)")
    p(f"{MFMA} {vr(O,16)}, {vr(V1,4)}, {vr(P+4,4)}, {vr(O,16)}")
    p(f"""s_lshl_b32 s8, s{sTILE}, 4
s_add_u32 s{sFLB}, s8, s{sH2}
s_lshl_b32 s8, s{sFLB}, 11
s_add_u32 s8, s8, {O_OFF}
s_lshl_b32 s{sFLB}, s{sTILE}, 7
s_add_u32 s{sFLB}, s{sFLB}, {MO}
s_and_b32 s9, s{sWAVE}, 3
s_mul_i32 s9, s9, 5120
s_add_u32 s9, s9, {XA + 8192}
v_add_u32 v{vT+2}, s9, v{vL16}
s_cmp_eq_u32 s{sHALF}, 0
s_cbranch_scc1 k2_fin""")
    p(f"ds_write_b32 v{vT+2}, v{vNM} offset:4096")
    for q in range(4): p(f"ds_write_b128 v{vT+2}, {vr(O+4*q,4)} offset:{q*1024}")
    p("s_waitcnt vmcnt(0) lgkmcnt(0)\ns_barrier")
    stamp(p, 3)
    p(f"s_add_u32 s8, s8, {2*MB}\ns_add_u32 s{sFLB}, s{sFLB}, {64*128}")
    for f in range(4): p(f"{MFMA} v[32:47], {vr(KF+4*f,4)}, {vr(PH+4*f,4)}, {'0' if f == 0 else 'v[32:47]'}")
    p(f"s_nop 11\nv_mov_b32 v{vT+2}, v44\nv_mov_b32 v{vT+3}, v44\ns_nop 1\nv_permlane32_swap_b32 v{vT+2}, v{vT+3}\ns_nop 0")
    p(f"v_add_f32 v{vT+2}, {f32(1e-6)}, v{vT+3}\nv_rcp_f32 v{vT+2}, v{vT+2}\ns_nop 0")
    for j in range(0, 16, 2): p(pk("v_pk_mul_f32", O + j, vr(32 + j, 2), vr(vT + 2, 2), "op_sel_hi:[1,0]"))
    p("s_branch k2_out")
    p.label("k2_fin")
    p("s_waitcnt vmcnt(0)\ns_barrier")
    stamp(p, 3)
    p(f"ds_read_b32 v{vT+7}, v{vT+2} offset:4096")
    for q in range(4): p(f"ds_read_b128 {vr(16+4*q,4)}, v{vT+2} offset:{q*1024}")
    p(f"""v_mov_b32 v{vT}, {f32(2.0**-120)}
v_mov_b32 v{vT+1}, {f32(2.0**120)}
s_waitcnt lgkmcnt(4)
v_min_f32 v{vT+3}, v{vNM}, v{vT+7}
v_sub_f32 v{vT+4}, v{vT+3}, v{vNM}
v_sub_f32 v{vT+6}, v{vT+3}, v{vT+7}
v_exp_f32 v{vT+4}, v{vT+4}
v_exp_f32 v{vT+6}, v{vT+6}""")
    for j in range(0, 16, 2): p(pk("v_pk_mul_f32", O + j, vr(O + j, 2), vr(vT + 4, 2), "op_sel_hi:[1,0]"))
    for q in (3, 0, 1, 2):
        if q == 3: p("s_waitcnt lgkmcnt(0)")
        for j in range(4 * q, 4 * q + 4, 2):
            p(f"v_pk_fma_f32 {vr(O+j,2)}, {vr(16+j,2)}, {vr(vT+6,2)}, {vr(O+j,2)} op_sel_hi:[1,0,1]")
        if q == 3: p(f"v_mov_b32 v{vT+4}, v{O+12}\nv_mov_b32 v{vT+5}, v{O+12}")
    p(f"v_permlane32_swap_b32 v{vT+4}, v{vT+5}\ns_nop 0\nv_rcp_f32 v{vT+4}, v{vT+5}")
    p(f"v_cmp_nlt_f32 vcc, v{vT}, v{vT+5}\nv_cmp_nlt_f32 s[10:11], v{vT+5}, v{vT+1}")
    p(f"v_maximum3_f32 v{vT+2}, abs(v{O}), abs(v{O+1}), abs(v{O+2})")
    for j in range(3, 15, 2): p(f"v_maximum3_f32 v{vT+2}, v{vT+2}, abs(v{O+j}), abs(v{O+j+1})")
    p(f"v_maximum3_f32 v{vT+2}, v{vT+2}, abs(v{O+15}), abs(v{O+15})\ns_or_b64 s[10:11], vcc, s[10:11]")
    p(f"v_cmp_nlt_f32 vcc, v{vT+2}, v{vT+1}")
    for j in range(0, 16, 2): p(pk("v_pk_mul_f32", O + j, vr(O + j, 2), vr(vT + 4, 2), "op_sel_hi:[1,0]"))
    p("s_or_b64 vcc, vcc, s[10:11]\ns_cbranch_vccnz k2_slow")
    p.label("k2_out")
    def o_store(src, dst, so):
        for j in range(8): p(f"v_cvt_pk_bf16_f32 v{dst+j}, v{src+2*j}, v{src+2*j+1}")
        p(f"v_cndmask_b32 v{dst+6}, v{dst+6}, 0, {sr(sUP,2)}\nv_cndmask_b32 v{dst+7}, v{dst+7}, 0, {sr(sUP,2)}")
        for t in range(2): p(f"buffer_store_dwordx4 {vr(dst+4*t,4)}, v{vL16}, {W4}, s{so} offen offset:{t*1024}{ST}")
    o_store(O, 16, 8)
    stamp(p, 4)
    vWA, vST = 8, 9
    WF = [12, 28]; AC = 44; OF = 76; NR = 9
    p(f"""v_lshrrev_b32 v2, 4, v{vL16}
v_lshrrev_b32 v4, 5, v2
v_bfe_u32 v5, v2, 2, 2
v_lshl_add_u32 v6, v4, 2, v5
v_lshlrev_b32 v6, 7, v6
v_bfe_u32 v7, v2, 4, 1
v_lshl_add_u32 v6, v7, 5, v6
v_and_b32 v7, 3, v2
v_lshl_add_u32 v6, v7, 3, v6
v_lshlrev_b32 v5, 5, v5
v_and_b32 v5, 64, v5
v_add_u32 v{vWA}, v6, v5
s_lshl_b32 s12, s{sRB3}, 2
s_add_u32 s12, s12, s{sWAVE}
s_lshl_b32 s13, s12, 15
s_lshl_b32 s14, s{sB3}, 21
s_add_u32 s13, s13, s14
s_lshr_b32 s11, s13, 8
s_add_u32 s11, s11, {MO}
s_add_u32 s13, s13, {O_OFF}
v_and_b32 v5, 31, v2
s_lshl_b32 s12, s12, 5
v_add_u32 v5, s12, v5
s_movk_i32 s9, 1792
v_mul_u32_u24 v5, s9, v5
v_lshl_add_u32 v{vST}, v4, 4, v5
s_mul_i32 s12, s{sB3}, 896
s_lshl_b32 s14, s{sCB3}, 7
s_add_u32 s12, s12, s14
v_mov_b32 v3, 0
s_lshl_b32 s8, 1, s{sH2}
v_mov_b32 v6, s8
v_add_u32 v{vWA}, {SLOT}, v{vWA}
v_xor_b32 v{vWA+2}, 64, v{vWA}""")
    srd(p, OUT, 30, OUT_BYTES)
    p("s_waitcnt vmcnt(0)")
    atom(p, "buffer_atomic_or", "v6", 3, sFLB)
    stamp(p, 5)
    stamp_out(p, 1)
    stamp(p, 0)
    p(f"s_cmp_ge_u32 s{sWAVE}, 4\ns_cbranch_scc1 k_end\ns_cmp_ge_u32 s2, 224\ns_cbranch_scc1 k_end")
    if OPT['prog']:
        D = OPT["d3"]
        WR = [76 + 16 * i for i in range(D + 1)]; OR = [76 + 16 * (D + 1) + 8 * i for i in range(D + 1)]
        sTODO, sRDY, sHH = 40, 41, 42
        p(f"s_mov_b32 s{sTODO}, 0xffff\ns_mov_b32 s{sRDY}, 0\ns_mov_b32 s62, 0x200000")
        def mm(i):
            st, of = WR[i % (D + 1)], OR[i % (D + 1)]
            for t in range(2):
                for ct in range(2):
                    c = "0" if (i == 0 and t == 0) else vr(AC + 16 * ct, 16)
                    p(f"{MFMA} {vr(AC+16*ct,16)}, {vr(st+8*t+4*ct,4)}, {vr(of+4*t,4)}, {c}")
        for i in range(16):
            st, of = WR[i % (D + 1)], OR[i % (D + 1)]
            p(f"""s_and_b32 s8, s{sRDY}, s{sTODO}
s_cbranch_scc1 k3_go{i}
k3_p{i}:
v_mov_b32 v7, 0
s_mov_b64 exec, 1
buffer_atomic_or v7, v3, {W4}, s11 offen sc0 sc1
s_mov_b64 exec, -1
s_sub_u32 s62, s62, 1
s_cselect_b32 s9, -1, 0
s_waitcnt vmcnt(0)
v_readfirstlane_b32 s{sRDY}, v7
s_or_b32 s{sRDY}, s{sRDY}, s9
s_and_b32 s8, s{sRDY}, s{sTODO}
s_cbranch_scc1 k3_go{i}
s_sleep {OPT['slp3']}
s_branch k3_p{i}
k3_go{i}:
s_ff1_i32_b32 s{sHH}, s8
s_bitset0_b32 s{sTODO}, s{sHH}
s_lshl_b32 s8, s{sHH}, 11
s_add_u32 s8, s8, s13
s_mul_i32 s9, s{sHH}, {28*128}""")
            for t in range(2): p(f"buffer_load_dwordx4 {vr(of+4*t,4)}, v{vL16}, {W4}, s8 offen offset:{t*1024}{LD}")
            p(f"v_add_u32 v4, s9, v{vWA}\nv_add_u32 v5, s9, v{vWA+2}")
            for t in range(2):
                for ct in range(2):
                    for x in range(2): p(f"ds_read_b64_tr_b16 {vr(st+8*t+4*ct+2*x,2)}, v{4+ct} offset:{(16*t+8*x)*128}")
            if i == 0: stamp(p, 1)
            if i >= D:
                p(f"s_waitcnt vmcnt({2*D}) lgkmcnt(8)"); mm(i - D)
        stamp(p, 2)
        for i in range(16 - D, 16):
            p(f"s_waitcnt vmcnt({2*(15-i)}) lgkmcnt(0)"); mm(i)
    else:
        def reads(h):
            st = WF[h & 1]
            for t in range(2):
                for ct in range(2):
                    for x in range(2):
                        p(f"ds_read_b64_tr_b16 {vr(st+8*t+4*ct+2*x,2)}, v{vWA+2*ct} offset:{(28*h+16*t+8*x)*128}")
        reads(0)
        poll(p, "k3_poll", 11, 3, 6)
        stamp(p, 1)
        def oload(h):
            for t in range(2):
                p(f"buffer_load_dwordx4 {vr(OF+8*(h%NR)+4*t,4)}, v{vL16}, {W4}, s13 offen offset:{(h&1)*2048+t*1024}{LD}")
            if h & 1: p("s_add_u32 s13, s13, 4096")
        for h in range(8): oload(h)
        stamp(p, 2)
        for h in range(16):
            if h < 15: reads(h + 1)
            if h < 8: oload(h + 8)
            p(f"s_waitcnt vmcnt({16 if h < 8 else 30-2*h}) lgkmcnt({8 if h < 15 else 0})")
            st = WF[h & 1]
            for t in range(2):
                for ct in range(2):
                    c = "0" if (h == 0 and t == 0) else vr(AC + 16 * ct, 16)
                    p(f"{MFMA} {vr(AC+16*ct,16)}, {vr(st+8*t+4*ct,4)}, {vr(OF+8*(h%NR)+4*t,4)}, {c}")
    stamp(p, 3)
    p("s_nop 10")
    for ct in range(2):
        for j in range(8): p(f"v_cvt_pk_bf16_f32 v{WF[0]+8*ct+j}, v{AC+16*ct+2*j}, v{AC+16*ct+2*j+1}")
        if ct == 1: p("s_nop 0")
    for ct in range(2):
        for gp in range(2):
            b = WF[0] + 8 * ct + 4 * gp
            p(f"v_permlane32_swap_b32 v{b}, v{b+2}\nv_permlane32_swap_b32 v{b+1}, v{b+3}")
            p(f"buffer_store_dwordx4 {vr(b,4)}, v{vST}, s[{OUT}:{OUT+3}], s12 offen offset:{ct*64+gp*32}{OST}")
    stamp(p, 4)
    if STAMP: p("s_waitcnt vmcnt(0)")
    stamp(p, 5); stamp_out(p, 2)
    p.label("k_end")
    p("s_endpgm")
    for s in CHECK:
        p.label(f"k2_rs{s}")
        p(f"s_mov_b32 s{sRET}, {s}\ns_branch k2_rescale")
    p.label("k2_rescale")
    p("s_waitcnt lgkmcnt(0)")
    p(f"{MFMA} {vr(O,16)}, {vr(V1,4)}, {vr(P+4,4)}, {vr(O,16)}\ns_nop 11")
    p(f"v_mov_b32 v{vT}, v{O+12}\nv_mov_b32 v{vT+1}, v{O+12}")
    for j in range(4): p(f"v_mov_b32 v{P+4+j}, 0")
    p(f"""v_permlane32_swap_b32 v{vT}, v{vT+1}
s_nop 0
v_frexp_exp_i32_f32 v{vT}, v{vT+1}
v_max_i32 v{vT}, 0, v{vT}
v_cvt_f32_i32 v{vT}, v{vT}
v_sub_f32 v{vT}, v{vNM}, v{vT}
v_cvt_pk_bf16_f32 v{vT}, v{vT}, 0
v_lshlrev_b32 v{vT+1}, 16, v{vT}
v_cndmask_b32 v{Q+6}, v{Q+6}, v{vT}, {sr(sUP,2)}
v_sub_f32 v{vT}, v{vT+1}, v{vNM}
v_mov_b32 v{vNM}, v{vT+1}
v_exp_f32 v{vT+1}, v{vT}""")
    for j in range(16): p(f"v_add_f32 v{S[0]+j}, v{S[0]+j}, v{vT}")
    for j in range(16): p(f"v_mul_f32 v{O+j}, v{O+j}, v{vT+1}")
    for s in CHECK[:-1]: p(f"s_cmp_eq_u32 s{sRET}, {s}\ns_cbranch_scc1 k2_cont{s}")
    p(f"s_branch k2_cont{CHECK[-1]}")
    p.label("k2_slow")
    p(f"s_lshl_b32 s{sKO}, s{sH2}, 18\ns_add_u32 s{sKO}, s{sKO}, {KV_OFF}\ns_mov_b32 s{sCNT}, 0\nv_cndmask_b32 v{Q+6}, v{Q+6}, 0, {sr(sUP,2)}\nv_mov_b32 v{vNM}, 0xff7fffff")
    for j in range(16): p(f"v_mov_b32 v{O+j}, 0")
    p.label("k2_sloop")
    for f in range(4): p(f"buffer_load_dwordx4 {vr(K+4*f,4)}, v{vL16}, {W4}, s{sKO} offen offset:{f*1024}{LD}")
    p(f"s_add_u32 s{sKO}, s{sKO}, 4096\ns_add_u32 s{sCNT}, s{sCNT}, 1\ns_waitcnt vmcnt(0)")
    p(f"{MFMA} {vr(S[0],16)}, {vr(K,4)}, {vr(Q,4)}, 0\n{MFMA} {vr(S[0],16)}, {vr(K+4,4)}, {vr(Q+4,4)}, {vr(S[0],16)}\ns_nop 11")
    p(f"v_max3_f32 v{vT}, v{S[0]}, v{S[0]+1}, v{vNM}")
    for j in range(2, 16, 2): p(f"v_max3_f32 v{vT}, v{vT}, v{S[0]+j}, v{S[0]+j+1}")
    xhalf(p, "v_max_f32", vT, vT + 1)
    p(f"v_sub_f32 v{vT+1}, v{vNM}, v{vT}\nv_mov_b32 v{vNM}, v{vT}\nv_exp_f32 v{vT+1}, v{vT+1}")
    for j in range(16): p(f"v_sub_f32 v{S[0]+j}, v{S[0]+j}, v{vT}")
    for j in range(16): p(f"v_exp_f32 v{S[0]+j}, v{S[0]+j}")
    for j in range(16): p(f"v_mul_f32 v{O+j}, v{O+j}, v{vT+1}")
    for j in range(8): p(f"v_cvt_pk_bf16_f32 v{P+j}, v{S[0]+2*j}, v{S[0]+2*j+1}")
    p("s_nop 1")
    p(f"{MFMA} {vr(O,16)}, {vr(K+8,4)}, {vr(P,4)}, {vr(O,16)}\n{MFMA} {vr(O,16)}, {vr(K+12,4)}, {vr(P+4,4)}, {vr(O,16)}")
    p(f"s_cmp_lt_u32 s{sCNT}, 64\ns_cbranch_scc1 k2_sloop")
    p(f"s_nop 11\nv_mov_b32 v{vT}, v{O+12}\nv_mov_b32 v{vT+1}, v{O+12}\ns_nop 1\nv_permlane32_swap_b32 v{vT}, v{vT+1}\ns_nop 0\nv_rcp_f32 v{vT+1}, v{vT+1}\ns_nop 0")
    for j in range(16): p(f"v_mul_f32 v{O+j}, v{O+j}, v{vT+1}")
    p("s_branch k2_out")

def main(out):
    p = Prog()
    phase23(p, phase1(p))
    hdr = open(f"cdna_kernels/{NAME}.s.ref").read().split("\n")
    lines = [l for l in hdr if l.startswith("; Kernarg") or l.startswith(";   offset")]
    s = "\n".join(lines) + "\n; @launch grid=(256,1,1) block=(512,1,1) lds=163840\n"
    s += '.amdgcn_target "amdgcn-amd-amdhsa--gfx950"\n.text\n'
    bad = len(p.check())
    s += f".globl {KNAME}\n.p2align 8\n.type {KNAME},@function\n{KNAME}:\n" + p.text()
    nv, ns = p.max_regs()
    s += f"""code_end:
.section .rodata,"a"
.p2align 6
.amdhsa_kernel {KNAME}
  .amdhsa_next_free_vgpr {nv}
  .amdhsa_next_free_sgpr {ns}
  .amdhsa_accum_offset {(nv + 3) // 4 * 4}
  .amdhsa_group_segment_fixed_size 0
  .amdhsa_kernarg_size 80
  .amdhsa_user_sgpr_count 2
  .amdhsa_user_sgpr_kernarg_segment_ptr 1
  .amdhsa_system_sgpr_workgroup_id_x 1
.end_amdhsa_kernel
"""
    open(out, "w").write(s)
    print("vgpr", nv, "sgpr", ns, "instr", len(p.L), "hazards:", bad)

if __name__ == "__main__":
    main(sys.argv[1] if len(sys.argv) > 1 else f"cdna_kernels/{NAME}.s")
```

```python
import sys, math, struct
sys.path.insert(0, "gen")
from asmlib import Prog, vr, sr

NAME = "concat_heads__mha_block__linear_kernel_hedgehog__prompt"
KNAME = NAME + "_kernel"
MB = 1 << 20
Q_OFF, KV_OFF, PQ_OFF, FL_OFF, KP_OFF, O_OFF, WS_USED = 0, 2 * MB, 6 * MB, 9 * MB, 10 * MB, 12 * MB, 16 * MB
FKV, FQ, FB, FQB, FR, FO = [FL_OFF + 4096 * i for i in range(6)]
FQ2 = FL_OFF + 512 * 1024
MO = FL_OFF + 768 * 1024
CKV = MO + 128 * 128
KR_OFF = 8 * MB
X_BYTES, W_BYTES, WO_BYTES, WPHI_BYTES, OUT_BYTES = 2048 * 896, 448 * 2688, 448 * 896, 16 * 1568, 2048 * 1792
LOG2E = 1.4426950408889634
MFMA = "v_mfma_f32_32x32x16_bf16"
def f32(x): return "0x%08x" % struct.unpack("<I", struct.pack("<f", x))[0]

OPT = dict(prio=1, rot=1, hw=2, pfc=1, b8=200, ost="", eprio=1, gate=2, zpad=1, prog=1, d3=3, pmask=1, slp3=4, fs3=7, fkn=54, la=4, askn=46, tryn=55, slp=6, qprio=1, abar=1, fsq=7)
for _a in sys.argv[2:]:
    if "=" in _a:
        _k, _v = _a.split("=", 1); OPT[_k] = _v.replace("+", " ") if _k == "ost" else int(_v)
ST = LD = " sc1"
FS3 = OPT['fs3']
OST = (" " + OPT["ost"]) if OPT["ost"] else ""
STAMP = "stamp" in sys.argv[2:]

sBR, sRB, sPAIR = 3, 4, 5
WS, sUP, sWAVE, sTAG, DBG = 44, 60, 96, 98, 92
W4 = f"s[{WS}:{WS+3}]"

def srd(p, d, base, nbytes):
    p(f"s_mov_b32 s{d}, s{base}\ns_mov_b32 s{d+1}, s{base+1}\ns_mov_b32 s{d+2}, {hex(nbytes)}\ns_mov_b32 s{d+3}, 0x20000")
def stamp(p, i):
    if STAMP: p(f"{'s_memrealtime' if 'rt' in sys.argv[2:] else 's_memtime'} s[{64+2*i}:{65+2*i}]")
def stamp_out(p, kidx, n=10):
    if not STAMP: return
    p(f"s_waitcnt lgkmcnt(0)\ns_mov_b32 s88, s34\ns_mov_b32 s89, s35\ns_mov_b32 s90, 0x4000000\ns_mov_b32 s91, 0x20000")
    p(f"s_lshl_b32 s86, s2, 4\ns_add_u32 s86, s86, s{sWAVE}\ns_lshl_b32 s86, s86, 6\ns_add_u32 s86, s86, {32*MB + kidx*MB}\nv_mov_b32 v254, 0")
    for i in range(n): p(f"v_mov_b32 v255, s{64+2*i}\nbuffer_store_dword v255, v254, s[88:91], s86 offen offset:{4*i}")
def xhalf(p, op, x, t):
    p(f"v_mov_b32 v{t}, v{x}\ns_nop 1\nv_permlane32_swap_b32 v{x}, v{t}\ns_nop 0\n{op} v{x}, v{x}, v{t}")
def pk(op, d, a, b, mods=""): return f"{op} {vr(d,2)}, {a}, {b} {mods}".rstrip()

def softmax_pm(p, P, OP, OM, T):
    E = T
    mx, mn, a0, a1, b0, b1, c0, c1, rp, rp2, rm, rm2 = [T + 16 + i for i in range(12)]
    U = sr(sUP, 2)
    p(f"v_max3_f32 v{mx}, v{P}, v{P+1}, v{P+2}\nv_min3_f32 v{mn}, v{P}, v{P+1}, v{P+2}")
    for j in range(3, 15, 2):
        p(f"v_max3_f32 v{mx}, v{mx}, v{P+j}, v{P+j+1}\nv_min3_f32 v{mn}, v{mn}, v{P+j}, v{P+j+1}")
    p(f"v_max_f32 v{mx}, v{mx}, v{P+15}\nv_min_f32 v{mn}, v{mn}, v{P+15}")
    p(f"v_mov_b32 v{a0}, v{mx}\nv_mov_b32 v{a1}, v{mn}\ns_nop 0")
    p(f"v_permlane32_swap_b32 v{mx}, v{a0}\nv_permlane32_swap_b32 v{mn}, v{a1}\ns_nop 0")
    p(f"v_max_f32 v{mx}, v{mx}, v{a0}\nv_min_f32 v{mn}, v{mn}, v{a1}")
    for j in range(16): p(f"v_sub_f32 v{E+j}, v{mn}, v{P+j}\nv_sub_f32 v{P+j}, v{P+j}, v{mx}")
    for j in range(16): p(f"v_exp_f32 v{E+j}, v{E+j}\nv_exp_f32 v{P+j}, v{P+j}")
    for (B, s, t) in ((E, b0, c0), (P, a0, c0)):
        p(f"v_add_f32 v{t}, v{B+12}, v{B+13}\nv_add_f32 v{s}, v{B}, v{B+1}\nv_add_f32 v{s+1}, v{B+2}, v{B+3}\nv_add_f32 v{t}, v{t}, v{B+14}")
        p(f"v_add_f32 v{s}, v{s}, v{B+4}\nv_add_f32 v{s+1}, v{s+1}, v{B+5}\nv_add_f32 v{t}, v{t}, v{B+15}")
        for j in range(6, 12, 2): p(f"v_add_f32 v{s}, v{s}, v{B+j}\nv_add_f32 v{s+1}, v{s+1}, v{B+j+1}")
        p(f"v_cndmask_b32 v{t}, v{t}, 0, {U}\nv_add_f32 v{s}, v{s}, v{s+1}\nv_add_f32 v{s}, v{s}, v{t}")
    p(f"v_mov_b32 v{a1}, v{a0}\nv_mov_b32 v{b1}, v{b0}\ns_nop 0")
    p(f"v_permlane32_swap_b32 v{a0}, v{a1}\nv_permlane32_swap_b32 v{b0}, v{b1}\ns_nop 0")
    p(f"v_add_f32 v{a0}, v{a0}, v{a1}\nv_add_f32 v{b0}, v{b0}, v{b1}")
    p(f"v_rcp_f32 v{rp}, v{a0}\nv_rcp_f32 v{rm}, v{b0}\ns_nop 0")
    p(f"v_cndmask_b32 v{rp2}, v{rp}, 0, {U}\nv_cndmask_b32 v{rm2}, v{rm}, 0, {U}")
    for j in range(16): p(f"v_mul_f32 v{P+j}, v{P+j}, v{rp if j < 12 else rp2}\nv_mul_f32 v{E+j}, v{E+j}, v{rm if j < 12 else rm2}")
    for j in range(8): p(f"v_cvt_pk_bf16_f32 v{OP+j}, v{P+2*j}, v{P+2*j+1}\nv_cvt_pk_bf16_f32 v{OM+j}, v{E+2*j}, v{E+2*j+1}")

class Tr:
    def __init__(self): self.L = []
    def __call__(self, text):
        for line in text.strip("\n").split("\n"):
            if line.strip(): self.L.append(line.strip())
    def ds(self, text, tag=None): self.L.append(("ds", text, tag))
    def wait(self, tag): self.L.append(("wait", tag))
def emit(p, L):
    seq = []
    for it in L:
        if isinstance(it, str):
            if it.startswith("ds_"): seq.append(None)
            p(it)
        elif it[0] == "ds":
            seq.append(it[2]); p(it[1])
        else:
            idx = max(i for i, t in enumerate(seq) if t == it[1])
            p(f"s_waitcnt lgkmcnt({min(15, len(seq) - 1 - idx)})")

def wphi_loads(p, dst, sHD, vLo, vHi, vt, WP):
    p(f"""v_add_u32 v{vt}, -4, v{vLo}
v_cmp_gt_u32 vcc, 28, v{vLo}
s_movk_i32 s9, 224
s_mul_i32 s14, s{sHD}, 1568
v_cndmask_b32 v{vt}, v{vt}, v{vLo}, vcc
v_lshlrev_b32 v{vt}, 1, v{vt}
v_mad_u32_u24 v{vt}, v{vHi}, s9, v{vt}
v_lshlrev_b32 v{vt+1}, 20, v{vHi}
v_add_u32 v{vt+1}, v{vt+1}, v{vt}""")
    for t in range(2):
        for jj in range(8):
            d = 16 * t + 8 * (jj >> 2) + (jj & 3)
            p(f"buffer_load_ushort v{dst+8*t+jj}, v{vt + 1 if (t == 1 and jj >= 4) else vt}, s[{WP}:{WP+3}], s14 offen offset:{d*56}")

def tag_load(p, vD, vZ): p(f"v_mov_b32 v{vZ}, 0\nbuffer_load_dwordx2 {vr(vD,2)}, v{vZ}, s[{DBG}:{DBG+3}], 0 offen sc1")
def tag_get(p, name, vD, vZ):
    p(f"""s_mov_b32 s62, 0x40000
{name}:
v_readfirstlane_b32 s{sTAG}, v{vD}
v_readfirstlane_b32 s{sTAG+1}, v{vD+1}
s_sub_u32 s62, s62, 1
s_cbranch_scc1 {name}_x
s_cmp_lg_u32 s{sTAG}, 0
s_cbranch_scc1 {name}_x
s_sleep 2
v_mov_b32 v{vZ}, 0
buffer_load_dwordx2 {vr(vD,2)}, v{vZ}, s[{DBG}:{DBG+3}], 0 offen sc1
s_waitcnt vmcnt(0)
s_branch {name}
{name}_x:""")
def poll(p, name, sOFF, vA, vD, wide=False):
    T = sr(sTAG, 2)
    ld = f"buffer_load_dwordx4 {vr(vD,4)}" if wide else f"buffer_load_dwordx2 {vr(vD,2)}"
    p(f"s_mov_b32 s62, 0x40000\n{name}:\n{ld}, v{vA}, {W4}, s{sOFF} offen sc1\ns_sub_u32 s62, s62, 1\ns_waitcnt vmcnt(0)")
    p(f"v_cmp_ne_u64 vcc, {T}, {vr(vD,2)}")
    if wide: p(f"v_cmp_ne_u64 s[14:15], {T}, {vr(vD+2,2)}\ns_or_b64 vcc, vcc, s[14:15]")
    p(f"s_cmp_eq_u32 s62, 0\ns_cbranch_scc1 {name}_x\ns_cbranch_vccz {name}_x\ns_sleep {OPT['slp']}\ns_branch {name}\n{name}_x:")
def atom(p, op, vD, vZ, sOFF, ret=False):
    p(f"s_mov_b64 exec, 1\n{op} {vD}, v{vZ}, {W4}, s{sOFF} offen {'sc0 ' if ret else ''}sc1\ns_mov_b64 exec, -1")
def publish(p, sOFF, vZ, vD):
    p(f"""v_mov_b32 v{vD}, s{sTAG}
v_mov_b32 v{vD+1}, s{sTAG+1}
v_mov_b32 v{vZ}, 0
s_mov_b64 exec, 1
buffer_store_dwordx2 {vr(vD,2)}, v{vZ}, {W4}, s{sOFF} offen sc1
s_mov_b64 exec, -1""")

RING = 7 * 16384
SLOT = 32768
SL = (1, 2, 0, 3)
XA = 131072
vL16, vRA, vRB, vFA, vTHR, vNM = 1, 2, 3, 4, 5, 6
Q2 = 84
QB2 = 128
QLDS = 6 * 16384
sKO, sH2 = 40, 41

def early(p, st):
    for hf in range(2):
        p(f"s_add_u32 m0, s63, {SL[st] * SLOT + hf * 16384}\ns_add_u32 s8, s13, {st * 16384 + hf * 131072}")
        for f in range(4): p(f"buffer_load_dwordx4 v{vL16}, {W4}, s8 offen offset:{f*1024}{LD} lds")

def phase1(p):
    sWV = 6
    X, W, WP = 36, 40, 48
    sXO, sWO, sRS, sCNT, sT, sH = 52, 53, 55, 56, 57, 59
    sM0X, sST, sXB, sWB, sM0Q, sFL = 63, 54, 58, 51, 50, 97
    vL, vXD, vWD, vQD = 21, 2, 6, 10
    vXA0, vWA0, vXA, vWA, vRD2 = 2, 10, 12, 16, 19
    vT = 22
    XF = [28, 36]; WF = [44, 52]
    AK, AV = 100, 132
    WPH = 164
    QPOS = [RING + 16384, RING + 24576, RING + 32768, RING + 40960, 0, 8192, 16384]
    def wslot(t): return RING + (t % 3) * 16384 if t < 7 else QPOS[t - 7]
    p("s_cmp_ge_u32 s2, 256\ns_cbranch_scc1 k_end")
    stamp(p, 0)
    p("s_load_dwordx16 s[16:31], s[0:1], 0\ns_load_dwordx4 s[32:35], s[0:1], 64")
    p(f"""v_lshrrev_b32 v{vT}, 6, v0
v_and_b32 v{vL}, 63, v0
s_and_b32 s7, s2, 7
s_lshr_b32 s8, s2, 3
v_readfirstlane_b32 s{sWAVE}, v{vT}
s_lshr_b32 s{sBR}, s7, 2
s_bfe_u32 s9, s7, 0x10001
s_lshl_b32 s9, s9, 3
s_lshr_b32 s10, s8, 2
s_add_u32 s{sRB}, s10, s9
s_and_b32 s9, s7, 1
s_lshl_b32 s9, s9, 2
s_and_b32 s11, s8, 3
s_add_u32 s{sPAIR}, s11, s9
s_and_b32 s{sWV}, s{sWAVE}, 3
s_mov_b32 s{sUP}, 0
s_mov_b32 s{sUP+1}, -1
v_lshlrev_b32 v{vL16}, 4, v{vL}
s_cmp_lt_u32 s{sWAVE}, 4
s_cbranch_scc1 k1_compute""")
    p(f"""s_lshl_b32 s11, s11, 1
s_add_u32 s{sST}, s10, s11
s_cmp_ge_u32 s{sST}, 7
s_cselect_b32 s9, 7, 0
s_sub_u32 s{sST}, s{sST}, s9
s_cmp_ge_u32 s{sST}, 7
s_cselect_b32 s9, 7, 0
s_sub_u32 s{sST}, s{sST}, s9""")
    if not OPT["rot"]: p(f"s_mov_b32 s{sST}, 0")
    p(f"v_lshrrev_b32 v{vT}, 3, v{vL}\nv_and_b32 v{vT+1}, 7, v{vL}\nv_lshrrev_b32 v{vT+2}, 4, v{vL}")
    p(f"s_mul_i32 s7, s{sWV}, {32*896}\ns_movk_i32 s8, 896\nv_mul_u32_u24 v{vT+4}, s8, v{vT}\nv_add_u32 v{vT+4}, s7, v{vT+4}")
    for i in range(2):
        p(f"""v_xor_b32 v{vT+3}, {4*i}, v{vT+2}
v_xor_b32 v{vT+3}, v{vT+3}, v{vT+1}
v_lshl_add_u32 v{vT+3}, v{vT+3}, 4, v{vT+4}
v_add_u32 v{vXD+i}, {8*i*896 - i*1024}, v{vT+3}
v_add_u32 v{vXD+i+2}, {8*(i+2)*896 - (i+2)*1024}, v{vT+3}""")
    p(f"""s_mul_i32 s{sXB}, s{sRB}, {128*896}
s_mul_i32 s{sWB}, s{sPAIR}, 112
s_lshl_b32 s{sM0X}, s{sWV}, 12
s_lshl_b32 s{sM0Q}, s{sWV}, 11
s_cmp_eq_u32 s{sBR}, 0
s_waitcnt lgkmcnt(0)
s_cselect_b64 s[8:9], s[16:17], s[22:23]
s_cselect_b64 s[10:11], s[18:19], s[24:25]""")
    stamp(p, 1)
    srd(p, X, 8, X_BYTES); srd(p, W, 10, W_BYTES)
    def stage_off(q, x=True):
        if x: q(f"s_lshl_b32 s{sXO}, s{sST}, 7\ns_add_u32 s{sXO}, s{sXO}, s{sXB}")
        q(f"s_mul_i32 s{sWO}, s{sST}, {64*2688}\ns_add_u32 s{sWO}, s{sWO}, s{sWB}\ns_add_u32 s{sST}, s{sST}, 1\ns_cmp_ge_u32 s{sST}, 7\ns_cselect_b32 s{sST}, 0, s{sST}")
    def dma_x(t):
        p(f"s_add_u32 m0, s{sM0X}, {t * 16384}")
        stage_off(p)
        for i in range(4): p(f"buffer_load_dwordx4 v{vXD+i}, s[{X}:{X+3}], s{sXO} offen offset:{i*1024} lds")
    def dma_w(t, i0, i1):
        if i0 < i1: p(f"s_add_u32 m0, s{sM0X}, {wslot(t)}\ns_nop 0")
        for i in range(i0, i1): p(f"buffer_load_dwordx4 v{vWD+i}, s[{W}:{W+3}], s{sWO} offen offset:{i*1024} lds")
    def dma_q(q, m0expr):
        q(m0expr)
        stage_off(q, False)
        for i in range(2): q(f"buffer_load_dwordx4 v{vQD+i}, s[{W}:{W+3}], s{sWO} offen offset:{i*1024} lds")
    dma_x(0)
    p(f"""s_movk_i32 s9, 2688
s_lshr_b32 s8, s{sPAIR}, 2
s_mul_i32 s8, s8, 448
s_and_b32 s7, s{sPAIR}, 3
s_mul_i32 s7, s7, 112
s_add_u32 s8, s8, s7
s_cmp_eq_u32 s{sBR}, 0
s_cselect_b32 s8, s8, 0
s_movk_i32 s10, 896
s_cselect_b32 s10, 112, s10
s_mul_i32 s7, s{sWV}, {16*2688}
v_lshlrev_b32 v{vT+4}, 2, v{vT+2}
v_xor_b32 v{vT+4}, v{vT+4}, v{vL}
v_bfe_u32 v{vT+3}, v{vT+4}, 3, 1
v_and_b32 v{vT+4}, 7, v{vT+4}
v_mul_u32_u24 v{vT+3}, s10, v{vT+3}
v_mad_u32_u24 v{vT+3}, v{vT+2}, s9, v{vT+3}
v_lshl_add_u32 v{vT+3}, v{vT+4}, 4, v{vT+3}
v_cmp_eq_u32 vcc, 7, v{vT+4}
v_add_u32 v{vT+3}, s7, v{vT+3}
v_add_u32 v{vT+3}, s8, v{vT+3}
v_mov_b32 v{vT+5}, 0x40000000""")
    if OPT["zpad"]: p(f"v_cndmask_b32 v{vT+3}, v{vT+3}, v{vT+5}, vcc")
    for i in range(4): p(f"v_add_u32 v{vWD+i}, {896 + 4*i*2688 - i*1024}, v{vT+3}")
    dma_w(0, 0, 4)
    p(f"""v_lshlrev_b32 v{vT+4}, 1, v{vT}
v_and_b32 v{vT+4}, 4, v{vT+4}
v_xor_b32 v{vT+4}, v{vT+4}, v{vT+1}
v_cmp_eq_u32 vcc, 7, v{vT+4}
v_lshlrev_b32 v{vT+4}, 4, v{vT+4}
v_mad_u32_u24 v{vT+3}, v{vT}, s9, v{vT+4}
v_add_u32 v{vQD}, s7, v{vT+3}""")
    if OPT["zpad"]: p(f"v_cndmask_b32 v{vQD}, v{vQD}, v{vT+5}, vcc")
    p(f"v_add_u32 v{vQD+1}, {8*2688 - 1024}, v{vQD}")
    HW = OPT["hw"]
    issued = []
    def note(t, n): issued.extend([t] * n)
    note(0, 8)
    qXA0, qXA1, qWA, qWB = 28, 32, 36, 38
    LA = OPT['la']
    QF = ([40, 44, 48] + [108 + 4 * i for i in range(5)])[:LA + 1]
    QA = 52
    XR = 136
    vTG = 92
    def tr_col(hd, dst, g1, c):
        p(f"v_lshlrev_b32 v{dst}, 5, v{g1}\nv_lshl_add_u32 v{dst}, v{c}, 3, v{dst}")
        p(f"v_cmp_eq_u32 vcc, 56, v{dst}\nv_add_u32 v{dst}, s{hd}, v{dst}\ns_nop 0")
        if OPT["zpad"]: p(f"v_cndmask_b32 v{dst}, v{dst}, v{vT}, vcc")
    def q_setup():
        p(f"""v_and_b32 v{vT}, 31, v{vL}
v_lshrrev_b32 v{vT+1}, 5, v{vL}
v_bfe_u32 v{vT+2}, v{vL}, 1, 3
v_xor_b32 v{vT+2}, v{vT+2}, v{vT+1}
v_lshlrev_b32 v{vT+2}, 4, v{vT+2}
v_lshl_add_u32 v{vT+3}, v{vT}, 7, s{sM0X}""")
        for kk in range(4):
            p(f"v_xor_b32 v{vT+4}, {32*kk}, v{vT+2}\nv_add_u32 v{qXA0+kk}, v{vT+3}, v{vT+4}\nv_add_u32 v{qXA1+kk}, 0x10000, v{qXA0+kk}")
        p(f"""v_bfe_u32 v{vT+2}, v{vL}, 2, 2
v_lshl_add_u32 v{vT+3}, v{vT+1}, 3, v{vT+2}
v_lshlrev_b32 v{vT+5}, 5, v{vT+2}
v_and_b32 v{vT+5}, 64, v{vT+5}
v_bfe_u32 v{vT+4}, v{vL}, 4, 1
v_and_b32 v{vT+1}, 3, v{vL}
v_mov_b32 v{vT}, 112
s_mul_i32 s9, s{sBR}, 56
s_sub_u32 s8, 56, s9""")
        for hd in range(2):
            tr_col(8 + hd, vT + 2, vT + 4, vT + 1)
            p(f"v_xor_b32 v{vT+2}, v{vT+2}, v{vT+5}\nv_lshl_add_u32 v{qWB+hd}, v{vT+3}, 7, v{vT+2}\nv_add_u32 v{qWA+hd}, {RING}, v{qWB+hd}")
        cA, cB = f32(LOG2E / math.sqrt(28.0)), f32(LOG2E)
        p(f"""s_lshl_b32 s8, s{sRB}, 2
s_add_u32 s8, s8, s{sWV}
s_lshl_b32 s9, s{sPAIR}, 7
s_add_u32 s9, s9, s8
s_lshl_b32 s10, s9, 11
s_add_u32 s11, s10, {Q_OFF + 64*2048}
s_add_u32 s10, s10, {PQ_OFF}
s_lshl_b32 s9, s{sPAIR}, 6
s_add_u32 s9, s9, s8
s_lshl_b32 s7, s9, {OPT['fsq']}
s_add_u32 s7, s7, {FQ2}
s_lshl_b32 s9, s9, 3
s_add_u32 s{sFL}, s9, {FQB}
s_mov_b32 s15, {cB}
s_cmp_eq_u32 s{sBR}, 0
s_cselect_b32 s12, {cA}, s15
s_cselect_b32 s10, s11, s10
s_cselect_b32 s{sFL}, s7, s{sFL}
s_lshl_b32 s8, s{sPAIR}, 1
s_add_u32 s8, s8, s{sBR}
s_lshl_b32 s8, s8, 6
s_add_u32 s8, s8, s{sWV}
s_lshl_b32 s8, s8, 12
s_add_u32 s13, s8, {KV_OFF}
s_lshl_b32 s14, s{sPAIR}, 2
s_add_u32 s14, s14, s{sWV}
s_lshl_b32 s14, s14, 7
s_add_u32 s14, s14, {CKV}
v_lshlrev_b32 v{vTG+3}, 3, v{vL}
v_add_u32 v{vTG+4}, s{sM0X}, v{vL16}
v_add_u32 v{vTG+4}, {QLDS}, v{vTG+4}""")
        srd(p, WS, 34, WS_USED); srd(p, DBG, 32, 256)
    q_setup_at = 0
    for t in range(8):
        if t + 1 < 7:
            dma_x(t + 1); dma_w(t + 1, 0, HW); note(t + 1, 4 + HW)
        last = max(i for i, x in enumerate(issued) if x == (10 if t == 7 else t))
        p(f"s_waitcnt vmcnt({len(issued) - 1 - last}) lgkmcnt(0)\ns_barrier")
        if t == 5: tag_load(p, vTG, vTG + 2); note(99, 1)
        if t + 1 < 7:
            dma_w(t + 1, HW, 4); note(t + 1, 4 - HW)
        for tq in {5: (7, 8), 6: (9, 10, 11, 12, 13)}.get(t, ()):
            dma_q(p, f"s_add_u32 m0, s{sM0Q}, {wslot(tq)}"); note(tq, 2)
        if t == 0: stamp(p, 2); q_setup()
        if t < 7:
            for kk in range(4): p(f"ds_read_b128 {vr(XR+16*t+4*kk,4)}, v{(qXA0 if t < 4 else qXA1) + kk} offset:{(t & 3) * 16384}")
    stamp(p, 3)
    if OPT["qprio"]: p("s_setprio 3")
    G = Tr()
    def rd(n):
        hd, m = divmod(n, 28); t, kk = divmod(m, 4); st = QF[n % (LA + 1)]
        for x in range(2):
            a, o = (qWA + hd, 16384 + t * 8192) if t < 4 else (qWB + hd, (t - 4) * 8192)
            o += (16 * kk + 4 * x) * 128
            G.ds(f"ds_read_b64_tr_b16 {vr(st+2*x,2)}, v{a} offset:{o}", f"g{n}")
    def qpack(acc, d):
        L = [f"v_mul_f32 v{acc+j}, s12, v{acc+j}" for j in range(16)] + [f"v_cvt_pk_bf16_f32 v{d+j}, v{acc+2*j}, v{acc+2*j+1}" for j in range(8)]
        return L + [f"v_cndmask_b32 v{d+6}, v{d+6}, 0, {sr(sUP,2)}", f"v_cndmask_b32 v{d+7}, v{d+7}, 0, {sr(sUP,2)}"]
    F1 = qpack(QA, 100) + [f"buffer_store_dwordx4 {vr(100+4*t,4)}, v{vL16}, {W4}, s10 offen offset:{t*1024}{ST}" for t in range(2)]
    FKL = f"buffer_load_dwordx2 {vr(vTG+6,2)}, v{vTG+3}, {W4}, s14 offen sc1"
    T = sr(sTAG, 2)
    TG = Prog(); tag_get(TG, "k1_tagq", vTG, vTG + 2)
    vC, vQF = vTG + 5, vTG + 6
    def ask(q):
        q(f"v_mov_b32 v{vC}, 0\nv_mov_b32 v{vQF}, 0\nv_mov_b32 v{vQF+1}, 0\ns_mov_b64 exec, 1")
        q(f"buffer_atomic_add v{vC}, v{vTG+2}, {W4}, s14 offen sc0 sc1\nbuffer_atomic_or_x2 {vr(vQF,2)}, v{vTG+2}, {W4}, s7 offen sc0 sc1\ns_mov_b64 exec, -1")
    def answer(q, no):
        q(f"""s_waitcnt vmcnt(0)
v_readfirstlane_b32 s8, v{vC}
v_readfirstlane_b32 s36, v{vQF}
v_readfirstlane_b32 s37, v{vQF+1}
s_cmp_lg_u32 s8, 64
s_cbranch_scc1 {no}
s_cmp_eq_u32 s{sBR}, 0
s_cselect_b64 s[36:37], {T}, s[36:37]
s_cmp_eq_u64 s[36:37], {T}
s_cbranch_scc0 {no}""")
    def fetch(q):
        for t in range(2): q(f"buffer_load_dwordx4 {vr(Q2+4*t,4)}, v{vL16}, {W4}, s11 offen offset:{t*1024}{LD}")
        early(q, 0); early(q, 1)
    ASK = Prog(); ask(ASK)
    TRY = Prog()
    TRY(f"s_cmp_eq_u32 s{sBR}, 0\ns_cbranch_scc1 k1_try")
    publish(TRY, sFL, vTG + 2, vTG)
    TRY.L.insert(2, "s_waitcnt vmcnt(2)")
    answer(TRY, "k1_try1")
    fetch(TRY)
    TRY("s_mov_b32 s15, 2\ns_branch k1_try\nk1_try1:\ns_mov_b32 s15, 1\nk1_try:")
    for n in range(LA): rd(n)
    for n in range(56):
        hd, m = divmod(n, 28); st = QF[n % (LA + 1)]
        if n == 16 - LA:
            stamp(G, 7)
            G("s_waitcnt vmcnt(0)"); stamp(G, 1); G("s_barrier"); stamp(G, 8)
            for x in TG.L: G(x)
            G("s_mov_b32 s15, 0")
        if n + LA < 56: rd(n + LA)
        G.wait(f"g{n}")
        G(f"{MFMA} {vr(QA+16*hd,16)}, {vr(st,4)}, {vr(XR+4*m,4)}, {'0' if m == 0 else vr(QA+16*hd,16)}")
        if n == OPT['askn']:
            for x in ASK.L: G(x)
        if n == OPT['tryn']:
            for x in TRY.L: G(x)
        if n == 28: stamp(G, 9)
        if n == 40: stamp(G, 2)
        if n >= 31:
            for x in F1[:4]: G(x)
            F1 = F1[4:]
    emit(p, G.L)
    stamp(p, 4)
    p(f"s_cmp_lg_u32 s{sBR}, 0\ns_cbranch_scc1 k1_qB\ns_waitcnt vmcnt(2)")
    publish(p, sFL, vTG + 2, vTG)
    p("s_nop 2")
    for x in qpack(QA + 16, 100): p(x)
    p("s_branch k1_w")
    p.label("k1_qB")
    p("s_nop 9")
    for x in qpack(QA + 16, QB2): p(x)
    p("s_cmp_eq_u32 s15, 2\ns_cbranch_scc1 k1_got")
    ask(p)
    p.label("k1_w")
    p("s_mov_b32 s62, 0x40000\nk1_pw:")
    answer(p, "k1_no")
    p("s_branch k1_yes\nk1_no:\ns_sub_u32 s62, s62, 1\ns_cbranch_scc1 k1_yes")
    p(f"s_sleep {OPT['slp']}")
    ask(p)
    p("s_branch k1_pw\nk1_yes:")
    stamp(p, 5)
    fetch(p)
    p.label("k1_got")
    p(f"s_cmp_lg_u32 s{sBR}, 0\ns_waitcnt vmcnt(16)\ns_cbranch_scc1 k1_q2")
    for j in range(8): p(f"v_mov_b32 v{Q2+j}, v{100+j}")
    p.label("k1_q2")
    for t in range(2): p(f"ds_write_b128 v{vTG+4}, {vr(Q2+4*t,4)} offset:{t*1024}")
    p("s_branch p1_join")
    p.label("k1_compute")
    if OPT["pfc"]:
        p(f"""s_lshr_b32 s8, s2, 3
s_lshl_b32 s9, s{sWV}, 5
s_add_u32 s9, s9, s8
s_cmp_ge_u32 s9, 4
s_cbranch_scc1 k1_nopf
s_getpc_b64 s[10:11]
k1_pc:
s_lshl_b32 s9, s9, 13
s_sub_u32 s10, s10, k1_pc-{KNAME}
s_subb_u32 s11, s11, 0
v_lshlrev_b32 v{vT}, 7, v{vL}
v_add_u32 v{vT}, s9, v{vT}
v_min_u32 v{vT}, code_end-{KNAME}-4, v{vT}
global_load_dword v247, v{vT}, s[10:11]
k1_nopf:""")
    vWR, vRD, vPR, vEX, vFX = 190, 191, 192, 193, 194
    p(f"""s_and_b32 s7, s{sWV}, 1
s_lshr_b32 s8, s{sWV}, 1
s_lshl_b32 s{sH}, s{sPAIR}, 1
s_add_u32 s{sH}, s{sH}, s8
s_lshl_b32 s9, s7, 13
s_mul_i32 s8, s8, 56
v_and_b32 v{vT}, 31, v{vL}
v_lshrrev_b32 v{vT+1}, 5, v{vL}
v_bfe_u32 v{vT+2}, v{vL}, 1, 3
v_xor_b32 v{vT+2}, v{vT+2}, v{vT+1}
v_lshlrev_b32 v{vT+2}, 4, v{vT+2}
v_lshl_add_u32 v{vT+3}, v{vT}, 7, s9""")
    for kk in range(4):
        p(f"v_xor_b32 v{vT+4}, {32*kk}, v{vT+2}\nv_add_u32 v{vXA0+kk}, v{vT+3}, v{vT+4}\nv_mov_b32 v{vXA+kk}, v{vXA0+kk}")
    p(f"""v_bfe_u32 v{vT+2}, v{vL}, 2, 2
v_lshl_add_u32 v{vT+3}, v{vT+1}, 3, v{vT+2}
v_bfe_u32 v{vT+4}, v{vL}, 4, 1
v_lshlrev_b32 v{vT+4}, 5, v{vT+4}
v_and_b32 v{vT+5}, 3, v{vL}
v_lshl_add_u32 v{vT+4}, v{vT+5}, 3, v{vT+4}
v_cmp_eq_u32 vcc, 56, v{vT+4}
s_lshr_b32 s9, s{sWV}, 1
s_lshl_b32 s9, s9, 7
s_cmp_eq_u32 s{sBR}, 0
s_cselect_b32 s10, 0, s8
s_cselect_b32 s11, 56, s8
s_cselect_b32 s12, s9, 0
s_cselect_b32 s13, s9, 128
v_lshlrev_b32 v{vT+5}, 6, v{vT+2}
v_mov_b32 v{vWA}, 112""")
    for i in range(2):
        p(f"v_add_u32 v{vWA0+i}, s{10+i}, v{vT+4}")
        if OPT["zpad"]: p(f"v_cndmask_b32 v{vWA0+i}, v{vWA0+i}, v{vWA}, vcc")
        p(f"v_add_u32 v{vWA0+i}, s{12+i}, v{vWA0+i}\nv_xor_b32 v{vWA0+i}, v{vWA0+i}, v{vT+5}\nv_lshl_add_u32 v{vWA0+i}, v{vT+3}, 8, v{vWA0+i}\nv_add_u32 v{vWA0+i}, {RING}, v{vWA0+i}")
    p(f"v_mov_b32 v{vWA}, v{vWA0}\nv_mov_b32 v{vWA+1}, v{vWA0+1}")
    for r in range(AK, AK + 64): p(f"v_mov_b32 v{r}, 0")
    p(f"""s_mov_b32 s{sRS}, 0
s_mov_b32 s{sCNT}, 0
s_mov_b32 s{sT}, 0
s_lshl_b32 s8, s{sRB}, 2
s_lshl_b32 s9, s{sPAIR}, 6
s_add_u32 s{sFL}, s8, s{sWV}
s_add_u32 s{sFL}, s{sFL}, s9
s_add_u32 s{sFL}, s{sFL}, {FB // 8}
s_and_b32 s9, s{sPAIR}, 3
s_lshl_b32 s9, s9, 1
s_lshr_b32 s10, s{sWV}, 1
s_add_u32 s9, s9, s10
s_lshr_b32 s12, s{sPAIR}, 2
s_lshl_b32 s{sFL}, s{sFL}, 3
s_lshl_b32 s10, s9, 9
s_add_u32 s10, s10, {CKV}
s_cmp_eq_u32 s{sBR}, 0
s_cselect_b32 s{sFL}, s10, s{sFL}
s_lshl_b32 s9, s9, 7
s_add_u32 s9, s9, s8
s_lshl_b32 s10, s7, 1
s_add_u32 s9, s9, s10
s_lshl_b32 s11, s9, 12
s_lshl_b32 s12, s12, 11
s_add_u32 s11, s11, s12
s_add_u32 s11, s11, {KV_OFF}
s_lshl_b32 s10, s{sH}, 4
s_add_u32 s10, s10, s{sRB}
s_lshl_b32 s10, s10, 1
s_add_u32 s10, s10, s7
s_lshl_b32 s10, s10, 12
s_add_u32 s10, s10, {KP_OFF}
s_mov_b32 s12, 0xf0000000
s_mov_b32 s13, 0xf0000000
s_lshl_b32 s8, s{sWV}, 12
s_add_u32 s8, s8, {RING}
v_and_b32 v{vWR}, 15, v{vL}
v_xor_b32 v{vWR}, v{vWR}, v{vT+1}
v_lshlrev_b32 v{vWR}, 3, v{vWR}
v_lshl_add_u32 v{vWR}, v{vT}, 7, v{vWR}
v_add_u32 v{vWR}, s8, v{vWR}
v_lshl_add_u32 v{vRD}, v{vT+1}, 2, v{vT+2}
v_bfe_u32 v{vPR}, v{vL}, 4, 1
v_lshlrev_b32 v{vPR}, 2, v{vPR}
v_and_b32 v{vRD2}, 3, v{vL}
v_or_b32 v{vPR}, v{vPR}, v{vRD2}
v_xor_b32 v{vPR}, v{vPR}, v{vRD}
v_lshlrev_b32 v{vPR}, 3, v{vPR}
v_lshl_add_u32 v{vRD}, v{vRD}, 7, v{vPR}
v_add_u32 v{vRD}, s8, v{vRD}
s_lshl_b32 s9, s7, 6
v_add_u32 v{vRD2}, s9, v{vRD}
v_xor_b32 v{vRD}, 64, v{vRD2}
v_add_u32 v{vEX}, s8, v{vL16}
v_xor_b32 v{vPR}, 4096, v{vEX}
v_cmp_eq_u32 vcc, 28, v{vT}
v_mov_b32 v{vFX}, 0x3f803f80
s_waitcnt lgkmcnt(0)
v_cndmask_b32 v{vFX}, 0, v{vFX}, vcc""")
    srd(p, WS, 34, WS_USED); srd(p, WP, 26, WPHI_BYTES); srd(p, DBG, 32, 256)
    p(f"""s_or_b32 s14, s2, s{sWV}
s_cmp_lg_u32 s14, 0
s_cbranch_scc1 k1_notag
s_memrealtime s[14:15]
v_mov_b32 v70, 0
v_lshlrev_b32 v68, 7, v{vL}
s_mov_b32 s8, {MO}
buffer_store_dword v70, v68, {W4}, s8 offen sc1
s_add_u32 s8, s8, 8192
buffer_store_dword v70, v68, {W4}, s8 offen sc1
s_add_u32 s8, s8, 8192
buffer_store_dword v70, v68, {W4}, s8 offen sc1
s_waitcnt vmcnt(0) lgkmcnt(0)
s_or_b32 s14, s14, 1
v_mov_b32 v68, s14
v_mov_b32 v69, s15
s_mov_b64 exec, 1
buffer_store_dwordx2 v[68:69], v70, s[{DBG}:{DBG+3}], 0 offen sc1
s_mov_b64 exec, -1
k1_notag:
s_cmp_eq_u32 s{sBR}, 0
s_cbranch_scc1 k1_go""")
    wphi_loads(p, WPH, sH, vT, vT + 1, vT + 2, WP)
    p.label("k1_go")
    stamp(p, 1)
    p("s_barrier")
    stamp(p, 2)
    def reads(kk, st):
        for a in range(2): p(f"ds_read_b128 {vr(XF[st]+4*a,4)}, v{vXA+kk} offset:{4096*a}")
        for seg in range(2):
            for x in range(2): p(f"ds_read_b64_tr_b16 {vr(WF[st]+4*seg+2*x,2)}, v{vWA+seg} offset:{(16*kk+4*x)*256}")
    def mfmas(st, tr):
        for a in range(2):
            xf = vr(XF[st] + 4 * a, 4)
            for i, acc in enumerate((AK, AV)):
                wf = vr(WF[st] + 4 * i, 4)
                p(f"{MFMA} {vr(acc+16*a,16)}, {wf if tr[i] else xf}, {xf if tr[i] else wf}, {vr(acc+16*a,16)}")
    PKK, PKV = 200, 172
    def pack(E, dst, acc, scale):
        if scale is not None:
            for j in range(16): E(f"v_mul_f32 v{acc+j}, s{scale}, v{acc+j}")
        for j in range(8): E(f"v_cvt_pk_bf16_f32 v{dst+j}, v{acc+2*j}, v{acc+2*j+1}")
    def fixV(E, a, base=PKV):
        for j in range(8): E(f"v_cndmask_b32 v{base+8*a+j}, v{base+8*a+j}, v{vFX}, s[12:13]")
    reads(0, 0)
    p(f"s_cmp_lg_u32 s{sBR}, 0\ns_cbranch_scc1 k1_loopB\ns_cmp_ge_u32 s{sPAIR}, 4\ns_cbranch_scc1 k1_loopV")
    for nm, tr in (("K", (1, 1)), ("V", (0, 0)), ("B", (1, 0))):
        p(".p2align 4")
        p.label(f"k1_loop{nm}")
        for kk in range(3):
            reads(kk + 1, (kk + 1) & 1)
            p("s_waitcnt lgkmcnt(6)")
            mfmas(kk & 1, tr)
        p(f"s_add_u32 s{sRS}, s{sRS}, 16384\ns_cmp_ge_u32 s{sRS}, {3*16384}\ns_cselect_b32 s{sRS}, 0, s{sRS}\ns_add_u32 s{sT}, s{sT}, 16384\ns_add_u32 s{sCNT}, s{sCNT}, 1")
        for kk in range(4): p(f"v_add_u32 v{vXA+kk}, s{sT}, v{vXA0+kk}")
        p(f"v_add_u32 v{vWA}, s{sRS}, v{vWA0}\nv_add_u32 v{vWA+1}, s{sRS}, v{vWA0+1}")
        p(f"s_cmp_eq_u32 s{sCNT}, 7\ns_waitcnt lgkmcnt(0)\ns_barrier\ns_cbranch_scc1 k1_done{nm}")
        reads(0, 0)
        mfmas(1, tr)
        p(f"s_branch k1_loop{nm}")
        p.label(f"k1_done{nm}")
        stamp(p, 3)
        mfmas(1, tr)
        if OPT["eprio"]: p("s_setprio 2")
        p("s_waitcnt vmcnt(0)")
        tag_load(p, 68, 70)
        if nm == "B": break
        p(f"v_mov_b32 v{vT+3}, 0x3f80\ns_add_u32 s10, s11, {64*4096}\ns_nop 4")
        for a in range(2):
            for i, acc in enumerate((AK, AV)):
                d = (PKK, PKV)[i]
                pack(p, d + 8 * a, acc + 16 * a, None)
                if nm == "K": p(f"v_cndmask_b32 v{d+8*a+6}, v{d+8*a+6}, v{vT+3}, {sr(sUP,2)}\nv_cndmask_b32 v{d+8*a+7}, v{d+8*a+7}, 0, {sr(sUP,2)}")
                else: fixV(p, a, d)
                for t in range(2): p(f"buffer_store_dwordx4 {vr(d+8*a+4*t,4)}, v{vL16}, {W4}, s{11-i} offen offset:{t*1024}{ST}")
            if a == 0: p("s_add_u32 s11, s11, 4096\ns_add_u32 s10, s10, 4096")
        if nm == "K": p("s_branch k1_pubA")
        else:
            p.label("k1_pubA")
            stamp(p, 4)
            p("s_barrier\ns_waitcnt vmcnt(0)")
            tag_get(p, "k1_taga", 68, 70)
            p(f"v_mov_b32 v68, 1\nv_lshlrev_b32 v70, 7, v{vL}\ns_mov_b64 exec, 15\nbuffer_atomic_add v68, v70, {W4}, s{sFL} offen sc1\ns_mov_b64 exec, -1")
            stamp(p, 5)
            p("s_setprio 0\ns_branch p1_join")
    p(f"s_mov_b32 s14, {f32(LOG2E)}")
    for j in range(8): p(f"v_lshl_or_b32 v{WPH+j}, v{WPH+2*j+1}, 16, v{WPH+2*j}")
    TMP = [212, 28]; KVA = AV
    keep, send = KVA + 16, KVA
    E = Tr()
    KB = [248, 240]
    for a in range(2): pack(E, KB[a], AK + 16 * a, 14)
    E("s_nop 0")
    for a in range(2):
        E(f"{MFMA} {vr(AK+16*a,16)}, {vr(WPH,4)}, {vr(KB[a],4)}, 0")
        E(f"{MFMA} {vr(AK+16*a,16)}, {vr(WPH+4,4)}, {vr(KB[a]+4,4)}, {vr(AK+16*a,16)}")
    for a in range(2):
        pack(E, PKV + 8 * a, AV + 16 * a, None); fixV(E, a)
    stamp(E, 7)
    OP = [240, AK]
    q = [Prog(), Prog()]
    for a in range(2): softmax_pm(q[a], AK + 16 * a, OP[a], OP[a] + 8, TMP[a])
    for x, y in zip(q[0].L[:-16], q[1].L[:-16]):
        if not x.startswith("s_nop"): E(x); E(y)
    stamp(E, 8)
    PF = TMP
    AD = (16, 17, 10, 11)
    for a in range(2):
        for x in q[a].L[-16:]: E(x)
        if a == 1: E.wait("r0")
        for sg in range(2):
            for g in range(4):
                E(f"v_xor_b32 v{AD[(g&1)*2+sg]}, {sg*64+g*16}, v{vWR}")
                E.ds(f"ds_write_b64 v{AD[(g&1)*2+sg]}, {vr(OP[a]+8*sg+2*g,2)}", f"w{a}")
        E.wait(f"w{a}")
        for sg in range(2):
            for u in range(2):
                for x in range(2): E.ds(f"ds_read_b64_tr_b16 {vr(PF[a]+8*sg+4*u+2*x,2)}, v{(vRD, vRD2)[sg ^ x]} offset:{(16*u+8*x)*128}", f"r{a}")
        if a == 0:
            pass
    E.wait("r1")
    stamp(E, 9)
    for sg in (0, 1):
        for a in range(2):
            for u in range(2):
                c = "0" if (a == 0 and u == 0) else vr(KVA + 16 * sg, 16)
                E(f"{MFMA} {vr(KVA+16*sg,16)}, {vr(PF[a]+8*sg+4*u,4)}, {vr(PKV+8*a+4*u,4)}, {c}")
    E("s_nop 7")
    for q4 in range(4): E.ds(f"ds_write_b128 v{vEX}, {vr(send+4*q4,4)} offset:{q4*1024}", "x")
    E.L.insert(OPT["b8"], "s_barrier")
    emit(p, E.L)
    p("s_waitcnt vmcnt(0)")
    tag_get(p, "k1_tagb", 68, 70)
    stamp(p, 5)
    p.label("p1_join")
    return dict(vPR=vPR, keep=keep, sFL=sFL, sKP=10)

def phase23(p, c1):
    sTILE, sHALF, sRET, sCNT, sPO, sM0, sWOO, sFLB = 6, 7, 42, 43, 13, 48, 50, c1["sFL"]
    sB3, sRB3, sCB3, sQO, sFBO = 51, 52, 53, 54, 55
    WO, OUT = 36, 56
    vT = 8
    S = [16, 32]; O = 48; K = 64; V0 = [72, 76]; V1 = 80; Q = Q2; P = 92; PH = 100; PA = 116
    PL = 168; vPO = 120; vWD = 124; QB = QB2; PS = 200; TM = 216; vFD = 244; WPq = 136; KF = 152
    p(f"""s_lshl_b32 s{sH2}, s{sPAIR}, 1
s_add_u32 s{sH2}, s{sH2}, s{sBR}
s_and_b32 s8, s{sWAVE}, 3
s_lshr_b32 s{sHALF}, s{sWAVE}, 2
s_lshl_b32 s{sTILE}, s{sRB}, 2
s_add_u32 s{sTILE}, s{sTILE}, s8
s_lshl_b32 s9, s{sH2}, 6
s_lshl_b32 s11, s{sHALF}, 5
s_add_u32 s11, s11, s8
s_add_u32 s11, s11, s9
s_lshl_b32 s{sKO}, s11, 12
s_add_u32 s{sKO}, s{sKO}, {KV_OFF + 16384}
s_lshl_b32 s{sM0}, s{sWAVE}, 12
s_add_u32 s9, s9, s{sTILE}
s_lshl_b32 s{sQO}, s9, 11
s_lshl_b32 s8, s{sHALF}, 14
v_add_u32 v{vRA}, s8, v{vL16}
v_add_u32 v{vRB}, 0x10000, v{vRA}
v_mov_b32 v{vTHR}, 0x7f800000
v_mov_b32 v{vT+2}, {f32(2.0**60)}
v_cndmask_b32 v{vTHR}, v{vTHR}, v{vT+2}, {sr(sUP,2)}
s_and_b32 s8, s{sWAVE}, 3
s_lshl_b32 s8, s8, 12
v_add_u32 v{vT}, s8, v{vL16}
v_add_u32 v{vT}, {QLDS}, v{vT}""")
    for j in range(3): p(f"v_mov_b32 v{vPO+j}, 0")
    for j in range(16): p(f"v_mov_b32 v{O+j}, 0")
    p("s_setprio 0\ns_waitcnt vmcnt(8) lgkmcnt(0)\ns_barrier")
    stamp(p, 6)
    stamp_out(p, 0)
    stamp(p, 0)
    SLO = lambda st: SL[st % 4] * SLOT
    def dma_piece(f): p(f"buffer_load_dwordx4 v{vL16}, {W4}, s{sKO} offen offset:{f*1024}{LD} lds")
    def dma_stage(st): p(f"s_add_u32 m0, s{sM0}, {SLO(st)}\ns_add_u32 s{sKO}, s{sKO}, 16384")
    def rd(dst, i, frag):
        st, tl = divmod(i, 4)
        base = vRA if SL[st % 4] < 2 else vRB
        p(f"ds_read_b128 {vr(dst,4)}, v{base} offset:{(SL[st % 4] & 1) * SLOT + tl * 4096 + frag * 1024}")
    rd(K, 0, 0); rd(K + 4, 0, 1); rd(V0[0], 0, 2)
    p(f"s_cmp_ge_u32 s{sWAVE}, 4\ns_cbranch_scc1 p2_go")
    for t in range(2): p(f"ds_read_b128 {vr(Q+4*t,4)}, v{vT} offset:{t*1024}")
    p(f"s_cmp_eq_u32 s{sBR}, 0\ns_cbranch_scc1 p2_go")
    keep, vPR = c1["keep"], c1["vPR"]
    for q4 in range(4): p(f"ds_read_b128 {vr(212+4*q4,4)}, v{vPR} offset:{q4*1024}")
    for q4 in range(4):
        p(f"s_waitcnt lgkmcnt({3-q4})")
        for i in range(4): p(f"v_add_f32 v{keep+4*q4+i}, v{keep+4*q4+i}, v{212+4*q4+i}")
        p(f"buffer_store_dwordx4 {vr(keep+4*q4,4)}, v{vL16}, {W4}, s{c1['sKP']} offen offset:{q4*1024}{ST}")
    p.label("p2_go")
    dma_stage(2)
    for f in range(2): dma_piece(f)
    p("s_waitcnt lgkmcnt(0)")
    p(f"{MFMA} {vr(S[0],16)}, {vr(K,4)}, {vr(Q,4)}, 0\n{MFMA} {vr(S[0],16)}, {vr(K+4,4)}, {vr(Q+4,4)}, {vr(S[0],16)}")
    rd(K, 1, 0); rd(K + 4, 1, 1)
    p(f"""v_lshrrev_b32 v{vT}, 4, v{vL16}
s_min_u32 s13, s2, 223
s_and_b32 s8, s13, 7
s_lshr_b32 s9, s13, 3
s_lshr_b32 s{sB3}, s8, 2
s_mul_i32 s13, s9, 37
s_lshr_b32 s13, s13, 8
s_mul_i32 s14, s13, 7
s_sub_u32 s{sCB3}, s9, s14
s_and_b32 s8, s8, 3
s_lshl_b32 s8, s8, 2
s_add_u32 s{sRB3}, s8, s13
s_cmp_eq_u32 s{sB3}, 0
s_cselect_b64 s[8:9], s[20:21], s[28:29]
s_mul_i32 s{sWOO}, s{sWAVE}, {64*896}
s_lshl_b32 s13, s{sCB3}, 7
s_add_u32 s{sWOO}, s{sWOO}, s13""")
    srd(p, WO, 8, WO_BYTES)
    p(f"v_max3_f32 v{vT+4}, v{S[0]}, v{S[0]+1}, v{S[0]+2}\nv_max3_f32 v{vT+5}, v{S[0]+3}, v{S[0]+4}, v{S[0]+5}")
    for j in range(6, 14, 4): p(f"v_max3_f32 v{vT+4}, v{vT+4}, v{S[0]+j}, v{S[0]+j+1}\nv_max3_f32 v{vT+5}, v{vT+5}, v{S[0]+j+2}, v{S[0]+j+3}")
    p(f"v_max3_f32 v{vT+4}, v{vT+4}, v{S[0]+14}, v{S[0]+15}\nv_max_f32 v{vT+4}, v{vT+4}, v{vT+5}")
    xhalf(p, "v_max_f32", vT + 4, vT + 5)
    p(f"v_cvt_pk_bf16_f32 v{vT+4}, -v{vT+4}, 0\nv_lshlrev_b32 v{vNM}, 16, v{vT+4}\nv_cndmask_b32 v{Q+6}, v{Q+6}, v{vT+4}, {sr(sUP,2)}")
    for j in range(16): p(f"v_add_f32 v{S[0]+j}, v{S[0]+j}, v{vNM}")
    stamp(p, 1)
    def wo_setup():
        p(f"""v_lshrrev_b32 v{vT+1}, 7, v{vL16}
v_bfe_u32 v{vT+2}, v{vL16}, 4, 3
v_lshlrev_b32 v{vT+3}, 1, v{vT+1}
v_and_b32 v{vT+3}, 4, v{vT+3}
v_xor_b32 v{vT+2}, v{vT+2}, v{vT+3}
v_lshlrev_b32 v{vT+2}, 4, v{vT+2}
s_movk_i32 s13, 896
v_mad_u32_u24 v{vWD}, v{vT+1}, s13, v{vT+2}""")
        for i in range(1, 4): p(f"v_add_u32 v{vWD+i}, {i*(8*896-1024)}, v{vWD}")
    CHECK = (0, 1, 3, 5)
    PR = OPT["prio"]; GT = OPT["gate"]
    WOI = 0
    for i in range(32):
        s, j = divmod(i, 4)
        Sc, Sn = S[i & 1], S[(i + 1) & 1]
        e = lambda n: p(f"v_exp_f32 v{Sc+n}, v{Sc+n}")
        c = lambda n: p(f"v_cvt_pk_bf16_f32 v{P+n}, v{Sc+2*n}, v{Sc+2*n+1}")
        e(0); e(1)
        p("s_waitcnt lgkmcnt(0)")
        if i > 0: p(f"{MFMA} {vr(O,16)}, {vr(V1,4)}, {vr(P+4,4)}, {vr(O,16)}")
        rd(V1, i, 3)
        e(2); e(3); c(0); e(4); c(1); e(5)
        if i < 31: p(f"{MFMA} {vr(Sn,16)}, {vr(K,4)}, {vr(Q,4)}, 0")
        if PR: p("s_setprio 0")
        e(6); e(7); c(2); e(8); c(3); e(9)
        if i < 31: p(f"{MFMA} {vr(Sn,16)}, {vr(K+4,4)}, {vr(Q+4,4)}, {vr(Sn,16)}")
        if j == 2 and s < 7:
            if s + 3 <= 7: dma_stage(s + 3)
            p(f"s_waitcnt vmcnt({4 if s < 6 else 0})\ns_barrier")
        if i + 2 < 32: rd(K, i + 2, 0); rd(K + 4, i + 2, 1)
        if PR: p("s_setprio 1")
        if i + 1 < 32: rd(V0[(i + 1) & 1], i + 1, 2)
        T = sr(sTAG, 2)
        if j == 2 and s <= 6:
            lo, hi = Prog(), Prog()
            w0 = Prog()
            if s == 0:
                lo(f"s_cmp_eq_u32 s{sBR}, 0\ns_cbranch_scc1 k2_x0")
                publish(lo, sFLB, vT, vT + 2)
                hi(f"""s_lshl_b32 s8, s{sPAIR}, 6
s_add_u32 s8, s8, s{sTILE}
s_lshl_b32 s{sFBO}, s8, 3
s_add_u32 s{sFBO}, s{sFBO}, {FQB}
s_add_u32 s{sQO}, s{sQO}, {PQ_OFF}
v_bfe_u32 v{vT}, v{vL16}, 4, 5
v_lshrrev_b32 v{vT+1}, 9, v{vL16}
v_mov_b32 v{vPO}, 0""")
                srd(hi, OUT, 26, WPHI_BYTES)
                wphi_loads(hi, WPq, sH2, vT, vT + 1, vT + 2, OUT)
                hi(f"buffer_load_dwordx2 {vr(vFD,2)}, v{vPO}, {W4}, s{sFBO} offen sc1")
            if s == 1:
                for k in range(8): hi(f"v_lshl_or_b32 v{WPq+k}, v{WPq+2*k+1}, 16, v{WPq+2*k}")
                hi(f"s_cmp_lg_u32 s{sBR}, 0\ns_cbranch_scc1 k2_x1\nv_cmp_ne_u64 vcc, {T}, {vr(vFD,2)}\ns_cbranch_vccz k2_qbok")
                poll(hi, "k2_pqb", sFBO, vPO, vFD)
                hi.label("k2_qbok")
                for t in range(2): hi(f"buffer_load_dwordx4 {vr(QB+4*t,4)}, v{vL16}, {W4}, s{sQO} offen offset:{t*1024}{LD}")
            if s == 2:
                hi(f"{MFMA} {vr(PS,16)}, {vr(WPq,4)}, {vr(QB,4)}, 0\n{MFMA} {vr(PS,16)}, {vr(WPq+4,4)}, {vr(QB+4,4)}, {vr(PS,16)}")
                hi(f"s_lshl_b32 s{sFBO}, s{sH2}, 7\ns_add_u32 s{sFBO}, s{sFBO}, {FR}\nv_bfe_u32 v{vPO}, v{vL16}, 4, 4\nv_lshlrev_b32 v{vPO}, 3, v{vPO}\ns_nop 7")
                softmax_pm(hi, PS, PH, PH + 8, TM)
            if s == 5: hi(f"buffer_load_dwordx2 {vr(vFD,2)}, v{vPO}, {W4}, s{sFBO} offen sc1")
            if s == 6:
                hi(f"v_cmp_ne_u64 vcc, {T}, {vr(vFD,2)}\ns_cbranch_vccz k2_frok")
                poll(hi, "k2_pfr", sFBO, vPO, vFD)
                hi.label("k2_frok")
                hi(f"s_lshl_b32 s8, s{sH2}, 12\ns_add_u32 s8, s8, {KR_OFF}")
                for f in range(4): hi(f"buffer_load_dwordx4 {vr(KF+4*f,4)}, v{vL16}, {W4}, s8 offen offset:{f*1024}{LD}")
            if s == GT - 1:
                w0(f"""s_lshl_b32 s{sFBO}, s{sPAIR}, 9
s_add_u32 s{sFBO}, s{sFBO}, {FB}
v_lshrrev_b32 v{vPO}, 1, v{vL16}
buffer_load_dwordx2 {vr(vFD,2)}, v{vPO}, {W4}, s{sFBO} offen sc1
s_lshl_b32 s{sPO}, s{sH2}, 17
s_lshr_b32 s8, s{sRB}, 2
s_lshl_b32 s9, s8, 11
s_add_u32 s{sPO}, s{sPO}, s9
s_and_b32 s9, s{sRB}, 3
s_lshl_b32 s9, s9, 8
s_add_u32 s{sPO}, s{sPO}, s9
s_add_u32 s{sPO}, s{sPO}, {KP_OFF}
s_lshl_b32 s12, s8, 10
s_add_u32 s12, s12, s9
s_lshl_b32 s9, s{sH2}, 12
s_add_u32 s12, s12, s9
s_add_u32 s12, s12, {KR_OFF}
v_lshrrev_b32 v{vT}, 9, v{vL16}
v_and_b32 v{vPO+1}, 0xf8, v{vPO}
v_lshl_add_u32 v{vPO+1}, v{vT}, 10, v{vPO+1}
v_and_b32 v{vPO+2}, 0xf0, v{vPO}
v_lshl_add_u32 v{vPO+2}, v{vT}, 3, v{vPO+2}
v_bfe_u32 v{vT}, v{vL16}, 4, 1
v_lshl_add_u32 v{vPO+2}, v{vT}, 2, v{vPO+2}""")
            if s == GT:
                w0(f"v_cmp_ne_u64 vcc, {T}, {vr(vFD,2)}\ns_cbranch_vccz k2_fbok")
                poll(w0, "k2_pb", sFBO, vPO, vFD)
                w0.label("k2_fbok")
                for k in range(16): w0(f"buffer_load_dwordx2 {vr(PL+2*k,2)}, v{vPO+1}, {W4}, s{sPO} offen{LD}\ns_add_u32 s{sPO}, s{sPO}, 8192")
            if s == GT + 1:
                for st_ in (16, 8, 4, 2):
                    for k in range(st_): w0(f"v_add_f32 v{PL+k}, v{PL+k}, v{PL+st_+k}")
                w0(f"v_cvt_pk_bf16_f32 v{PL}, v{PL}, v{PL+1}\nbuffer_store_dword v{PL}, v{vPO+2}, {W4}, s12 offen{ST}")
                w0(f"s_lshl_b32 s12, s{sH2}, 4\ns_add_u32 s12, s12, s{sRB}\ns_lshl_b32 s12, s12, 3\ns_add_u32 s12, s12, {FR}")
            if s == GT + 2: publish(w0, 12, vT, vT + 2)
            if hi.L:
                p(f"s_cmp_eq_u32 s{sHALF}, 0\ns_cbranch_scc1 k2_l{s}")
                p.L += hi.L
                if lo.L or w0.L: p(f"s_branch k2_x{s}")
                p.label(f"k2_l{s}")
            elif lo.L or w0.L: p(f"s_cmp_lg_u32 s{sHALF}, 0\ns_cbranch_scc1 k2_x{s}")
            p.L += lo.L
            if w0.L:
                p(f"s_cmp_lg_u32 s{sWAVE}, 0\ns_cbranch_scc1 k2_x{s}")
                p.L += w0.L
            p.label(f"k2_x{s}")
        if i == 25: wo_setup()
        e(10); e(11); c(4); e(12); c(5); e(13)
        if j == 3 and s in CHECK: p(f"v_cmp_gt_f32 vcc, v{O+12}, v{vTHR}")
        p(f"{MFMA} {vr(O,16)}, {vr(V0[i&1],4)}, {vr(P,4)}, {vr(O,16)}")
        ds = s + 3 if j >= 2 else s + 2
        if ds <= 7: dma_piece((j + 2) % 4)
        if i >= 26 and WOI < 8:
            for _ in range(2):
                if WOI % 4 == 0: p(f"s_lshl_b32 s8, s{sWAVE}, 13\ns_add_u32 m0, s8, {SLOT + WOI*1024}\ns_nop 0")
                p(f"buffer_load_dwordx4 v{vWD+WOI%4}, s[{WO}:{WO+3}], s{sWOO} offen offset:{(WOI%4)*1024} lds")
                if WOI % 4 == 3: p(f"s_add_u32 s{sWOO}, s{sWOO}, {32*896}")
                WOI += 1
        e(14); e(15); c(6); c(7)
        if j == 3 and s in CHECK:
            p(f"s_cbranch_vccnz k2_rs{s}")
            p.label(f"k2_cont{s}")
    stamp(p, 2)
    p("s_setprio 0\ns_waitcnt lgkmcnt(0)")
    p(f"{MFMA} {vr(O,16)}, {vr(V1,4)}, {vr(P+4,4)}, {vr(O,16)}")
    p(f"""s_lshl_b32 s8, s{sTILE}, 4
s_add_u32 s{sFLB}, s8, s{sH2}
s_lshl_b32 s8, s{sFLB}, 11
s_add_u32 s8, s8, {O_OFF}
s_lshl_b32 s{sFLB}, s{sTILE}, 7
s_add_u32 s{sFLB}, s{sFLB}, {MO}
s_and_b32 s9, s{sWAVE}, 3
s_mul_i32 s9, s9, 5120
s_add_u32 s9, s9, {XA + 8192}
v_add_u32 v{vT+2}, s9, v{vL16}
s_cmp_eq_u32 s{sHALF}, 0
s_cbranch_scc1 k2_fin""")
    p(f"ds_write_b32 v{vT+2}, v{vNM} offset:4096")
    for q in range(4): p(f"ds_write_b128 v{vT+2}, {vr(O+4*q,4)} offset:{q*1024}")
    p("s_waitcnt vmcnt(0) lgkmcnt(0)\ns_barrier")
    stamp(p, 3)
    p(f"s_add_u32 s8, s8, {2*MB}\ns_add_u32 s{sFLB}, s{sFLB}, {64*128}")
    for f in range(4): p(f"{MFMA} v[32:47], {vr(KF+4*f,4)}, {vr(PH+4*f,4)}, {'0' if f == 0 else 'v[32:47]'}")
    p(f"s_nop 11\nv_mov_b32 v{vT+2}, v44\nv_mov_b32 v{vT+3}, v44\ns_nop 1\nv_permlane32_swap_b32 v{vT+2}, v{vT+3}\ns_nop 0")
    p(f"v_add_f32 v{vT+2}, {f32(1e-6)}, v{vT+3}\nv_rcp_f32 v{vT+2}, v{vT+2}\ns_nop 0")
    for j in range(0, 16, 2): p(pk("v_pk_mul_f32", O + j, vr(32 + j, 2), vr(vT + 2, 2), "op_sel_hi:[1,0]"))
    p("s_branch k2_out")
    p.label("k2_fin")
    p("s_waitcnt vmcnt(0)\ns_barrier")
    stamp(p, 3)
    p(f"ds_read_b32 v{vT+7}, v{vT+2} offset:4096")
    for q in range(4): p(f"ds_read_b128 {vr(16+4*q,4)}, v{vT+2} offset:{q*1024}")
    p(f"""v_mov_b32 v{vT}, {f32(2.0**-120)}
v_mov_b32 v{vT+1}, {f32(2.0**120)}
s_waitcnt lgkmcnt(4)
v_min_f32 v{vT+3}, v{vNM}, v{vT+7}
v_sub_f32 v{vT+4}, v{vT+3}, v{vNM}
v_sub_f32 v{vT+6}, v{vT+3}, v{vT+7}
v_exp_f32 v{vT+4}, v{vT+4}
v_exp_f32 v{vT+6}, v{vT+6}""")
    for j in range(0, 16, 2): p(pk("v_pk_mul_f32", O + j, vr(O + j, 2), vr(vT + 4, 2), "op_sel_hi:[1,0]"))
    for q in (3, 0, 1, 2):
        if q == 3: p("s_waitcnt lgkmcnt(0)")
        for j in range(4 * q, 4 * q + 4, 2):
            p(f"v_pk_fma_f32 {vr(O+j,2)}, {vr(16+j,2)}, {vr(vT+6,2)}, {vr(O+j,2)} op_sel_hi:[1,0,1]")
        if q == 3: p(f"v_mov_b32 v{vT+4}, v{O+12}\nv_mov_b32 v{vT+5}, v{O+12}")
    p(f"v_permlane32_swap_b32 v{vT+4}, v{vT+5}\ns_nop 0\nv_rcp_f32 v{vT+4}, v{vT+5}")
    p(f"v_cmp_nlt_f32 vcc, v{vT}, v{vT+5}\nv_cmp_nlt_f32 s[10:11], v{vT+5}, v{vT+1}")
    p(f"v_maximum3_f32 v{vT+2}, abs(v{O}), abs(v{O+1}), abs(v{O+2})")
    for j in range(3, 15, 2): p(f"v_maximum3_f32 v{vT+2}, v{vT+2}, abs(v{O+j}), abs(v{O+j+1})")
    p(f"v_maximum3_f32 v{vT+2}, v{vT+2}, abs(v{O+15}), abs(v{O+15})\ns_or_b64 s[10:11], vcc, s[10:11]")
    p(f"v_cmp_nlt_f32 vcc, v{vT+2}, v{vT+1}")
    for j in range(0, 16, 2): p(pk("v_pk_mul_f32", O + j, vr(O + j, 2), vr(vT + 4, 2), "op_sel_hi:[1,0]"))
    p("s_or_b64 vcc, vcc, s[10:11]\ns_cbranch_vccnz k2_slow")
    p.label("k2_out")
    def o_store(src, dst, so):
        for j in range(8): p(f"v_cvt_pk_bf16_f32 v{dst+j}, v{src+2*j}, v{src+2*j+1}")
        p(f"v_cndmask_b32 v{dst+6}, v{dst+6}, 0, {sr(sUP,2)}\nv_cndmask_b32 v{dst+7}, v{dst+7}, 0, {sr(sUP,2)}")
        for t in range(2): p(f"buffer_store_dwordx4 {vr(dst+4*t,4)}, v{vL16}, {W4}, s{so} offen offset:{t*1024}{ST}")
    o_store(O, 16, 8)
    stamp(p, 4)
    vWA, vST = 8, 9
    WF = [12, 28]; AC = 44; OF = 76; NR = 9
    p(f"""v_lshrrev_b32 v2, 4, v{vL16}
v_lshrrev_b32 v4, 5, v2
v_bfe_u32 v5, v2, 2, 2
v_lshl_add_u32 v6, v4, 2, v5
v_lshlrev_b32 v6, 7, v6
v_bfe_u32 v7, v2, 4, 1
v_lshl_add_u32 v6, v7, 5, v6
v_and_b32 v7, 3, v2
v_lshl_add_u32 v6, v7, 3, v6
v_lshlrev_b32 v5, 5, v5
v_and_b32 v5, 64, v5
v_add_u32 v{vWA}, v6, v5
s_lshl_b32 s12, s{sRB3}, 2
s_add_u32 s12, s12, s{sWAVE}
s_lshl_b32 s13, s12, 15
s_lshl_b32 s14, s{sB3}, 21
s_add_u32 s13, s13, s14
s_lshr_b32 s11, s13, 8
s_add_u32 s11, s11, {MO}
s_add_u32 s13, s13, {O_OFF}
v_and_b32 v5, 31, v2
s_lshl_b32 s12, s12, 5
v_add_u32 v5, s12, v5
s_movk_i32 s9, 1792
v_mul_u32_u24 v5, s9, v5
v_lshl_add_u32 v{vST}, v4, 4, v5
s_mul_i32 s12, s{sB3}, 896
s_lshl_b32 s14, s{sCB3}, 7
s_add_u32 s12, s12, s14
v_mov_b32 v3, 0
s_lshl_b32 s8, 1, s{sH2}
v_mov_b32 v6, s8
v_add_u32 v{vWA}, {SLOT}, v{vWA}
v_xor_b32 v{vWA+2}, 64, v{vWA}""")
    srd(p, OUT, 30, OUT_BYTES)
    p("s_waitcnt vmcnt(0)")
    atom(p, "buffer_atomic_or", "v6", 3, sFLB)
    stamp(p, 5)
    stamp_out(p, 1)
    stamp(p, 0)
    p(f"s_cmp_ge_u32 s{sWAVE}, 4\ns_cbranch_scc1 k_end\ns_cmp_ge_u32 s2, 224\ns_cbranch_scc1 k_end")
    if OPT['prog']:
        D = OPT["d3"]
        WR = [76 + 16 * i for i in range(D + 1)]; OR = [76 + 16 * (D + 1) + 8 * i for i in range(D + 1)]
        sTODO, sRDY, sHH = 40, 41, 42
        p(f"s_mov_b32 s{sTODO}, 0xffff\ns_mov_b32 s{sRDY}, 0\ns_mov_b32 s62, 0x200000")
        def mm(i):
            st, of = WR[i % (D + 1)], OR[i % (D + 1)]
            for t in range(2):
                for ct in range(2):
                    c = "0" if (i == 0 and t == 0) else vr(AC + 16 * ct, 16)
                    p(f"{MFMA} {vr(AC+16*ct,16)}, {vr(st+8*t+4*ct,4)}, {vr(of+4*t,4)}, {c}")
        for i in range(16):
            st, of = WR[i % (D + 1)], OR[i % (D + 1)]
            p(f"""s_and_b32 s8, s{sRDY}, s{sTODO}
s_cbranch_scc1 k3_go{i}
k3_p{i}:
v_mov_b32 v7, 0
s_mov_b64 exec, 1
buffer_atomic_or v7, v3, {W4}, s11 offen sc0 sc1
s_mov_b64 exec, -1
s_sub_u32 s62, s62, 1
s_cselect_b32 s9, -1, 0
s_waitcnt vmcnt(0)
v_readfirstlane_b32 s{sRDY}, v7
s_or_b32 s{sRDY}, s{sRDY}, s9
s_and_b32 s8, s{sRDY}, s{sTODO}
s_cbranch_scc1 k3_go{i}
s_sleep {OPT['slp3']}
s_branch k3_p{i}
k3_go{i}:
s_ff1_i32_b32 s{sHH}, s8
s_bitset0_b32 s{sTODO}, s{sHH}
s_lshl_b32 s8, s{sHH}, 11
s_add_u32 s8, s8, s13
s_mul_i32 s9, s{sHH}, {28*128}""")
            for t in range(2): p(f"buffer_load_dwordx4 {vr(of+4*t,4)}, v{vL16}, {W4}, s8 offen offset:{t*1024}{LD}")
            p(f"v_add_u32 v4, s9, v{vWA}\nv_add_u32 v5, s9, v{vWA+2}")
            for t in range(2):
                for ct in range(2):
                    for x in range(2): p(f"ds_read_b64_tr_b16 {vr(st+8*t+4*ct+2*x,2)}, v{4+ct} offset:{(16*t+8*x)*128}")
            if i == 0: stamp(p, 1)
            if i >= D:
                p(f"s_waitcnt vmcnt({2*D}) lgkmcnt(8)"); mm(i - D)
        stamp(p, 2)
        for i in range(16 - D, 16):
            p(f"s_waitcnt vmcnt({2*(15-i)}) lgkmcnt(0)"); mm(i)
    else:
        def reads(h):
            st = WF[h & 1]
            for t in range(2):
                for ct in range(2):
                    for x in range(2):
                        p(f"ds_read_b64_tr_b16 {vr(st+8*t+4*ct+2*x,2)}, v{vWA+2*ct} offset:{(28*h+16*t+8*x)*128}")
        reads(0)
        poll(p, "k3_poll", 11, 3, 6)
        stamp(p, 1)
        def oload(h):
            for t in range(2):
                p(f"buffer_load_dwordx4 {vr(OF+8*(h%NR)+4*t,4)}, v{vL16}, {W4}, s13 offen offset:{(h&1)*2048+t*1024}{LD}")
            if h & 1: p("s_add_u32 s13, s13, 4096")
        for h in range(8): oload(h)
        stamp(p, 2)
        for h in range(16):
            if h < 15: reads(h + 1)
            if h < 8: oload(h + 8)
            p(f"s_waitcnt vmcnt({16 if h < 8 else 30-2*h}) lgkmcnt({8 if h < 15 else 0})")
            st = WF[h & 1]
            for t in range(2):
                for ct in range(2):
                    c = "0" if (h == 0 and t == 0) else vr(AC + 16 * ct, 16)
                    p(f"{MFMA} {vr(AC+16*ct,16)}, {vr(st+8*t+4*ct,4)}, {vr(OF+8*(h%NR)+4*t,4)}, {c}")
    stamp(p, 3)
    p("s_nop 10")
    for ct in range(2):
        for j in range(8): p(f"v_cvt_pk_bf16_f32 v{WF[0]+8*ct+j}, v{AC+16*ct+2*j}, v{AC+16*ct+2*j+1}")
        if ct == 1: p("s_nop 0")
    for ct in range(2):
        for gp in range(2):
            b = WF[0] + 8 * ct + 4 * gp
            p(f"v_permlane32_swap_b32 v{b}, v{b+2}\nv_permlane32_swap_b32 v{b+1}, v{b+3}")
            p(f"buffer_store_dwordx4 {vr(b,4)}, v{vST}, s[{OUT}:{OUT+3}], s12 offen offset:{ct*64+gp*32}{OST}")
    stamp(p, 4)
    if STAMP: p("s_waitcnt vmcnt(0)")
    stamp(p, 5); stamp_out(p, 2)
    p.label("k_end")
    p("s_endpgm")
    for s in CHECK:
        p.label(f"k2_rs{s}")
        p(f"s_mov_b32 s{sRET}, {s}\ns_branch k2_rescale")
    p.label("k2_rescale")
    p("s_waitcnt lgkmcnt(0)")
    p(f"{MFMA} {vr(O,16)}, {vr(V1,4)}, {vr(P+4,4)}, {vr(O,16)}\ns_nop 11")
    p(f"v_mov_b32 v{vT}, v{O+12}\nv_mov_b32 v{vT+1}, v{O+12}")
    for j in range(4): p(f"v_mov_b32 v{P+4+j}, 0")
    p(f"""v_permlane32_swap_b32 v{vT}, v{vT+1}
s_nop 0
v_frexp_exp_i32_f32 v{vT}, v{vT+1}
v_max_i32 v{vT}, 0, v{vT}
v_cvt_f32_i32 v{vT}, v{vT}
v_sub_f32 v{vT}, v{vNM}, v{vT}
v_cvt_pk_bf16_f32 v{vT}, v{vT}, 0
v_lshlrev_b32 v{vT+1}, 16, v{vT}
v_cndmask_b32 v{Q+6}, v{Q+6}, v{vT}, {sr(sUP,2)}
v_sub_f32 v{vT}, v{vT+1}, v{vNM}
v_mov_b32 v{vNM}, v{vT+1}
v_exp_f32 v{vT+1}, v{vT}""")
    for j in range(16): p(f"v_add_f32 v{S[0]+j}, v{S[0]+j}, v{vT}")
    for j in range(16): p(f"v_mul_f32 v{O+j}, v{O+j}, v{vT+1}")
    for s in CHECK[:-1]: p(f"s_cmp_eq_u32 s{sRET}, {s}\ns_cbranch_scc1 k2_cont{s}")
    p(f"s_branch k2_cont{CHECK[-1]}")
    p.label("k2_slow")
    p(f"s_lshl_b32 s{sKO}, s{sH2}, 18\ns_add_u32 s{sKO}, s{sKO}, {KV_OFF}\ns_mov_b32 s{sCNT}, 0\nv_cndmask_b32 v{Q+6}, v{Q+6}, 0, {sr(sUP,2)}\nv_mov_b32 v{vNM}, 0xff7fffff")
    for j in range(16): p(f"v_mov_b32 v{O+j}, 0")
    p.label("k2_sloop")
    for f in range(4): p(f"buffer_load_dwordx4 {vr(K+4*f,4)}, v{vL16}, {W4}, s{sKO} offen offset:{f*1024}{LD}")
    p(f"s_add_u32 s{sKO}, s{sKO}, 4096\ns_add_u32 s{sCNT}, s{sCNT}, 1\ns_waitcnt vmcnt(0)")
    p(f"{MFMA} {vr(S[0],16)}, {vr(K,4)}, {vr(Q,4)}, 0\n{MFMA} {vr(S[0],16)}, {vr(K+4,4)}, {vr(Q+4,4)}, {vr(S[0],16)}\ns_nop 11")
    p(f"v_max3_f32 v{vT}, v{S[0]}, v{S[0]+1}, v{vNM}")
    for j in range(2, 16, 2): p(f"v_max3_f32 v{vT}, v{vT}, v{S[0]+j}, v{S[0]+j+1}")
    xhalf(p, "v_max_f32", vT, vT + 1)
    p(f"v_sub_f32 v{vT+1}, v{vNM}, v{vT}\nv_mov_b32 v{vNM}, v{vT}\nv_exp_f32 v{vT+1}, v{vT+1}")
    for j in range(16): p(f"v_sub_f32 v{S[0]+j}, v{S[0]+j}, v{vT}")
    for j in range(16): p(f"v_exp_f32 v{S[0]+j}, v{S[0]+j}")
    for j in range(16): p(f"v_mul_f32 v{O+j}, v{O+j}, v{vT+1}")
    for j in range(8): p(f"v_cvt_pk_bf16_f32 v{P+j}, v{S[0]+2*j}, v{S[0]+2*j+1}")
    p("s_nop 1")
    p(f"{MFMA} {vr(O,16)}, {vr(K+8,4)}, {vr(P,4)}, {vr(O,16)}\n{MFMA} {vr(O,16)}, {vr(K+12,4)}, {vr(P+4,4)}, {vr(O,16)}")
    p(f"s_cmp_lt_u32 s{sCNT}, 64\ns_cbranch_scc1 k2_sloop")
    p(f"s_nop 11\nv_mov_b32 v{vT}, v{O+12}\nv_mov_b32 v{vT+1}, v{O+12}\ns_nop 1\nv_permlane32_swap_b32 v{vT}, v{vT+1}\ns_nop 0\nv_rcp_f32 v{vT+1}, v{vT+1}\ns_nop 0")
    for j in range(16): p(f"v_mul_f32 v{O+j}, v{O+j}, v{vT+1}")
    p("s_branch k2_out")

def main(out):
    p = Prog()
    phase23(p, phase1(p))
    hdr = open(f"cdna_kernels/{NAME}.s.ref").read().split("\n")
    lines = [l for l in hdr if l.startswith("; Kernarg") or l.startswith(";   offset")]
    s = "\n".join(lines) + "\n; @launch grid=(256,1,1) block=(512,1,1) lds=163840\n"
    s += '.amdgcn_target "amdgcn-amd-amdhsa--gfx950"\n.text\n'
    bad = len(p.check())
    s += f".globl {KNAME}\n.p2align 8\n.type {KNAME},@function\n{KNAME}:\n" + p.text()
    nv, ns = p.max_regs()
    s += f"""code_end:
.section .rodata,"a"
.p2align 6
.amdhsa_kernel {KNAME}
  .amdhsa_next_free_vgpr {nv}
  .amdhsa_next_free_sgpr {ns}
  .amdhsa_accum_offset {(nv + 3) // 4 * 4}
  .amdhsa_group_segment_fixed_size 0
  .amdhsa_kernarg_size 80
  .amdhsa_user_sgpr_count 2
  .amdhsa_user_sgpr_kernarg_segment_ptr 1
  .amdhsa_system_sgpr_workgroup_id_x 1
.end_amdhsa_kernel
"""
    open(out, "w").write(s)
    print("vgpr", nv, "sgpr", ns, "instr", len(p.L), "hazards:", bad)

if __name__ == "__main__":
    main(sys.argv[1] if len(sys.argv) > 1 else f"cdna_kernels/{NAME}.s")
```
